```python
import torch

def _softmax(x, axis=-1):
    return torch.softmax(x, dim=axis)
def _gelu(x):
    return torch.nn.functional.gelu(x, approximate="tanh")
def _silu(x):
    return torch.nn.functional.silu(x)
def _sigmoid(x):
    return torch.sigmoid(x)
def _layernorm(x, axis=-1, eps=1e-5):
    m = x.mean(dim=axis, keepdim=True)
    v = x.var(dim=axis, keepdim=True, unbiased=False)
    return (x - m) / torch.sqrt(v + eps)
def _scatter_add(tgt, idx, src, axis=0):
    return tgt.clone().index_add_(axis, idx, src)
def _segment_sum(src, seg, n):
    out = torch.zeros((n,) + src.shape[1:], dtype=src.dtype)
    return out.index_add_(0, seg, src)
def _pad(x, pw):
    flat = tuple(v for pair in reversed(pw) for v in pair)
    return torch.nn.functional.pad(x, flat)

kernel_name = 'sequential_preLN__sliding_block__mixer_channel_mlp__prompt'

def setup_inputs():

    _w = (lambda a: (lambda t: t.to(torch.bfloat16) if t.is_floating_point() else t)(torch.as_tensor(a)))
    def _A_setup():
        B, S, D = 1, 2048, 512
        return {
            "x": _w((lambda *s: torch.randn(*s, dtype=torch.bfloat16) * 0.05)(B, S, D)),
            "wqkv": _w((lambda *s: torch.randn(*s, dtype=torch.bfloat16) * 0.05)(D, 3 * D)),
            "wo": _w((lambda *s: torch.randn(*s, dtype=torch.bfloat16) * 0.05)(D, D)),
        }
    _A_in = _A_setup()

    def _B_setup():
        B, S, D, F = 1, 2048, 512, 1376
        return {
            "x": _w((lambda *s: torch.randn(*s, dtype=torch.bfloat16) * 0.05)(B, S, D)),
            "w1": _w((lambda *s: torch.randn(*s, dtype=torch.bfloat16) * 3.2)(D, F) * (D ** -0.5)),
            "b1": _w((lambda *s: torch.randn(*s, dtype=torch.bfloat16) * 1.6)(F)),
            "w2": _w((lambda *s: torch.randn(*s, dtype=torch.bfloat16) * 0.2)(F, D) * (F ** -0.5)),
            "b2": _w((lambda *s: torch.randn(*s, dtype=torch.bfloat16) * 0.2)(D)),
        }
    _B_in = _B_setup()

    return {
        "A_x": _A_in["x"],
        "A_wqkv": _A_in["wqkv"],
        "A_wo": _A_in["wo"],
        "B_x": _B_in["x"],
        "B_w1": _B_in["w1"],
        "B_b1": _B_in["b1"],
        "B_w2": _B_in["w2"],
        "B_b2": _B_in["b2"],
    }

def reference(A_x, A_wqkv, A_wo, B_x, B_w1, B_b1, B_w2, B_b2):
    def _A_ref(x, wqkv, wo):
        B, S, D = x.shape
        H = 32; Dh = D // H; W = 256
        qkv = (lambda x, *d: x.permute(*d))((x @ wqkv).reshape(B, S, 3, H, Dh), 2, 0, 3, 1, 4)
        q, k, v = qkv[0], qkv[1], qkv[2]
        scores = torch.einsum("bhqd,bhkd->bhqk", q, k) * (Dh ** -0.5)
        idx = torch.arange(S)
        mask = (idx[:, None] - idx[None, :] >= 0) & (idx[:, None] - idx[None, :] < W)
        scores = torch.where(mask[None, None], scores, -1e9)
        p = _softmax(scores, axis=-1)
        o = torch.einsum("bhqk,bhkd->bhqd", p, v)
        return (lambda x, *d: x.permute(*d))(o, 0, 2, 1, 3).reshape(B, S, D) @ wo

    def _B_ref(x, w1, b1, w2, b2):
        y = _layernorm(x, axis=-1)
        h = _gelu(torch.einsum("bsd,df->bsf", y, w1) + b1)
        return torch.einsum("bsf,fd->bsd", h, w2) + b2

    x = A_x
    h = x + _A_ref(_layernorm(x, axis=-1), A_wqkv, A_wo)
    h2 = h + _B_ref(_layernorm(h, axis=-1), B_w1, B_b1, B_w2, B_b2)
    return h2
```

```python
import re

TRANS = ("v_exp_f32", "v_log_f32", "v_rcp_f32", "v_rsq_f32", "v_sqrt_f32", "v_sin_f32", "v_cos_f32")


def vr(a, n=1):
    return f"v{a}" if n == 1 else f"v[{a}:{a + n - 1}]"


def sr(a, n=1):
    return f"s{a}" if n == 1 else f"s[{a}:{a + n - 1}]"


_reg_re = re.compile(r"^(-|abs\()?\|?([vsa])(\d+|\[(\d+):(\d+)\])\|?\)?$")


def regs_of(tok):
    tok = tok.strip()
    if tok in ("vcc", "exec"):
        return {(tok, 0), (tok, 1)}
    if tok in ("vcc_lo", "exec_lo"):
        return {(tok[:-3], 0)}
    if tok in ("vcc_hi", "exec_hi"):
        return {(tok[:-3], 1)}
    if tok == "m0":
        return {("m0", 0)}
    m = _reg_re.match(tok)
    if not m:
        return set()
    k = m.group(2)
    if m.group(4) is not None:
        return {(k, i) for i in range(int(m.group(4)), int(m.group(5)) + 1)}
    return {(k, int(m.group(3)))}


class Ins:
    def __init__(self, text):
        self.text = text
        t = text.split(";")[0].strip()
        self.is_label = t.endswith(":")
        self.is_dir = t.startswith(".") or t == ""
        self.op = ""
        self.w = set()
        self.r = set()
        self.states = 1
        self.kind = "other"
        if self.is_label or self.is_dir:
            self.states = 0
            return
        parts = t.split(None, 1)
        op = self.op = parts[0]
        rest = parts[1] if len(parts) > 1 else ""
        ops = [o.strip() for o in rest.split(",")] if rest else []
        mods = ""
        if ops:
            last = ops[-1].split(None, 1)
            joined = rest
            mm = re.search(r"\s(op_sel|op_sel_hi|neg_lo|neg_hi|quad_perm):", joined)
            if mm:
                mods = joined[mm.start():]
                joined = joined[:mm.start()]
                ops = [o.strip() for o in joined.split(",")]
                last = ops[-1].split(None, 1)
            ops[-1] = last[0]
            if len(last) > 1:
                mods += " " + last[1]
        self.mods = mods
        R = [regs_of(o) for o in ops]
        U = lambda xs: set().union(*xs) if xs else set()
        if op == "s_nop":
            self.states = int(ops[0], 0) + 1
        elif op.startswith("v_mfma"):
            self.kind = "mfma"
            self.passes = 8 if "32x32" in op else 4
            self.w = R[0]
            self.ab = R[1] | R[2]
            self.c = R[3]
            self.r = self.ab | self.c
        elif op.startswith("v_"):
            self.kind = "valu"
            self.trans = any(op.startswith(x) for x in TRANS)
            self.perm = op.startswith("v_permlane")
            self.dpp = "_dpp" in op or "row_" in mods or "quad_perm" in mods
            self.lane = op.startswith("v_readlane") or op.startswith("v_readfirstlane")
            if self.perm:
                self.w = R[0] | R[1]
                self.r = R[0] | R[1]
            elif "_co_" in op:
                self.w = R[0] | R[1]
                self.r = U(R[2:])
            else:
                self.w = R[0]
                self.r = U(R[1:])
                if op.startswith("v_fmac") or op.startswith("v_dot2c") or self.dpp or op.startswith("v_writelane"):
                    self.r |= R[0]
            assert not op.startswith("v_cmpx")
        elif op.startswith("ds_"):
            self.kind = "ds"
            if op.startswith("ds_read") or "rtn" in op or op.startswith("ds_bpermute") or op.startswith("ds_swizzle"):
                self.w = R[0]
                self.r = U(R[1:])
            else:
                self.r = U(R)
        elif op.startswith("buffer_") or op.startswith("global_"):
            self.kind = "vmem"
            self.lds = " lds" in (" " + mods)
            self.wide_store = False
            if "load" in op and not self.lds:
                self.w = R[0]
                self.r = U(R[1:])
            else:
                self.r = U(R)
                if self.lds:
                    self.r |= {("m0", 0)}
                if "store" in op and ("x4" in op or "x3" in op):
                    self.wide_store = True
                    self.data = R[0]
        elif op.startswith("s_"):
            self.kind = "salu"
            if op.startswith("s_cmp") or op.startswith("s_bitcmp") or op.startswith("s_cbranch") or op in (
                    "s_waitcnt", "s_barrier", "s_branch", "s_endpgm", "s_setprio", "s_sleep", "s_setpc_b64"):
                self.r = U(R)
            else:
                self.w = R[0] if R else set()
                self.r = U(R[1:])
                if "saveexec" in op:
                    self.w |= regs_of("exec")


def need(p, c):
    n = 0
    vg = lambda s: {x for x in s if x[0] in ("v", "a")}
    sg = lambda s: {x for x in s if x[0] in ("s", "vcc")}
    if p.kind == "valu":
        pw = vg(p.w)
        if c.kind == "mfma" and pw & c.r:
            n = max(n, 2)
        if c.kind == "valu":
            if p.trans and not c.trans and pw & c.r:
                n = max(n, 1)
            if (c.perm or c.dpp) and pw & c.r:
                n = max(n, 2)
            if c.lane and pw & c.r:
                n = max(n, 1)
        ps = sg(p.w)
        if ps:
            if c.kind == "valu" and ps & c.r:
                n = max(n, 4 if c.op.startswith(("v_readlane", "v_writelane")) else 2)
            if c.kind == "vmem" and ps & c.r:
                n = max(n, 5)
            if c.kind == "salu" and ps & c.r:
                n = max(n, 1)
            if c.op.startswith("s_cbranch_vcc") and any(x[0] == "vcc" for x in ps):
                n = max(n, 5)
    if p.kind == "mfma":
        full = 8 if p.passes == 4 else 12
        if c.kind == "mfma":
            if p.w & c.ab:
                n = max(n, full)
            if p.w & c.c and not (p.w == c.c and p.passes == c.passes):
                n = max(n, full - 2)
            if p.w & c.w and not (p.w == c.w and p.passes == c.passes):
                n = max(n, full - 2)
        elif c.kind in ("valu", "ds", "vmem"):
            if p.w & (c.r | c.w):
                n = max(n, full)
            if c.kind == "valu" and p.c & c.w:
                n = max(n, 3 if p.passes == 4 else 7)
    if p.kind == "salu" and ("m0", 0) in p.w and c.kind == "vmem" and ("m0", 0) in c.r:
        n = max(n, 1)
    if p.kind == "vmem" and getattr(p, "wide_store", False):
        if c.kind in ("valu", "mfma") and p.data & c.w:
            n = max(n, 2)
        elif p.data & c.w:
            n = max(n, 1)
    return n


def pad_hazards(lines, report=None):
    out = []
    hist = []
    for text in lines:
        ins = Ins(text)
        if ins.states == 0:
            out.append(text)
            continue
        dist = 0
        lack = 0
        why = None
        for p in reversed(hist):
            if dist >= 12:
                break
            k = need(p, ins) - dist
            if k > lack:
                lack, why = k, p.text
            dist += p.states
        if lack > 0:
            nop = f"    s_nop {lack - 1}"
            out.append(nop)
            hist.append(Ins(nop))
            if report is not None:
                report.append((lack, why.strip(), text.strip()))
        out.append(text)
        hist.append(ins)
        hist = hist[-16:]
    return out


class Stream:
    def __init__(self):
        self.L = []
        self.vm_n = 0
        self.vm_done = 0
        self.lg_n = 0
        self.lg_done = 0

    def __call__(self, text):
        for ln in text.split("\n"):
            ln = ln.strip()
            if not ln:
                continue
            op = ln.split()[0]
            assert not op.startswith(("buffer_", "ds_", "global_")), ln
            self.L.append(ln if ln.endswith(":") else "    " + ln)

    def raw(self, text):
        self.L.append("    " + text)

    def cmt(self, text):
        self.L.append("    ; " + text)

    def vm(self, text):
        self.L.append("    " + text)
        self.vm_n += 1
        return self.vm_n

    def ds(self, text):
        self.L.append("    " + text)
        self.lg_n += 1
        return self.lg_n

    def wait(self, vm=None, lg=None, force=False):
        parts = []
        if vm is not None and (vm > self.vm_done or force):
            n = self.vm_n - vm
            assert 0 <= n
            n = min(n, 63)
            parts.append(f"vmcnt({n})")
            self.vm_done = max(self.vm_done, self.vm_n - n)
        if lg is not None and (lg > self.lg_done or force):
            n = self.lg_n - lg
            assert 0 <= n
            n = min(n, 15)
            parts.append(f"lgkmcnt({n})")
            self.lg_done = max(self.lg_done, self.lg_n - n)
        if parts:
            self.L.append("    s_waitcnt " + " ".join(parts))

    def wait_vm0(self, force=False):
        self.wait(vm=self.vm_n, force=force)

    def wait_lg0(self, force=False):
        self.wait(lg=self.lg_n, force=force)

    def fence(self):
        self.L.append("    s_nop 7")
        self.L.append("    s_nop 3")
```

```python
import sys, struct
from asmlib import Stream, pad_hazards, vr, sr

NAME = "sequential_preLN__sliding_block__mixer_channel_mlp__prompt_kernel"

OPT = dict(stamps=0, warm=1, pretouch=1, local=1, g1=4, g2a=3, rotw=1, force_fb=0, codepf=1, xnt=0)
for a in sys.argv[2:]:
    k, v = a.split("=")
    assert k in OPT, k
    OPT[k] = int(v)


def f2u(x):
    return struct.unpack("<I", struct.pack("<f", x))[0]


def hx(x):
    return hex(x & 0xffffffff)


SX, SWQ, SWO, SW1, SW2, SWS, SOUT, SB1, SB2, SDBG = 4, 8, 12, 16, 20, 24, 28, 32, 36, 40
sRB, sJ, sW, sROT, sWSB, sNONCE, sXCC, sRO = 44, 45, 46, 47, 48, 49, 50, 51
sT0, sT1, sT2, sT3, sT4, sT5, sT6, sT7 = 52, 53, 54, 55, 56, 57, 58, 59
sM0, sM1, sM2, sM3 = 60, 62, 64, 66
sCNT = 68
sLB = 69
sSTAMP = 70
srd = lambda b: sr(b, 4)

RBS = 0x80000
WKV, WO_, WH, WH1, WST, WFL = 0, 0x20000, 0x30000, 0x40000, 0x6C000, 0x70000
FLA, FLX, FLB, FLC, FLD = WFL, WFL + 0x1000, WFL + 0x1080, WFL + 0x1100, WFL + 0x1180
WSTAMP = 0x78000
WEPOCH = 0x7F000
H1H = 88 * 1024
WS_BYTES = 32 * RBS
OOB = 0x4000000

LDS_BYTES = 163840
SLOT = 32768
L_G0 = 98304
L_MISC = 159744
L_RS, L_NM, L_NONCE, L_C4, L_IB = L_MISC, L_MISC + 256, L_MISC + 512, L_MISC + 1024, L_MISC + 2048
L_HALO, HBLK, HHEAD = 0, 2080, 16640
L_OWNV = 66560
L_WO = 94208
L_HST = 86016
W1S = 12288
W2W = 21504

TIMEOUT = 200000
tail = []
_lab = [0]


def lab(p):
    _lab[0] += 1
    return f"L_{p}{_lab[0]}"


def stamp(S, i):
    if OPT["stamps"]:
        S(f"s_memtime {sr(sSTAMP + 2 * i, 2)}")


def dma(S, vaddr, base, soff, off=0, fl=""):
    o = f" offset:{off}" if off else ""
    fl = f" {fl}" if fl else ""
    return S.vm(f"buffer_load_dwordx4 {vr(vaddr)}, {srd(base)}, {soff} offen{o}{fl} lds")


def pub(S, stores):
    slow, join = lab("slow"), lab("join")
    S(f"s_cbranch_vccz {slow}")
    t = None
    for st in stores:
        t = S.vm(st)
    S(f"{join}:")
    tail.append(f"{slow}:")
    for st in stores:
        tail.append("    " + st + " sc1")
    tail.append(f"    s_branch {join}")
    return t


def poll(S, vaddr, vmask, vt, vu):
    lp, dn = lab("poll"), lab("pdone")
    S(f"s_mov_b32 {sr(sCNT)}, 0")
    S(f"{lp}:")
    S.vm(f"buffer_load_dword {vr(vt)}, {vr(vaddr)}, {srd(SWS)}, 0 offen sc1")
    S(f"s_add_u32 {sr(sCNT)}, {sr(sCNT)}, 1")
    S(f"s_cmp_gt_u32 {sr(sCNT)}, {TIMEOUT}")
    S.wait_vm0()
    S(f"s_cbranch_scc1 {dn}")
    if vmask is None:
        S(f"v_cmp_ne_u32 {sr(sM0, 2)}, {sr(sNONCE)}, {vr(vt)}")
    else:
        S(f"v_xor_b32 {vr(vu)}, {sr(sNONCE)}, {vr(vt)}")
        S(f"v_and_b32 {vr(vu)}, {vr(vu)}, {vr(vmask)}")
        S(f"v_cmp_ne_u32 {sr(sM0, 2)}, 0, {vr(vu)}")
    S(f"s_cmp_lg_u64 {sr(sM0, 2)}, 0")
    S(f"s_cbranch_scc1 {lp}")
    S(f"{dn}:")


def mf16(S, d, a, b, c=None):
    S(f"v_mfma_f32_16x16x32_bf16 {vr(d, 4)}, {vr(a, 4)}, {vr(b, 4)}, {vr(d, 4) if c is None else c}")


def mf32(S, d, a, b, c=None):
    S(f"v_mfma_f32_32x32x16_bf16 {vr(d, 16)}, {vr(a, 4)}, {vr(b, 4)}, {vr(d, 16) if c is None else c}")


def dump_stamps(S, team):
    if not OPT["stamps"]:
        return
    S("s_waitcnt lgkmcnt(0)")
    S(f"s_lshl_b32 {sr(sT0)}, {sr(sJ)}, 10")
    S(f"s_lshl_b32 {sr(sT1)}, {sr(sW)}, 7")
    S(f"s_add_u32 {sr(sT0)}, {sr(sT0)}, {sr(sT1)}")
    S(f"s_add_u32 {sr(sT0)}, {sr(sT0)}, {WSTAMP + team * 512}")
    S(f"s_add_u32 {sr(sT0)}, {sr(sT0)}, {sr(sWSB)}")
    S("v_mov_b32 v1, 0")
    for i in range(16):
        S(f"v_mov_b32 v2, {sr(sSTAMP + 2 * i)}")
        S.vm(f"buffer_store_dword v2, v1, {srd(SWS)}, {sr(sT0)} offen offset:{4 * i}")
    S.wait_vm0()


P = Stream()
for base, off in ((SX, 0), (SWQ, 8), (SWS, 80), (SW1, 32), (SWO, 16), (SW2, 48), (SB1, 40), (SB2, 56), (SOUT, 64), (SDBG, 72)):
    P(f"s_load_dwordx2 {sr(base, 2)}, s[0:1], {off}")
P("s_cmp_ge_u32 s2, 256")
P("s_cbranch_scc1 L_exit")
if OPT["stamps"]:
    P(f"s_memtime {sr(sSTAMP, 2)}")
    P(f"s_memrealtime {sr(sSTAMP + 30, 2)}")
P("v_lshrrev_b32 v1, 6, v0")
P("v_and_b32 v0, 63, v0")
P(f"v_readfirstlane_b32 {sr(sT0)}, v1")
for base, n in ((SX, 2097152), (SWQ, 1572864), (SWS, WS_BYTES), (SW1, 1409024), (SWO, 524288), (SW2, 1409024),
                (SB1, 2752), (SB2, 1024), (SOUT, 2097152), (SDBG, 256)):
    P(f"s_mov_b32 {sr(base + 2)}, {n}")
    P(f"s_mov_b32 {sr(base + 3)}, 0x20000")
P(f"s_and_b32 {sr(sW)}, {sr(sT0)}, 3")
P(f"s_bfe_u32 {sr(sJ)}, s2, 0x30003")
P(f"s_lshr_b32 {sr(sT1)}, s2, 6")
P(f"s_and_b32 {sr(sT2)}, s2, 7")
P(f"s_lshl2_add_u32 {sr(sRB)}, {sr(sT2)}, {sr(sT1)}")
P(f"s_lshl_b32 {sr(sWSB)}, {sr(sRB)}, 19")
P(f"s_lshl1_add_u32 {sr(sROT)}, {sr(sT1)}, {sr(sJ)}")
P(f"s_and_b32 {sr(sT2)}, {sr(sT2)}, 1")
P(f"s_add_u32 {sr(sROT)}, {sr(sROT)}, {sr(sT2)}")
P(f"s_and_b32 {sr(sROT)}, {sr(sROT)}, 7")
if OPT["rotw"]:
    P(f"s_lshl_b32 {sr(sRO)}, {sr(sT1)}, 2")
else:
    P(f"s_mov_b32 {sr(sRO)}, 0")
P(f"s_cmp_ge_u32 {sr(sT0)}, 4")
P("s_cbranch_scc1 L_teamA")

B = Stream()
bX0, bX1, bWA = 1, 2, 3
bW1A = 4
bW1R = 7
bSA = 10
bONE = 16
bSUM, bSQ = 20, 24
bXF = 28
bT = 36
bCS = 48
bB1 = 60
bW1 = 64

B(f"v_lshrrev_b32 v{bT}, 3, v0")
B(f"v_lshrrev_b32 v{bT + 1}, 4, v0")
B(f"v_and_b32 v{bT + 2}, 7, v0")
B(f"s_lshl_b32 {sr(sT0)}, {sr(sRB)}, 16")
B(f"s_lshl_b32 {sr(sT1)}, {sr(sW)}, 14")
B(f"s_add_u32 {sr(sT0)}, {sr(sT0)}, {sr(sT1)}")
B(f"v_xor_b32 v{bT + 3}, v{bT + 2}, v{bT + 1}")
B(f"v_lshlrev_b32 v{bT + 3}, 4, v{bT + 3}")
B(f"v_lshl_add_u32 v{bT + 3}, v{bT}, 10, v{bT + 3}")
B(f"v_add_u32 v{bX0}, {sr(sT0)}, v{bT + 3}")
B(f"v_xor_b32 v{bX1}, 64, v{bX0}")
B(f"v_add_u32 v{bX1}, 7168, v{bX1}")
B(f"s_and_b32 {sr(sT0)}, {sr(sW)}, 1")
B(f"s_lshl_b32 {sr(sT0)}, {sr(sT0)}, 2")
B(f"v_and_b32 v{bT + 3}, 1, v{bT + 1}")
B(f"v_lshl_or_b32 v{bT + 3}, v{bT + 3}, 1, {sr(sT0)}")
B(f"v_xor_b32 v{bT + 3}, v{bT + 3}, v{bT + 2}")
B(f"v_lshlrev_b32 v{bT + 3}, 4, v{bT + 3}")
B(f"s_mul_i32 {sr(sT0)}, {sr(sW)}, {8 * 3072}")
B(f"s_lshl_b32 {sr(sT1)}, {sr(sJ)}, 7")
B(f"s_add_u32 {sr(sT0)}, {sr(sT0)}, {sr(sT1)}")
B(f"v_mul_u32_u24 v{bT + 4}, 3072, v{bT}")
B(f"v_add3_u32 v{bWA}, v{bT + 3}, v{bT + 4}, {sr(sT0)}")
sXM, sWM, sSL = sT4, sT5, sT6
B(f"s_lshl_b32 {sr(sXM)}, {sr(sW)}, 11")
B(f"s_mul_i32 {sr(sWM)}, {sr(sW)}, 3072")
B(f"s_mov_b32 {sr(sSL)}, {sr(sROT)}")
B("s_waitcnt lgkmcnt(0)")

tok_s1 = {}


def s1_issue(s, part):
    slot = (s % 3) * SLOT
    if part == 0:
        B(f"s_add_u32 m0, {sr(sXM)}, {slot}")
        B(f"s_lshl_b32 {sr(sT0)}, {sr(sSL)}, 7")
        fl = "nt" if OPT["xnt"] else ""
        dma(B, bX0, SX, sr(sT0), 0, fl)
        dma(B, bX1, SX, sr(sT0), 1024, fl)
        B(f"s_add_u32 m0, {sr(sWM)}, {slot + 8192}")
        B(f"s_mul_i32 {sr(sT1)}, {sr(sSL)}, 196608")
    else:
        B(f"s_add_u32 m0, {sr(sWM)}, {slot + 8192 + 12288}")
        B(f"s_add_u32 {sr(sT1)}, {sr(sT1)}, 98304")
    for m in (1, 2, 0):
        t = dma(B, bWA, SWQ, sr(sT1), m * 1024)
    tok_s1[(s, part)] = t
    if part == 1:
        B(f"s_add_u32 {sr(sSL)}, {sr(sSL)}, 1")
        B(f"s_and_b32 {sr(sSL)}, {sr(sSL)}, 7")


s1_issue(0, 0)
s1_issue(0, 1)
s1_issue(1, 0)
s1_issue(1, 1)
stamp(B, 1)
B(f"s_mul_i32 {sr(sT0)}, {sr(sW)}, {8 * 2752}")
B(f"s_mul_i32 {sr(sT2)}, {sr(sJ)}, 352")
B(f"s_add_u32 {sr(sT0)}, {sr(sT0)}, {sr(sT2)}")
B(f"s_mul_i32 {sr(sT2)}, {sr(sJ)}, 22")
B(f"s_sub_u32 {sr(sT2)}, 172, {sr(sT2)}")
B(f"s_min_u32 {sr(sT2)}, {sr(sT2)}, 22")
B(f"s_mov_b32 {sr(sT3)}, 2752")
for i in range(3):
    B(f"v_add_u32 v{bT + 3}, {64 * i}, v0")
    B(f"v_mul_u32_u24 v{bT + 4}, 171, v{bT + 3}")
    B(f"v_lshrrev_b32 v{bT + 4}, 12, v{bT + 4}")
    B(f"v_mul_u32_u24 v{bT + 5}, 24, v{bT + 4}")
    B(f"v_sub_u32 v{bT + 5}, v{bT + 3}, v{bT + 5}")
    B(f"v_and_b32 v{bT + 6}, 6, v{bT + 4}")
    B(f"v_xor_b32 v{bT + 5}, v{bT + 5}, v{bT + 6}")
    B(f"v_cmp_gt_u32 {sr(sM0, 2)}, {sr(sT2)}, v{bT + 5}")
    B(f"v_lshlrev_b32 v{bT + 5}, 4, v{bT + 5}")
    B(f"v_mad_u32_u24 v{bT + 5}, v{bT + 4}, {sr(sT3)}, v{bT + 5}")
    B(f"v_add_u32 v{bT + 5}, {sr(sT0)}, v{bT + 5}")
    if i:
        B(f"v_subrev_u32 v{bT + 5}, {1024 * i}, v{bT + 5}")
    B(f"v_mov_b32 v{bT + 6}, {hx(OOB)}")
    B(f"v_cndmask_b32 v{bW1A + i}, v{bT + 6}, v{bT + 5}, {sr(sM0, 2)}")
B(f"v_lshrrev_b32 v{bT + 3}, 2, v0")
B(f"v_bfe_u32 v{bT + 4}, v0, 3, 2")
B(f"v_and_b32 v{bT + 5}, 3, v0")
B(f"v_lshlrev_b32 v{bT + 5}, 3, v{bT + 5}")
B(f"v_mul_u32_u24 v{bT + 3}, 384, v{bT + 3}")
B(f"v_add_u32 v{bT + 3}, v{bT + 3}, v{bT + 5}")
B(f"v_add_u32 v{bT + 3}, {L_G0}, v{bT + 3}")
B(f"s_mul_i32 {sr(sT0)}, {sr(sW)}, 3")
for n in range(3):
    B(f"v_xor_b32 v{bT + 5}, {sr(sT0)}, v{bT + 4}")
    B(f"v_lshl_add_u32 v{bW1R + n}, v{bT + 5}, 5, v{bT + 3}")
    B(f"s_add_u32 {sr(sT0)}, {sr(sT0)}, 1")
B(f"v_and_b32 v{bT + 3}, 15, v0")
B(f"v_lshrrev_b32 v{bT + 4}, 1, v{bT + 3}")
B(f"v_xor_b32 v{bT + 4}, v{bT + 4}, v{bT + 1}")
B(f"v_lshlrev_b32 v{bT + 4}, 4, v{bT + 4}")
B(f"v_lshl_add_u32 v{bT + 4}, v{bT + 3}, 7, v{bT + 4}")
B(f"v_add_u32 v{bSA}, {sr(sXM)}, v{bT + 4}")
B(f"v_xor_b32 v{bSA + 1}, 64, v{bSA}")
B(f"v_add_u32 v{bSA + 2}, 0x10000, v{bSA}")
B(f"v_add_u32 v{bSA + 3}, 0x10000, v{bSA + 1}")
for i in range(4):
    B(f"v_mov_b32 v{bONE + i}, 0x3f803f80")
sW1K = sT7
B(f"s_mov_b32 {sr(sW1K)}, {sr(sRO)}")

w1_tok = {}
w1_next = [0]


def w1_issue(lds):
    i = w1_next[0]
    w1_next[0] += 1
    B(f"s_add_u32 m0, {sr(sWM)}, {lds}")
    B(f"s_mul_i32 {sr(sT0)}, {sr(sW1K)}, 88064")
    for n in range(3):
        t = dma(B, bW1A + n, SW1, sr(sT0), n * 1024)
    B(f"s_add_u32 {sr(sW1K)}, {sr(sW1K)}, 1")
    B(f"s_and_b32 {sr(sW1K)}, {sr(sW1K)}, 15")
    w1_tok[i] = t
    return t


w1_base = [L_G0]


def w1_drain(first, count, lds):
    if lds != w1_base[0]:
        for n in range(3):
            B(f"v_add_u32 v{bW1R + n}, {hx(lds - w1_base[0])}, v{bW1R + n}")
        w1_base[0] = lds
    for i in range(count):
        for n in range(3):
            for h in range(2):
                B.ds(f"ds_read_b64_tr_b16 {vr(bW1 + 12 * (first + i) + 4 * n + 2 * h, 2)}, v{bW1R + n} offset:{i * W1S + h * 6144}")


def w1_colsum(first, count):
    for i in range(first, first + count):
        for n in range(3):
            mf16(B, bCS + 4 * n, bONE, bW1 + 12 * i + 4 * n, "0" if i == 0 else None)


for n in range(16):
    s, t = n >> 1, n & 1
    B.wait(vm=tok_s1[(s, t)], lg=B.lg_n)
    B("s_barrier")
    if n == 0:
        stamp(B, 2)
    sl = s % 3
    tk = B.ds(f"ds_read_b128 {vr(bXF + 4 * t, 4)}, v{bSA + t + (2 if sl == 2 else 0)} offset:{(sl & 1) * SLOT}")
    if s + 2 < 8:
        s1_issue(s + 2, t)
    elif n < 15:
        w1_issue(L_G0 + w1_next[0] * W1S)
    B.wait(lg=tk)
    mf16(B, bSUM, bONE, bXF + 4 * t, "0" if n == 0 else None)
    mf16(B, bSQ, bXF + 4 * t, bXF + 4 * t, "0" if n == 0 else None)
stamp(B, 3)
B(f"v_and_b32 v{bT}, 3, v0")
B(f"v_cmp_eq_u32 {sr(sM0, 2)}, 1, v{bT}")
B(f"v_cmp_eq_u32 {sr(sM1, 2)}, 2, v{bT}")
B(f"v_cmp_eq_u32 {sr(sM2, 2)}, 3, v{bT}")
B(f"v_and_b32 v{bT + 2}, 15, v0")
B(f"s_lshl_b32 {sr(sT0)}, {sr(sW)}, 6")
B(f"s_add_u32 {sr(sT0)}, {sr(sT0)}, {L_RS}")
B(f"v_lshl_add_u32 v{bT + 2}, v{bT + 2}, 2, {sr(sT0)}")
B(f"v_mul_f32 v{bT + 3}, {hx(f2u(-1.0 / 512))}, v{bSUM}")
B(f"v_cndmask_b32 v{bT + 1}, v{bSQ}, v{bSQ + 1}, {sr(sM0, 2)}")
B(f"v_cndmask_b32 v{bT + 1}, v{bT + 1}, v{bSQ + 2}, {sr(sM1, 2)}")
B(f"v_cndmask_b32 v{bT + 1}, v{bT + 1}, v{bSQ + 3}, {sr(sM2, 2)}")
B(f"v_mul_f32 v{bT + 1}, {hx(f2u(1.0 / 512))}, v{bT + 1}")
B(f"v_fma_f32 v{bT + 1}, -v{bT + 3}, v{bT + 3}, v{bT + 1}")
B(f"v_max_f32 v{bT + 1}, 0, v{bT + 1}")
B(f"v_add_f32 v{bT + 1}, {hx(f2u(1e-5))}, v{bT + 1}")
B(f"v_rsq_f32 v{bT + 1}, v{bT + 1}")
B("s_mov_b32 exec_lo, 0x00f0000f")
B("s_mov_b32 exec_hi, 0xf0000f00")
B(f"v_mul_f32 v{bT + 3}, v{bT + 3}, v{bT + 1}")
B.ds(f"ds_write2st64_b32 v{bT + 2}, v{bT + 1}, v{bT + 3} offset0:0 offset1:1")
B("s_mov_b64 exec, -1")
B.wait_lg0()
B("s_barrier")
stamp(B, 4)
B(f"v_mov_b32 v{bT}, {L_NONCE}")
tk = B.ds(f"ds_read_b32 v{bT + 1}, v{bT}")
while w1_next[0] < 5:
    w1_issue(L_G0 + w1_next[0] * W1S)
G1 = OPT["g1"]
G2A = OPT["g2a"]
G2B = 16 - 5 - G1 - G2A
assert 0 <= G2B <= 5 and G2A + G2B <= 7 and G1 <= 5
w1_issue(L_HALO)
B.wait(lg=tk)
B(f"v_readfirstlane_b32 {sr(sNONCE)}, v{bT + 1}")
bPA, bPM = 28, 29
B(f"s_getreg_b32 {sr(sXCC)}, hwreg(HW_REG_XCC_ID, 0, 4)")
B(f"s_lshl2_add_u32 {sr(sT0)}, {sr(sJ)}, {sr(sW)}")
B(f"s_lshl_b32 {sr(sT0)}, {sr(sT0)}, 7")
B(f"s_add_u32 {sr(sT0)}, {sr(sT0)}, {sr(sWSB)}")
B(f"s_add_u32 {sr(sT0)}, {sr(sT0)}, {hx(FLA - RBS)}")
B(f"v_lshlrev_b32 v{bT}, 19, v0")
B(f"v_sub_u32 v{bT}, {sr(sT0)}, v{bT}")
B(f"v_and_b32 v{bT + 1}, 7, v0")
B(f"s_add_u32 {sr(sT1)}, {sr(sWSB)}, {FLX}")
B(f"v_lshl_add_u32 v{bT + 1}, v{bT + 1}, 2, {sr(sT1)}")
B(f"s_min_u32 {sr(sT2)}, {sr(sRB)}, 4")
B(f"v_cmp_gt_u32 {sr(sM0, 2)}, {sr(sT2)}, v0")
B(f"v_mov_b32 v{bT + 2}, -16")
B(f"v_cndmask_b32 v{bPA}, v{bT + 1}, v{bT}, {sr(sM0, 2)}")
B(f"v_cndmask_b32 v{bPM}, v{bT + 2}, -1, {sr(sM0, 2)}")
for i in range(1, 2 if G1 > 1 else 1):
    w1_issue(L_HALO + i * W1S)
B.wait(vm=w1_tok[4])
B("s_barrier")
w1_drain(0, 5, L_G0)
for i in range(2, G1):
    w1_issue(L_HALO + i * W1S)
bWO, bHL = 30, 31
B(f"v_lshrrev_b32 v{bT}, 3, v0")
B(f"v_and_b32 v{bT + 1}, 6, v{bT}")
B(f"v_and_b32 v{bT + 2}, 7, v0")
B(f"v_xor_b32 v{bT + 1}, v{bT + 1}, v{bT + 2}")
B(f"v_lshlrev_b32 v{bT + 1}, 4, v{bT + 1}")
B(f"v_lshl_add_u32 v{bT + 1}, v{bT}, 10, v{bT + 1}")
B(f"s_lshl_b32 {sr(sT0)}, {sr(sW)}, 13")
B(f"s_lshl_b32 {sr(sT1)}, {sr(sJ)}, 7")
B(f"s_add_u32 {sr(sT0)}, {sr(sT0)}, {sr(sT1)}")
B(f"v_add_u32 v{bWO}, {sr(sT0)}, v{bT + 1}")
B(f"s_lshl2_add_u32 {sr(sT0)}, {sr(sJ)}, {sr(sW)}")
B(f"s_lshl_b32 {sr(sT0)}, {sr(sT0)}, 12")
B(f"v_lshl_add_u32 v{bHL}, v0, 4, {sr(sT0)}")
B.wait(vm=B.vm_n, lg=B.lg_n)
B("s_barrier")
stamp(B, 5)
w1_drain(5, G1, L_HALO)
B(f"v_lshrrev_b32 v{bT}, 1, v0")
B(f"v_add_u32 v{bT}, {sr(sRB)}, v{bT}")
B(f"v_cmp_le_u32 {sr(sM0, 2)}, 4, v{bT}")
B(f"s_mul_i32 {sr(sLB)}, {sr(sW)}, {HHEAD}")
B(f"v_mul_u32_u24 v{bT + 1}, {HBLK}, v0")
B(f"v_add_u32 v{bT + 1}, {sr(sLB)}, v{bT + 1}")
for i in range(4):
    B(f"v_cndmask_b32 v{bT + 4 + i}, 0, v{bONE}, {sr(sM0, 2)}")
B.wait_lg0()
B("s_barrier")
B("s_mov_b64 exec, 0xff")
B.ds(f"ds_write_b128 v{bT + 1}, {vr(bT + 4, 4)} offset:{L_HALO + 2048}")
B("s_mov_b64 exec, -1")
poll(B, bPA, bPM, bT + 2, bT + 3)
stamp(B, 6)
h_tok = []
for i in range(1, 5):
    B(f"s_sub_u32 {sr(sT0)}, {sr(sWSB)}, {i * RBS}")
    B(f"s_cselect_b32 {sr(sT0)}, {hx(OOB)}, {sr(sT0)}")
    for blk in (1, 0):
        B(f"s_add_u32 m0, {sr(sLB)}, {L_HALO + (8 - 2 * i + blk) * HBLK}")
        B(f"s_add_u32 {sr(sT1)}, {sr(sT0)}, {blk * 2048}")
        dma(B, bHL, SWS, sr(sT1), 0, "sc1")
        t = dma(B, bHL, SWS, sr(sT1), 1024, "sc1")
    h_tok.append(t)
    if i == 1:
        B(f"v_and_b32 v{bT + 2}, 15, v{bT + 2}")
        B(f"v_cmp_ne_u32 {sr(sM0, 2)}, {sr(sXCC)}, v{bT + 2}")
        B(f"s_and_b32 {sr(sT2)}, {sr(sM0)}, 0xff00")
        B(f"s_cselect_b64 vcc, 0, {-1 if OPT['local'] else 0}")
        B(f"v_mov_b32 v{bT}, {L_NONCE + 4}")
        B(f"v_mov_b32 v{bT + 1}, vcc_lo")
        B.ds(f"ds_write_b32 v{bT}, v{bT + 1}")
B.wait(vm=h_tok[0], lg=B.lg_n)
B("s_barrier")
stamp(B, 7)
sWOK = sT6
B(f"s_mov_b32 {sr(sWOK)}, {sr(sRO)}")
B(f"s_lshl_b32 {sr(sT3)}, {sr(sW)}, 10")
wo_next = [0]


def wo_issue(cnt):
    for _ in range(cnt):
        n = wo_next[0]
        wo_next[0] += 1
        B(f"s_add_u32 m0, {sr(sT3)}, {L_WO + n * 4096}")
        B(f"s_lshl_b32 {sr(sT0)}, {sr(sWOK)}, 15")
        dma(B, bWO, SWO, sr(sT0))
        B(f"s_add_u32 {sr(sWOK)}, {sr(sWOK)}, 1")
        B(f"s_and_b32 {sr(sWOK)}, {sr(sWOK)}, 15")


wo_issue(4)
B.wait(vm=h_tok[1])
B("s_barrier")
wo_issue(6)
B.wait(vm=h_tok[3])
B("s_barrier")
wo_issue(6)
B(f"s_add_u32 m0, {sr(sXM)}, {L_HST}")
B(f"s_lshl_b32 {sr(sT0)}, {sr(sJ)}, 7")
dma(B, bX0, SX, sr(sT0), 0)
dma(B, bX1, SX, sr(sT0), 1024)
B(f"s_mul_i32 {sr(sT0)}, {sr(sJ)}, 352")
B(f"s_mul_i32 {sr(sT1)}, {sr(sW)}, 96")
B(f"s_add_u32 {sr(sT0)}, {sr(sT0)}, {sr(sT1)}")
B(f"v_and_b32 v{bT}, 15, v0")
B(f"v_lshlrev_b32 v{bT}, 1, v{bT}")
for n in range(3):
    t = B.vm(f"buffer_load_ushort v{bB1 + n}, v{bT}, {srd(SB1)}, {sr(sT0)} offen offset:{32 * n}")
if OPT["pretouch"]:
    B(f"v_and_b32 v{bT + 1}, 15, v0")
    B(f"v_lshlrev_b32 v{bT + 1}, 7, v{bT + 1}")
    B(f"v_bfe_u32 v{bT + 2}, v0, 4, 1")
    B(f"v_lshl_add_u32 v{bT + 1}, v{bT + 2}, 16, v{bT + 1}")
    B(f"s_lshl_b32 {sr(sT0)}, {sr(sW)}, 14")
    B(f"s_lshl_b32 {sr(sT1)}, {sr(sJ)}, 11")
    B(f"s_add_u32 {sr(sT0)}, {sr(sT0)}, {sr(sT1)}")
    B(f"s_add_u32 {sr(sT0)}, {sr(sT0)}, {WO_}")
    B(f"v_add_u32 v{bT + 1}, {sr(sT0)}, v{bT + 1}")
    B(f"s_lshl_b32 {sr(sT0)}, {sr(sW)}, 10")
    B(f"s_lshl_b32 {sr(sT1)}, {sr(sJ)}, 7")
    B(f"s_add_u32 {sr(sT0)}, {sr(sT0)}, {sr(sT1)}")
    B(f"s_add_u32 {sr(sT0)}, {sr(sT0)}, {WST}")
    B(f"v_writelane_b32 v{bT + 1}, {sr(sT0)}, 32")
    B(f"s_lshl_b32 {sr(sT0)}, {sr(sW)}, 7")
    B(f"s_add_u32 {sr(sT0)}, {sr(sT0)}, {FLX}")
    B(f"v_writelane_b32 v{bT + 1}, {sr(sT0)}, 33")
    B("s_mov_b32 exec_hi, 3")
    B.vm(f"buffer_load_dword v{bT + 2}, v{bT + 1}, {srd(SWS)}, {sr(sWSB)} offen sc1")
    B("s_mov_b32 exec_hi, -1")
B.wait(vm=t)
B("s_barrier")
stamp(B, 8)
for i in range(G2A):
    w1_issue(i * W1S)
w1_colsum(0, 5 + G1)
B.wait_vm0()
B("s_barrier")
for i in range(G2B):
    w1_issue((G2A + i) * W1S)
w1_drain(5 + G1, G2A, 0)
bHA, bCA, bIA, bSP, bSG = 1, 2, 3, 10, 11
B(f"v_lshlrev_b32 v{bHA}, 4, v0")
B(f"v_add_u32 v{bHA}, {L_WO}, v{bHA}")
B(f"v_and_b32 v{bT}, 15, v0")
B(f"v_lshlrev_b32 v{bT}, 4, v{bT}")
B(f"v_add_u32 v{bCA}, {L_C4}, v{bT}")
B(f"v_lshlrev_b32 v{bIA}, 3, v0")
B(f"v_add_u32 v{bIA}, {L_IB}, v{bIA}")
B(f"s_mul_i32 {sr(sT0)}, {sr(sJ)}, 11")
B(f"s_mul_i32 {sr(sT1)}, {sr(sW)}, 3")
B(f"s_add_u32 {sr(sT0)}, {sr(sT0)}, {sr(sT1)}")
B(f"s_lshl_b32 {sr(sT0)}, {sr(sT0)}, 10")
B(f"s_add_u32 {sr(sT0)}, {sr(sT0)}, {WH1}")
B(f"v_lshrrev_b32 v{bT + 1}, 4, v0")
B(f"v_lshl_add_u32 v{bT + 2}, v{bT + 1}, 9, v{bT}")
B(f"v_add_u32 v{bSP}, {sr(sT0)}, v{bT + 2}")
B(f"v_lshrrev_b32 v{bT + 2}, 5, v0")
B(f"v_lshl_add_u32 v{bT + 2}, v{bT + 2}, 9, v{bT}")
B(f"v_and_b32 v{bT + 1}, 1, v{bT + 1}")
B(f"v_lshl_add_u32 v{bT + 2}, v{bT + 1}, 3, v{bT + 2}")
B(f"s_add_u32 {sr(sT0)}, {sr(sT0)}, 2048")
B(f"s_cmp_eq_u32 {sr(sW)}, 3")
B(f"s_cselect_b32 {sr(sT0)}, {hx(OOB)}, {sr(sT0)}")
B(f"v_add_u32 v{bSG}, {sr(sT0)}, v{bT + 2}")
B.wait_lg0()
w1_colsum(5 + G1, G2A)
B.wait_vm0()
B("s_barrier")
stamp(B, 9)
w1_drain(5 + G1 + G2A, G2B, G2A * W1S)
B(f"v_lshrrev_b32 v{bT}, 4, v0")
B(f"v_cmp_eq_u32 {sr(sM0, 2)}, 0, v{bT}")
B(f"v_cmp_eq_u32 {sr(sM1, 2)}, 1, v{bT}")
B.wait_lg0()
w1_colsum(5 + G1 + G2A, G2B)
bIN = 4
for n in range(3):
    cs = bCS + 4 * n
    B(f"v_cvt_pk_bf16_f32 v{bT}, v{cs}, 0")
    B(f"v_lshlrev_b32 v{bT + 1}, 16, v{bT}")
    B(f"v_sub_f32 v{bT + 1}, v{cs}, v{bT + 1}")
    B(f"v_cvt_pk_bf16_f32 v{bT + 1}, v{cs}, v{bT + 1}")
    B(f"v_lshl_or_b32 v{bT + 2}, v{bB1 + n}, 16, v{bB1 + n}")
    B(f"v_cndmask_b32 v{bT + 1}, 0, v{bT + 1}, {sr(sM1, 2)}")
    B(f"v_cndmask_b32 v{bIN + 2 * n}, v{bT + 1}, v{bT + 2}, {sr(sM0, 2)}")
    B(f"v_cndmask_b32 v{bIN + 2 * n + 1}, 0, v{bT}, {sr(sM1, 2)}")
B("s_setprio 2")
B("s_barrier")
stamp(B, 10)
bHF = 12
bAC = 24
bC4 = 48
bIB = 52
bG = 54
sH1 = sT3


def gelu_ops(t):
    ac = bAC + 12 * (t & 1)
    ops = []
    for p in range(6):
        a0, a1 = ac + 2 * p, ac + 2 * p + 1
        g0, g1 = bG + 2 * (p & 1), bG + 2 * (p & 1) + 1
        ops += [f"v_mul_f32 v{g0}, v{a0}, v{a0}", f"v_mul_f32 v{g1}, v{a1}, v{a1}",
                f"v_fma_f32 v{g0}, v{g0}, v{bC4 + 1}, v{bC4}", f"v_fma_f32 v{g1}, v{g1}, v{bC4 + 1}, v{bC4}",
                f"v_mul_f32 v{g0}, v{g0}, v{a0}", f"v_mul_f32 v{g1}, v{g1}, v{a1}",
                f"v_exp_f32 v{g0}, v{g0}", f"v_exp_f32 v{g1}, v{g1}",
                f"v_fma_f32 v{g0}, v{g0}, v{bC4 + 2}, v{bC4 + 2}", f"v_fma_f32 v{g1}, v{g1}, v{bC4 + 2}, v{bC4 + 2}",
                f"v_rcp_f32 v{g0}, v{g0}", f"v_rcp_f32 v{g1}, v{g1}",
                f"v_mul_f32 v{g0}, v{g0}, v{a0}", f"v_mul_f32 v{g1}, v{g1}, v{a1}",
                f"v_cvt_pk_bf16_f32 v{ac + p if p < 4 else ac + 4 + p}, v{g0}, v{g1}"]
        if p == 3:
            ops.append(("st", f"buffer_store_dwordx4 {vr(ac, 4)}, v{bSP}, {srd(SWS)}, {sr(sH1)} offen offset:{(t & 1) * 256}"))
        if p == 5:
            ops.append(("st", f"buffer_store_dwordx2 {vr(ac + 8, 2)}, v{bSG}, {srd(SWS)}, {sr(sH1)} offen offset:{(t & 1) * 256}"))
    return ops


def emit_g(op):
    if isinstance(op, tuple):
        pub(B, [op[1]])
    else:
        B(op)


def cost(op):
    if isinstance(op, tuple):
        return 8
    return 8 if op.startswith(("v_exp", "v_rcp")) else 4


B(f"s_mov_b32 {sr(sH1)}, {sr(sWSB)}")
hf_tok = {}
NF = 64


def hf_read(q):
    if q < NF:
        hf_tok[q] = B.ds(f"ds_read_b128 {vr(bHF + 4 * (q % 3), 4)}, v{bHA} offset:{q * 1024}")


hf_read(0)
hf_read(1)
for t in range(4):
    ac = bAC + 12 * (t & 1)
    g = gelu_ops(t - 1) if t else []
    tot = sum(cost(o) for o in g)
    done = 0
    gi = 0
    if t:
        c4t = B.ds(f"ds_read_b128 {vr(bC4, 4)}, v{bCA} offset:{(t - 1) * 256}")
    if t == 3:
        B(f"s_add_u32 {sr(sH1)}, {sr(sWSB)}, {H1H}")
    nm = 0
    for i in range(16):
        q = 16 * t + i
        if q == 13:
            B.wait_lg0()
            B("s_barrier")
        B.wait(lg=hf_tok[q])
        for n in range(3):
            mf16(B, ac + 4 * n, bW1 + 12 * i + 4 * n, bHF + 4 * (q % 3), "0" if i == 0 else None)
            nm += 1
            if n == 0:
                hf_read(q + 2)
                if i == 14:
                    ibt = B.ds(f"ds_read_b64 {vr(bIB, 2)}, v{bIA} offset:{t * 512}")
            if nm >= 5 and g:
                if gi == 0:
                    B.wait(lg=c4t)
                while gi < len(g) and done < tot * (nm - 4) / 42.0:
                    emit_g(g[gi])
                    done += cost(g[gi])
                    gi += 1
    while gi < len(g):
        emit_g(g[gi])
        gi += 1
    B.wait(lg=ibt)
    for n in range(3):
        B(f"v_mfma_f32_16x16x16_bf16 {vr(ac + 4 * n, 4)}, {vr(bIN + 2 * n, 2)}, {vr(bIB, 2)}, {vr(ac + 4 * n, 4)}")
c4t = B.ds(f"ds_read_b128 {vr(bC4, 4)}, v{bCA} offset:{3 * 256}")
B.wait(lg=c4t)
for o in gelu_ops(3):
    emit_g(o)
stamp(B, 11)
B(f"s_lshl2_add_u32 {sr(sT0)}, {sr(sJ)}, {sr(sW)}")
B(f"s_lshl2_add_u32 {sr(sT0)}, {sr(sT0)}, {sr(sWSB)}")
B(f"v_mov_b32 v{bG}, {FLD}")
B(f"v_mov_b32 v{bG + 1}, {sr(sNONCE)}")
B("s_mov_b64 exec, 1")
B.wait_vm0()
pub(B, [f"buffer_store_dword v{bG + 1}, v{bG}, {srd(SWS)}, {sr(sT0)} offen"])
B("s_mov_b64 exec, -1")
B("s_setprio 0")
stamp(B, 12)
fOA, fPA, fHA, fB2, fH, fP = 1, 2, 4, 8, 16, 32
B(f"v_and_b32 v{bT}, 7, v0")
B(f"v_lshrrev_b32 v{bT + 1}, 3, v0")
B(f"v_lshlrev_b32 v{bT + 2}, 4, v{bT}")
B(f"s_lshl_b32 {sr(sT0)}, {sr(sJ)}, 7")
tb2 = B.vm(f"buffer_load_dwordx4 {vr(fH, 4)}, v{bT + 2}, {srd(SB2)}, {sr(sT0)} offen")
B(f"s_lshl_b32 {sr(sT1)}, {sr(sRB)}, 16")
B(f"s_add_u32 {sr(sT0)}, {sr(sT0)}, {sr(sT1)}")
B(f"s_lshl_b32 {sr(sT1)}, {sr(sW)}, 13")
B(f"s_add_u32 {sr(sT0)}, {sr(sT0)}, {sr(sT1)}")
B(f"v_lshl_add_u32 v{fOA}, v{bT + 1}, 10, v{bT + 2}")
B(f"v_add_u32 v{fOA}, {sr(sT0)}, v{fOA}")
B(f"v_lshlrev_b32 v{bT + 3}, 1, v{bT}")
B(f"v_xor_b32 v{bT + 3}, v{bT + 3}, v{bT + 1}")
B(f"v_lshlrev_b32 v{bT + 3}, 4, v{bT + 3}")
B(f"v_lshl_add_u32 v{bT + 3}, v{bT + 1}, 8, v{bT + 3}")
B(f"s_lshl_b32 {sr(sT1)}, {sr(sW)}, 11")
B(f"v_add_u32 v{fPA}, {sr(sT1)}, v{bT + 3}")
B(f"v_xor_b32 v{fPA + 1}, 16, v{fPA}")
B(f"s_lshl_b32 {sr(sT1)}, {sr(sW)}, 3")
B(f"v_add_u32 v{bT + 3}, {sr(sT1)}, v{bT + 1}")
B(f"v_bfe_u32 v{bT + 4}, v{bT + 3}, 1, 3")
B(f"v_xor_b32 v{bT + 4}, v{bT + 4}, v{bT}")
B(f"v_lshlrev_b32 v{bT + 4}, 4, v{bT + 4}")
B(f"v_lshl_add_u32 v{bT + 4}, v{bT + 3}, 7, v{bT + 4}")
B(f"v_add_u32 v{fHA}, {L_HST}, v{bT + 4}")
B.wait(vm=tb2)
for i in range(4):
    B(f"v_lshlrev_b32 v{fB2 + 2 * i}, 16, v{fH + i}")
    B(f"v_and_b32 v{fB2 + 2 * i + 1}, 0xffff0000, v{fH + i}")
for half in range(2):
    th = B.ds(f"ds_read_b128 {vr(fH + 8, 4)}, v{fHA} offset:{half * 4096}")
    B.wait(lg=th)
    for i in range(4):
        B(f"v_lshlrev_b32 v{fH + 2 * i}, 16, v{fH + 8 + i}")
        B(f"v_and_b32 v{fH + 2 * i + 1}, 0xffff0000, v{fH + 8 + i}")
    for i in range(4):
        B(f"v_pk_add_f32 {vr(fH + 2 * i, 2)}, {vr(fH + 2 * i, 2)}, {vr(fB2 + 2 * i, 2)}")
    B("s_barrier")
    tks = []
    for p in range(4):
        for e in range(2):
            base = p * W2W + half * 8192
            if base >= 65536:
                if e == 0:
                    B(f"v_add_u32 v{fPA + 4}, {base}, v{fPA}")
                    B(f"v_add_u32 v{fPA + 5}, {base}, v{fPA + 1}")
                tks.append(B.ds(f"ds_read_b128 {vr(fP + 8 * p + 4 * e, 4)}, v{fPA + 4 + e}"))
            else:
                tks.append(B.ds(f"ds_read_b128 {vr(fP + 8 * p + 4 * e, 4)}, v{fPA + e} offset:{base}"))
    for p in range(4):
        B.wait(lg=tks[2 * p + 1])
        for i in range(8):
            B(f"v_add_f32 v{fH + i}, v{fH + i}, v{fP + 8 * p + i}")
    for i in range(4):
        B(f"v_cvt_pk_bf16_f32 v{fH + 12 + i}, v{fH + 2 * i}, v{fH + 2 * i + 1}")
    if half:
        B(f"s_mov_b32 {sr(sT0)}, 32768")
    B.vm(f"buffer_store_dwordx4 {vr(fH + 12, 4)}, v{fOA}, {srd(SOUT)}, {sr(sT0) if half else 0} offen")
stamp(B, 13)
dump_stamps(B, 0)
B("s_endpgm")

A = Stream()
A("L_teamA:")
A("s_setprio 1")
aXA, aWA = 1, 5
aT = 8
aQ, aK, aV, aCQ, aCK, aCV, aONE = 16, 32, 48, 64, 68, 72, 76
aXF = (80, 108)
aWF = (96, 124)
aCL, aCU = 136, 152
if OPT["codepf"]:
    A(f"s_getpc_b64 {sr(sM0, 2)}")
    A("L_pc:")
    A(f"s_sub_u32 {sr(sM0)}, {sr(sM0)}, L_pc-{NAME}")
    A(f"s_subb_u32 {sr(sM0 + 1)}, {sr(sM0 + 1)}, 0")
    A(f"s_mov_b32 {sr(sM0 + 2)}, L_end-{NAME}")
    A(f"s_mov_b32 {sr(sM0 + 3)}, 0x20000")
    A(f"s_lshr_b32 {sr(sT0)}, s2, 3")
    A(f"s_lshl2_add_u32 {sr(sT0)}, {sr(sT0)}, {sr(sW)}")
    A(f"s_lshl_b32 {sr(sT0)}, {sr(sT0)}, 7")
    A(f"v_lshlrev_b32 v{aT}, 14, v0")
    A("s_mov_b64 exec, 7")
    A.vm(f"buffer_load_dword v{aT + 1}, v{aT}, {srd(sM0)}, {sr(sT0)} offen")
    A("s_mov_b64 exec, -1")
A(f"v_and_b32 v{aT}, 15, v0")
A(f"v_lshrrev_b32 v{aT + 2}, 4, v0")
A(f"v_lshrrev_b32 v{aT + 3}, 1, v{aT}")
A(f"v_xor_b32 v{aT + 3}, v{aT + 3}, v{aT + 2}")
A(f"v_lshlrev_b32 v{aT + 3}, 4, v{aT + 3}")
A(f"v_lshl_add_u32 v{aXA}, v{aT}, 7, v{aT + 3}")
A(f"v_xor_b32 v{aXA + 1}, 64, v{aXA}")
A(f"v_add_u32 v{aXA + 2}, 0x10000, v{aXA}")
A(f"v_add_u32 v{aXA + 3}, 0x10000, v{aXA + 1}")
A(f"v_bfe_u32 v{aT + 3}, v0, 3, 2")
A(f"v_xor_b32 v{aT + 3}, {sr(sW)}, v{aT + 3}")
A(f"v_lshlrev_b32 v{aT + 3}, 5, v{aT + 3}")
A(f"v_and_b32 v{aT + 4}, 3, v0")
A(f"v_lshl_add_u32 v{aT + 3}, v{aT + 4}, 3, v{aT + 3}")
A(f"v_bfe_u32 v{aT + 4}, v0, 2, 2")
A(f"v_lshl_add_u32 v{aT + 3}, v{aT + 4}, 7, v{aT + 3}")
A(f"v_mul_u32_u24 v{aT + 4}, 3072, v{aT + 2}")
A(f"v_add_u32 v{aWA}, v{aT + 3}, v{aT + 4}")
A(f"v_add_u32 v{aWA + 1}, 0x10000, v{aWA}")
for i in range(4):
    A(f"v_mov_b32 v{aONE + i}, 0x3f803f80")
A("s_waitcnt lgkmcnt(0)")
if OPT["warm"]:
    A(f"s_lshl2_add_u32 {sr(sT0)}, s2, {sr(sW)}")
    A(f"s_mul_i32 {sr(sT1)}, {sr(sT0)}, {11 * 128}")
    A(f"s_lshl_b32 {sr(sT0)}, {sr(sT0)}, 9")
    A(f"v_lshlrev_b32 v{aT + 4}, 7, v0")
    A("s_mov_b64 exec, 0x7ff")
    A.vm(f"buffer_load_dword v{aT + 5}, v{aT + 4}, {srd(SW1)}, {sr(sT1)} offen")
    A.vm(f"buffer_load_dword v{aT + 6}, v{aT + 4}, {srd(SW2)}, {sr(sT1)} offen")
    A("s_mov_b64 exec, 0xf")
    A.vm(f"buffer_load_dword v{aT + 7}, v{aT + 4}, {srd(SWO)}, {sr(sT0)} offen")
    A("s_mov_b64 exec, -1")
nl = lab("nolead")
A(f"s_or_b32 {sr(sT0)}, s2, {sr(sW)}")
A(f"s_cbranch_scc1 {nl}")
A(f"v_mov_b32 v{aQ}, {WEPOCH}")
A("s_mov_b64 exec, 1")
A.raw(f"buffer_load_dword v{aQ + 2}, v{aQ}, {srd(SWS)}, 0 offen sc1")
A(f"s_mov_b32 {sr(sT0)}, 1664525")
A(f"v_mov_b32 v{aQ + 1}, 0")
A(f"v_mov_b32 v{aQ + 3}, 1")
A("s_waitcnt vmcnt(0)")
A(f"v_mul_lo_u32 v{aQ + 2}, v{aQ + 2}, {sr(sT0)}")
A(f"v_add_u32 v{aQ + 2}, 1013904223, v{aQ + 2}")
A.raw(f"buffer_store_dwordx2 {vr(aQ + 2, 2)}, v{aQ + 1}, {srd(SDBG)}, 0 offen sc1")
A.raw(f"buffer_store_dword v{aQ + 2}, v{aQ}, {srd(SWS)}, 0 offen sc1")
A("s_mov_b64 exec, -1")
A(f"{nl}:")
A(f"v_lshrrev_b32 v{aT + 3}, 5, v0")
A(f"v_lshlrev_b32 v{aT + 3}, 2, v{aT + 3}")
A(f"v_and_b32 v{aT + 4}, 31, v0")
A(f"v_sub_u32 v{aT + 3}, v{aT + 4}, v{aT + 3}")
A(f"v_mov_b32 v{aT + 4}, {hx(f2u(-1e30))}")
for i in range(16):
    m = 8 * (i >> 2) + (i & 3)
    pr = (sM0, sM1)[i & 1]
    A(f"v_cmp_le_i32 {sr(pr, 2)}, {m}, v{aT + 3}")
    A(f"v_cndmask_b32 v{aCL + i}, v{aT + 4}, 0, {sr(pr, 2)}")
    A(f"v_cndmask_b32 v{aCU + i}, 0, v{aT + 4}, {sr(pr, 2)}")
stamp(A, 1)

rd = {}


def s1_reads(n):
    s, t = n >> 1, n & 1
    sl = s % 3
    hi = 1 if sl == 2 else 0
    base = (sl & 1) * SLOT
    xf, wf = aXF[n & 1], aWF[n & 1]
    X = lambda q: (("x", q), f"ds_read_b128 {vr(xf + 4 * q, 4)}, v{aXA + t + 2 * hi} offset:{base + q * 2048}")
    W = lambda m, h: (("w", m), f"ds_read_b64_tr_b16 {vr(wf + 4 * m + 2 * h, 2)}, v{aWA + hi} offset:{base + 8192 + t * 12288 + m * 1024 + h * 512}")
    return [W(1, 0), W(1, 1), X(0), W(2, 0), W(2, 1), X(1), W(0, 0), W(0, 1), X(2), X(3)]


def s1_rd(n, item):
    rd[(n,) + item[0]] = A.ds(item[1])


A("s_barrier")
stamp(A, 2)
for it in s1_reads(0):
    s1_rd(0, it)
order = [("c", 1), (1, 0), ("c", 2), (2, 0), (1, 1), (2, 1), ("c", 0), (0, 0), (0, 1), (1, 2), (2, 2), (0, 2), (1, 3), (2, 3), (0, 3)]
aNP = 7
for n in range(16):
    xf, wf = aXF[n & 1], aWF[n & 1]
    z = "0" if n == 0 else None
    nxt = s1_reads(n + 1) if n < 15 else []
    for k, (m, q) in enumerate(order):
        if k == 6 and n < 15:
            A.wait_lg0()
            A("s_barrier")
            if n == 10:
                A(f"v_mov_b32 v{aNP}, 0")
                tnp = A.vm(f"buffer_load_dwordx2 {vr(aT, 2)}, v{aNP}, {srd(SDBG)}, 0 offen sc1")
        if m == "c":
            A.wait(lg=rd[(n, "w", q)])
            if q == 2:
                mf16(A, aCV, aONE, wf + 8, z)
            else:
                mf16(A, (aCQ, aCK)[q], wf + 4 * q, aONE, z)
        else:
            A.wait(lg=max(rd[(n, "w", m)], rd[(n, "x", q)]))
            if m == 2:
                mf16(A, aV + 4 * q, xf + 4 * q, wf + 8, z)
            else:
                mf16(A, (aQ, aK)[m] + 4 * q, wf + 4 * m, xf + 4 * q, z)
        if k >= 6 and nxt:
            for _ in range(2 if k == 6 else 1):
                if nxt:
                    s1_rd(n + 1, nxt.pop(0))
stamp(A, 3)
lp, dn = lab("np"), lab("npd")
A(f"s_mov_b32 {sr(sCNT)}, 0")
A(f"{lp}:")
A.wait_vm0()
A(f"v_readfirstlane_b32 {sr(sT0)}, v{aT + 1}")
A(f"v_readfirstlane_b32 {sr(sNONCE)}, v{aT}")
A(f"s_cmp_lg_u32 {sr(sT0)}, 0")
A(f"s_cbranch_scc0 {lp}x")
A(f"{dn}:")
tail += [f"{lp}x:", f"    s_add_u32 {sr(sCNT)}, {sr(sCNT)}, 1", f"    s_cmp_gt_u32 {sr(sCNT)}, {TIMEOUT}", f"    s_cbranch_scc1 {dn}",
         f"    buffer_load_dwordx2 {vr(aT, 2)}, v{aNP}, {srd(SDBG)}, 0 offen sc1", f"    s_branch {lp}"]
A(f"v_mov_b32 v{aT + 2}, {L_NONCE}")
A.ds(f"ds_write_b32 v{aT + 2}, v{aT}")
aSA, aSB, aKS, aZ = 1, 2, 3, 7
A(f"v_and_b32 v{aSA}, 15, v0")
A(f"v_lshlrev_b32 v{aSA}, 2, v{aSA}")
A(f"v_add_u32 v{aSA}, {L_RS}, v{aSA}")
A(f"v_and_b32 v{aSB}, 48, v0")
A(f"v_add_u32 v{aSB}, {L_RS}, v{aSB}")
A(f"v_lshlrev_b32 v{aKS}, 4, v0")
sKV, sFA = sT4, sT5
A(f"s_lshl2_add_u32 {sr(sT0)}, {sr(sJ)}, {sr(sW)}")
A(f"s_lshl_b32 {sr(sKV)}, {sr(sT0)}, 12")
A(f"s_add_u32 {sr(sKV)}, {sr(sKV)}, {sr(sWSB)}")
A(f"s_lshl_b32 {sr(sFA)}, {sr(sT0)}, 7")
A(f"s_add_u32 {sr(sFA)}, {sr(sFA)}, {sr(sWSB)}")
A(f"s_add_u32 {sr(sFA)}, {sr(sFA)}, {FLA}")
A.wait_lg0()
A("s_barrier")
stamp(A, 4)
eL, eRS, eNM = 80, 88, 104
aQF, aKF, aVC = 176, 184, 192
tl = []
for t in range(4):
    tl.append(A.ds(f"ds_read2_b32 {vr(eL + 2 * t, 2)}, v{aSA} offset0:{16 * t} offset1:{64 + 16 * t}"))
tv = []
for t in range(4):
    A.ds(f"ds_read_b128 {vr(eRS + 4 * t, 4)}, v{aSB} offset:{64 * t}")
    tv.append(A.ds(f"ds_read_b128 {vr(eNM + 4 * t, 4)}, v{aSB} offset:{256 + 64 * t}"))


def qk_epi(acc, cs, dst):
    for t in range(4):
        for p in range(2):
            A(f"v_pk_mul_f32 {vr(aT + 4, 2)}, {vr(cs + 2 * p, 2)}, {vr(eL + 2 * t, 2)} op_sel:[0,1] op_sel_hi:[1,1]")
            A(f"v_pk_fma_f32 {vr(acc + 4 * t + 2 * p, 2)}, {vr(acc + 4 * t + 2 * p, 2)}, {vr(eL + 2 * t, 2)}, {vr(aT + 4, 2)} op_sel:[0,0,0] op_sel_hi:[1,0,1]")
    for t in range(4):
        for p in range(2):
            A(f"v_cvt_pk_bf16_f32 v{dst + 2 * t + p}, v{acc + 4 * t + 2 * p}, v{acc + 4 * t + 2 * p + 1}")
    for b in range(2):
        for p in range(2):
            A(f"v_permlane16_swap_b32 v{dst + 4 * b + p}, v{dst + 4 * b + 2 + p}")


A.wait(lg=tl[3])
qk_epi(aK, aCK, aKF)
for b in range(2):
    A.vm(f"buffer_store_dwordx4 {vr(aKF + 4 * b, 4)}, v{aKS}, {srd(SWS)}, {sr(sKV)} offen offset:{2048 * b} sc1")
A.wait(lg=tv[3])
for t in range(4):
    for p in range(2):
        A(f"v_pk_mul_f32 {vr(aT + 4, 2)}, {vr(eNM + 4 * t + 2 * p, 2)}, {vr(aCV, 2)}")
        A(f"v_pk_fma_f32 {vr(aV + 4 * t + 2 * p, 2)}, {vr(aV + 4 * t + 2 * p, 2)}, {vr(eRS + 4 * t + 2 * p, 2)}, {vr(aT + 4, 2)}")
for t in range(4):
    for p in range(2):
        A(f"v_cvt_pk_bf16_f32 v{aVC + 2 * t + p}, v{aV + 4 * t + 2 * p}, v{aV + 4 * t + 2 * p + 1}")
for b in range(2):
    for p in range(2):
        A(f"v_permlane32_swap_b32 v{aVC + 4 * b + p}, v{aVC + 4 * b + 2 + p}")
for b in range(2):
    A.vm(f"buffer_store_dwordx4 {vr(aVC + 4 * b, 4)}, v{aKS}, {srd(SWS)}, {sr(sKV)} offen offset:{2048 * b + 1024} sc1")
stamp(A, 5)
A(f"s_getreg_b32 {sr(sXCC)}, hwreg(HW_REG_XCC_ID, 0, 4)")
A(f"s_and_b32 {sr(sT0)}, {sr(sNONCE)}, -16")
A(f"s_or_b32 {sr(sT0)}, {sr(sT0)}, {sr(sXCC)}")
A(f"v_mov_b32 v{aT + 2}, {sr(sT0)}")
A(f"s_lshl2_add_u32 {sr(sT1)}, {sr(sJ)}, {sr(sWSB)}")
A(f"s_add_u32 {sr(sT1)}, {sr(sT1)}, {FLX}")
A(f"s_cmp_eq_u32 {sr(sW)}, 0")
A(f"s_cselect_b32 {sr(sT1)}, {sr(sT1)}, {hx(OOB)}")
A("s_mov_b64 exec, 1")
A.vm(f"buffer_store_dword v{aT + 2}, v{aZ}, {srd(SWS)}, {sr(sT1)} offen sc1")
A("s_mov_b64 exec, -1")
aKA, aVA, aOVA = 1, 4, 8
A(f"s_mul_i32 {sr(sT0)}, {sr(sW)}, 2112")
A(f"s_add_u32 {sr(sT0)}, {sr(sT0)}, {L_OWNV}")
A(f"v_add_u32 v{aT + 2}, {sr(sT0)}, v{aKS}")
for b in range(2):
    A.ds(f"ds_write_b128 v{aT + 2}, {vr(aVC + 4 * b, 4)} offset:{1056 * b}")
A(f"v_mov_b32 v{aT + 2}, {sr(sT0)}")
for b in range(2):
    A.ds(f"ds_write_b128 v{aT + 2}, {vr(aONE, 4)} offset:{1056 * b + 1024}")
A(f"v_and_b32 v{aT + 3}, 15, v0")
A(f"v_lshrrev_b32 v{aT + 4}, 5, v0")
A(f"v_lshl_add_u32 v{aT + 3}, v{aT + 4}, 4, v{aT + 3}")
A(f"v_lshlrev_b32 v{aT + 3}, 4, v{aT + 3}")
A(f"v_add_u32 v{aT + 4}, 512, v{aT + 3}")
A(f"s_mov_b32 {sr(sM0)}, 0xffff")
A(f"s_mov_b32 {sr(sM0 + 1)}, 0xffff")
A(f"v_mov_b32 v{aT + 5}, 1024")
A(f"v_cndmask_b32 v{aT + 3}, v{aT + 5}, v{aT + 3}, {sr(sM0, 2)}")
A(f"v_cndmask_b32 v{aT + 4}, v{aT + 5}, v{aT + 4}, {sr(sM0, 2)}")
A(f"s_mul_i32 {sr(sT1)}, {sr(sW)}, {HHEAD}")
A(f"v_add_u32 v{aKA}, {sr(sT1)}, v{aKS}")
A(f"s_add_u32 {sr(sT1)}, {sr(sT1)}, 1024")
A(f"v_add_u32 v{aVA}, {sr(sT1)}, v{aT + 3}")
A(f"v_add_u32 v{aVA + 1}, {sr(sT1)}, v{aT + 4}")
A(f"v_add_u32 v{aOVA}, {sr(sT0)}, v{aT + 3}")
A(f"v_add_u32 v{aOVA + 1}, {sr(sT0)}, v{aT + 4}")
aKB = (200, 204, 208)
aVB = (212, 220, 228)
vt = {}
for b in range(2):
    for p in range(2):
        vt[b] = A.ds(f"ds_read_b128 {vr(aVB[b] + 4 * p, 4)}, v{aOVA + p} offset:{1056 * b}")
QS = 0.25 * 1.4426950408889634
for t in range(4):
    A(f"v_mul_f32 v{eL + 2 * t}, {hx(f2u(QS))}, v{eL + 2 * t}")
    A(f"v_mul_f32 v{eL + 2 * t + 1}, {hx(f2u(QS))}, v{eL + 2 * t + 1}")
qk_epi(aQ, aCQ, aQF)

aS = (16, 32)
aO = (48, 64)
aP = 80


def run_tiles(tiles, hooks, first_o):
    def s_mfma(i):
        qb, kreg, vreg, c, kt, vtk = tiles[i]
        if kt:
            A.wait(lg=kt())
        mf32(A, aS[i & 1], kreg, aQF + 4 * qb, c)

    def pv(i, p):
        qb, kreg, vreg, c, kt, vtk = tiles[i]
        if vtk:
            A.wait(lg=vtk())
        z = None
        if p == 0 and qb in first_o:
            first_o.discard(qb)
            z = "0"
        mf32(A, aO[qb], vreg + 4 * p, aP + 4 * p, z)

    s_mfma(0)
    for i in range(len(tiles)):
        s = aS[i & 1]
        e = lambda k: A(f"v_exp_f32 v{s + k}, v{s + k}")
        c = lambda k: A(f"v_cvt_pk_bf16_f32 v{aP + k}, v{s + 2 * k}, v{s + 2 * k + 1}")
        if i + 1 < len(tiles):
            s_mfma(i + 1)
        e(0); e(1); e(2); c(0); e(3); e(4); c(1)
        if i:
            pv(i - 1, 1)
        if i in hooks:
            hooks[i]()
        e(5); e(6); c(2); e(7); e(8); c(3); e(9); e(10)
        pv(i, 0)
        c(4); e(11); e(12); c(5); e(13); e(14); e(15); c(6); c(7)
    pv(len(tiles) - 1, 1)


first_o = {0, 1}
CL, CU = vr(aCL, 16), vr(aCU, 16)


def flag_a():
    A(f"v_mov_b32 v{aT + 2}, {sr(sNONCE)}")
    A("s_mov_b64 exec, 1")
    A.wait_vm0()
    A.vm(f"buffer_store_dword v{aT + 2}, v{aZ}, {srd(SWS)}, {sr(sFA)} offen sc1")
    A("s_mov_b64 exec, -1")


run_tiles([(0, aKF, aVB[0], CL, None, lambda: vt[0]), (1, aKF, aVB[0], "0", None, None), (1, aKF + 4, aVB[1], CL, None, lambda: vt[1])],
          {}, first_o)
flag_a()
stamp(A, 6)
A("s_barrier")
A("s_barrier")
A("s_barrier")
A(f"v_mov_b32 v{aT + 2}, {L_NONCE + 4}")
A("s_barrier")
stamp(A, 7)
kt, vt2 = {}, {}


def kv_read(b):
    i = (7 - b) % 3
    kt[b] = A.ds(f"ds_read_b128 {vr(aKB[i], 4)}, v{aKA} offset:{L_HALO + b * HBLK}")
    for p in range(2):
        vt2[b] = A.ds(f"ds_read_b128 {vr(aVB[i] + 4 * p, 4)}, v{aVA + p} offset:{L_HALO + b * HBLK}")


kv_read(7)
tloc = A.ds(f"ds_read_b32 v{aT + 3}, v{aT + 2}")
tiles, hooks = [], {}
for b in range(7, -1, -1):
    i = (7 - b) % 3
    for qb in range(2):
        if b == 0 and qb == 1:
            continue
        c = CU if b == qb else "0"
        tiles.append((qb, aKB[i], aVB[i], c, (lambda b=b: kt[b]), (lambda b=b: vt2[b])))
    if b - 1 >= 0:
        def hk(b=b):
            if b - 1 in (5, 3):
                A("s_barrier")
            kv_read(b - 1)
        hooks[len(tiles) - 2] = hk
run_tiles(tiles, hooks, first_o)
stamp(A, 8)
aOS = 1
A(f"v_cmp_ne_u32 vcc, 0, v{aT + 3}")
A(f"v_and_b32 v{aT + 4}, 15, v0")
A(f"v_lshlrev_b32 v{aT + 4}, 4, v{aT + 4}")
A(f"v_bfe_u32 v{aT + 5}, v0, 4, 1")
A(f"v_lshl_add_u32 v{aT + 4}, v{aT + 5}, 14, v{aT + 4}")
A(f"v_lshrrev_b32 v{aT + 5}, 5, v0")
A(f"v_lshl_add_u32 v{aOS}, v{aT + 5}, 8, v{aT + 4}")
A(f"s_lshl2_add_u32 {sr(sT0)}, {sr(sJ)}, {sr(sW)}")
A(f"s_lshl_b32 {sr(sT0)}, {sr(sT0)}, 9")
A(f"s_add_u32 {sr(sT0)}, {sr(sT0)}, {sr(sWSB)}")
A(f"s_add_u32 {sr(sT6)}, {sr(sT0)}, {WO_}")
A(f"s_add_u32 {sr(sT7)}, {sr(sT6)}, 32768")
A(f"v_subrev_u32 v{aT + 4}, {hx(f2u(2.0 ** -40))}, v{aO[0] + 8}")
A(f"v_subrev_u32 v{aT + 5}, {hx(f2u(2.0 ** -40))}, v{aO[1] + 8}")
A(f"v_max_u32 v{aT + 4}, v{aT + 4}, v{aT + 5}")
A(f"s_mov_b32 {sr(sT0)}, {0 if OPT['force_fb'] else hx(f2u(2.0 ** 40) - f2u(2.0 ** -40))}")
A(f"v_cmp_le_u32 {sr(sM0, 2)}, {sr(sT0)}, v{aT + 4}")
A(f"s_cmp_lg_u64 {sr(sM0, 2)}, 0")
A("s_cbranch_scc1 L_fallback")
A("L_fb_done:")
aOP = 16
for qb in range(2):
    o = aO[qb]
    A(f"v_rcp_f32 v{o + 8}, v{o + 8}")
for qb in range(2):
    o = aO[qb]
    for p in range(4):
        A(f"v_pk_mul_f32 {vr(o + 2 * p, 2)}, {vr(o + 2 * p, 2)}, {vr(o + 8, 2)} op_sel:[0,0] op_sel_hi:[1,0]")
    for p in range(4):
        A(f"v_cvt_pk_bf16_f32 v{aOP + 4 * qb + p}, v{o + 2 * p}, v{o + 2 * p + 1}")
pub(A, [f"buffer_store_dwordx4 {vr(aOP + 4 * qb, 4)}, v{aOS}, {srd(SWS)}, {sr((sT6, sT7)[qb])} offen" for qb in range(2)])

F = Stream()
fK, fV, fM, fQ, fO, fA0, fA1 = 200, 212, 88, 92, 96, 90, 91
sQB, sKB, sKO = sT0, sT1, sT2
F("L_fallback:")
F.fence()
F(f"v_and_b32 v{fA0}, 15, v0")
F(f"v_lshrrev_b32 v{fA1}, 5, v0")
F(f"v_lshl_add_u32 v{fA0}, v{fA1}, 4, v{fA0}")
F(f"v_lshlrev_b32 v{fA0}, 4, v{fA0}")
F(f"s_mov_b32 {sr(sQB)}, 0")
F("L_fb_q:")
for i in range(4):
    F(f"v_mov_b32 v{fQ + i}, v{aQF + i}")
    F(f"v_mov_b32 v{aQF + i}, v{aQF + 4 + i}")
F(f"v_mov_b32 v{fM}, {hx(f2u(-3e38))}")
for i in range(16):
    F(f"v_mov_b32 v{fO + i}, 0")
for i in range(8):
    F(f"v_mov_b32 v{fV + i}, 0x3f803f80")
for ps in range(2):
    F(f"s_lshl1_add_u32 {sr(sT3)}, {sr(sRB)}, {sr(sQB)}")
    F(f"s_min_u32 {sr(sKB)}, {sr(sT3)}, 8")
    F(f"L_fb_k{ps}:")
    F(f"s_sub_u32 {sr(sKO)}, {sr(sT3)}, {sr(sKB)}")
    F(f"s_and_b32 {sr(sCNT)}, {sr(sKO)}, 1")
    F(f"s_lshl_b32 {sr(sCNT)}, {sr(sCNT)}, 11")
    F(f"s_lshr_b32 {sr(sKO)}, {sr(sKO)}, 1")
    F(f"s_sub_u32 {sr(sKO)}, {sr(sRB)}, {sr(sKO)}")
    F(f"s_lshl_b32 {sr(sKO)}, {sr(sKO)}, 19")
    F(f"s_sub_u32 {sr(sKO)}, {sr(sKV)}, {sr(sKO)}")
    F(f"s_add_u32 {sr(sKO)}, {sr(sKO)}, {sr(sCNT)}")
    F.raw(f"buffer_load_dwordx4 {vr(fK, 4)}, v{aKS}, {srd(SWS)}, {sr(sKO)} offen sc1")
    if ps:
        F("s_mov_b32 exec_lo, 0xffff")
        F("s_mov_b32 exec_hi, 0xffff")
        F.raw(f"buffer_load_dwordx4 {vr(fV, 4)}, v{fA0}, {srd(SWS)}, {sr(sKO)} offen offset:1024 sc1")
        F.raw(f"buffer_load_dwordx4 {vr(fV + 4, 4)}, v{fA0}, {srd(SWS)}, {sr(sKO)} offen offset:1536 sc1")
        F("s_mov_b64 exec, -1")
    F("s_waitcnt vmcnt(0)")
    F(f"s_cmp_eq_u32 {sr(sKB)}, 8")
    F(f"s_cbranch_scc1 L_fb_u{ps}")
    F(f"s_cmp_eq_u32 {sr(sKB)}, 0")
    F(f"s_cbranch_scc1 L_fb_l{ps}")
    mf32(F, aS[0], fK, fQ, "0")
    F(f"s_branch L_fb_s{ps}")
    F(f"L_fb_u{ps}:")
    mf32(F, aS[0], fK, fQ, CU)
    F(f"s_branch L_fb_s{ps}")
    F(f"L_fb_l{ps}:")
    mf32(F, aS[0], fK, fQ, CL)
    F(f"L_fb_s{ps}:")
    F.fence()
    s = aS[0]
    if ps == 0:
        for i in range(8):
            F(f"v_max3_f32 v{fM}, v{fM}, v{s + 2 * i}, v{s + 2 * i + 1}")
    else:
        for i in range(16):
            F(f"v_sub_f32 v{s + i}, v{s + i}, v{fM}")
        for i in range(16):
            F(f"v_exp_f32 v{s + i}, v{s + i}")
        for i in range(8):
            F(f"v_cvt_pk_bf16_f32 v{aP + i}, v{s + 2 * i}, v{s + 2 * i + 1}")
        mf32(F, fO, fV, aP)
        mf32(F, fO, fV + 4, aP + 4)
        F.fence()
    F(f"s_sub_u32 {sr(sKB)}, {sr(sKB)}, 1")
    F(f"s_cbranch_scc0 L_fb_k{ps}")
    if ps == 0:
        F(f"v_mov_b32 v{fM + 1}, v{fM}")
        F(f"v_permlane32_swap_b32 v{fM}, v{fM + 1}")
        F(f"v_max_f32 v{fM}, v{fM}, v{fM + 1}")
for i in range(9):
    F(f"v_mov_b32 v{aO[0] + i}, v{aO[1] + i}")
    F(f"v_mov_b32 v{aO[1] + i}, v{fO + i}")
F(f"s_add_u32 {sr(sQB)}, {sr(sQB)}, 1")
F(f"s_cmp_lt_u32 {sr(sQB)}, 2")
F("s_cbranch_scc1 L_fb_q")
F("s_branch L_fb_done")

cWA, cXA, cFA = 4, 8, 12
cAC, cOF, cWO = 24, 40, 80
NOF, NWO = 10, 11
A(f"v_bfe_u32 v{aT + 5}, v0, 2, 3")
A(f"v_lshrrev_b32 v{aT + 6}, 5, v0")
A(f"v_lshl_add_u32 v{aT + 5}, v{aT + 6}, 4, v{aT + 5}")
A(f"v_lshlrev_b32 v{aT + 5}, 7, v{aT + 5}")
A(f"v_bfe_u32 v{aT + 6}, v0, 3, 2")
A(f"v_lshl_add_u32 v{aT + 5}, v{aT + 6}, 5, v{aT + 5}")
A(f"v_and_b32 v{aT + 6}, 3, v0")
A(f"v_lshl_add_u32 v{aT + 5}, v{aT + 6}, 3, v{aT + 5}")
A(f"v_add_u32 v{cWA}, {L_WO}, v{aT + 5}")
for a in range(1, 4):
    A(f"v_xor_b32 v{cWA + a}, {32 * a}, v{cWA}")
A("s_barrier")
stamp(A, 9)
wo_tok = {}


def wo_read(n):
    r = cWO + 16 * (n % NWO)
    for a in range(4):
        for h in range(2):
            wo_tok[n] = A.ds(f"ds_read_b64_tr_b16 {vr(r + 4 * a + 2 * h, 2)}, v{cWA + a} offset:{n * 4096 + h * 1024}")


for n in range(5):
    wo_read(n)
cZ = 2
A(f"v_mov_b32 v{cZ}, {FLB}")
A(f"v_mov_b32 v{aT + 5}, {sr(sNONCE)}")
sFO = sT5
A(f"s_lshl2_add_u32 {sr(sFO)}, {sr(sJ)}, {sr(sW)}")
A(f"s_lshl2_add_u32 {sr(sFO)}, {sr(sFO)}, {sr(sWSB)}")
A("s_mov_b64 exec, 1")
A.wait_vm0()
pub(A, [f"buffer_store_dword v{aT + 5}, v{cZ}, {srd(SWS)}, {sr(sFO)} offen"])
A("s_mov_b64 exec, -1")
A(f"v_and_b32 v{aT + 5}, 15, v0")
A(f"v_lshrrev_b32 v{aT + 6}, 1, v{aT + 5}")
A(f"v_lshrrev_b32 v{aT + 7}, 5, v0")
A(f"v_xor_b32 v{aT + 6}, v{aT + 6}, v{aT + 7}")
A(f"v_lshlrev_b32 v{aT + 6}, 4, v{aT + 6}")
A(f"v_lshl_add_u32 v{aT + 5}, v{aT + 5}, 7, v{aT + 6}")
A(f"v_bfe_u32 v{aT + 6}, v0, 4, 1")
A(f"v_lshl_add_u32 v{aT + 5}, v{aT + 6}, 3, v{aT + 5}")
A(f"s_lshl_b32 {sr(sT0)}, {sr(sW)}, 11")
A(f"s_add_u32 {sr(sT0)}, {sr(sT0)}, {L_HST}")
A(f"v_add_u32 v{cXA}, {sr(sT0)}, v{aT + 5}")
for a in range(1, 4):
    A(f"v_xor_b32 v{cXA + a}, {32 * a}, v{cXA}")
for a in range(4):
    tx = A.ds(f"ds_read_b64 {vr(cOF + 2 * a, 2)}, v{cXA + a}")
A(f"v_and_b32 v{cFA}, 31, v0")
A(f"s_add_u32 {sr(sT0)}, {sr(sWSB)}, {FLB}")
A(f"v_lshl_add_u32 v{cFA}, v{cFA}, 2, {sr(sT0)}")
A.wait(lg=tx)
for i in range(8):
    A(f"v_lshlrev_b32 v{cAC + 2 * i}, 16, v{cOF + i}")
    A(f"v_and_b32 v{cAC + 2 * i + 1}, 0xffff0000, v{cOF + i}")
for n in range(5, NWO):
    wo_read(n)
sOB, sOK = sT6, sT7
A(f"s_lshl_b32 {sr(sOB)}, {sr(sW)}, 14")
A(f"s_add_u32 {sr(sOB)}, {sr(sOB)}, {sr(sWSB)}")
A(f"s_add_u32 {sr(sOB)}, {sr(sOB)}, {WO_}")
A(f"s_lshl_b32 {sr(sOK)}, {sr(sRO)}, 10")
poll(A, cFA, None, 13, 14)
stamp(A, 10)
of_tok = {}


def of_load(n):
    if n % 4 == 0:
        A(f"s_add_u32 {sr(sT0)}, {sr(sOB)}, {sr(sOK)}")
        A(f"s_add_u32 {sr(sOK)}, {sr(sOK)}, 4096")
        A(f"s_and_b32 {sr(sOK)}, {sr(sOK)}, 0x3fff")
    of_tok[n] = A.vm(f"buffer_load_dwordx4 {vr(cOF + 4 * (n % NOF), 4)}, v{aKS}, {srd(SWS)}, {sr(sT0)} offen offset:{(n % 4) * 1024} sc1")


for n in range(NOF):
    of_load(n)
for n in range(16):
    A.wait(vm=of_tok[n], lg=wo_tok[n])
    for a in range(4):
        mf16(A, cAC + 4 * a, cWO + 16 * (n % NWO) + 4 * a, cOF + 4 * (n % NOF))
    if n + NOF < 16:
        of_load(n + NOF)
        if n + NOF == 15:
            A("s_barrier")
    if n + NWO < 16:
        wo_read(n + NWO)
cHP = 16
A(f"s_lshl_b32 {sr(sT0)}, {sr(sJ)}, 11")
A(f"s_add_u32 {sr(sT0)}, {sr(sT0)}, {sr(sOB)}")
A(f"s_add_u32 {sr(sT0)}, {sr(sT0)}, {WH - WO_}")
A(f"s_lshl_b32 {sr(sT1)}, {sr(sW)}, 10")
A(f"s_add_u32 {sr(sT1)}, {sr(sT1)}, {sr(sWSB)}")
A(f"s_add_u32 {sr(sT1)}, {sr(sT1)}, {WST}")
A(f"s_lshl_b32 {sr(sT2)}, {sr(sJ)}, 7")
A(f"s_add_u32 {sr(sT2)}, {sr(sT2)}, {sr(sT1)}")
for i in range(8):
    A(f"v_cvt_pk_bf16_f32 v{cHP + i}, v{cAC + 2 * i}, v{cAC + 2 * i + 1}")
pub(A, [f"buffer_store_dwordx4 {vr(cHP + 4 * s, 4)}, v{aKS}, {srd(SWS)}, {sr(sT0)} offen offset:{1024 * s}" for s in range(2)])
cS, cQ = 40, 42
A(f"v_pk_add_f32 {vr(cS, 2)}, {vr(cAC, 2)}, {vr(cAC + 2, 2)}")
A(f"v_pk_mul_f32 {vr(cQ, 2)}, {vr(cAC, 2)}, {vr(cAC, 2)}")
for i in range(1, 8):
    if i > 1:
        A(f"v_pk_add_f32 {vr(cS, 2)}, {vr(cS, 2)}, {vr(cAC + 2 * i, 2)}")
    A(f"v_pk_fma_f32 {vr(cQ, 2)}, {vr(cAC + 2 * i, 2)}, {vr(cAC + 2 * i, 2)}, {vr(cQ, 2)}")
A(f"v_add_f32 v{cS}, v{cS}, v{cS + 1}")
A(f"v_add_f32 v{cQ}, v{cQ}, v{cQ + 1}")
A(f"v_lshlrev_b32 v{13}, 2, v0")
A(f"v_permlane16_swap_b32 v{cS}, v{cQ}")
A(f"v_add_f32 v{cS}, v{cS}, v{cQ}")
A(f"v_mov_b32 v{cQ}, v{cS}")
A(f"v_permlane32_swap_b32 v{cS}, v{cQ}")
A(f"v_add_f32 v{cS}, v{cS}, v{cQ}")
A("s_mov_b32 exec_hi, 0")
pub(A, [f"buffer_store_dword v{cS}, v13, {srd(SWS)}, {sr(sT2)} offen"])
A("s_mov_b32 exec_hi, -1")
stamp(A, 11)
for a in range(4):
    A.ds(f"ds_write_b64 v{cXA + a}, {vr(cHP + 2 * a, 2)}")
A(f"v_mov_b32 v14, {sr(sNONCE)}")
A(f"v_add_u32 v{cFA}, {FLC - FLB}, v{cFA}")
A("s_mov_b64 exec, 1")
A.wait_vm0()
pub(A, [f"buffer_store_dword v14, v{cZ}, {srd(SWS)}, {sr(sFO)} offen offset:{FLC - FLB}"])
A("s_mov_b64 exec, -1")
dP, dG, dR = 4, 5, 6
A(f"v_lshrrev_b32 v{8}, 5, v0")
A(f"v_bfe_u32 v{9}, v0, 3, 2")
A(f"v_and_b32 v{10}, 7, v0")
A(f"v_bfe_u32 v{11}, v0, 4, 1")
A(f"v_lshlrev_b32 v{11}, 2, v{11}")
A(f"v_xor_b32 v{10}, v{10}, v{11}")
A(f"v_lshlrev_b32 v{10}, 4, v{10}")
A(f"v_lshl_add_u32 v{10}, v{9}, 10, v{10}")
A(f"s_mul_i32 {sr(sT0)}, {sr(sW)}, {352 * 1024}")
A(f"s_lshl_b32 {sr(sT2)}, {sr(sJ)}, 7")
A(f"s_add_u32 {sr(sT0)}, {sr(sT0)}, {sr(sT2)}")
A(f"v_add_u32 v{10}, {sr(sT0)}, v{10}")
A(f"v_lshl_add_u32 v{dP}, v{8}, 14, v{10}")
A(f"v_lshl_add_u32 v{dG}, v{8}, 12, v{10}")
A(f"s_mul_i32 {sr(sLB)}, {sr(sW)}, {W2W}")
A(f"v_bfe_u32 v{9}, v0, 2, 2")
A(f"v_lshl_add_u32 v{8}, v{8}, 3, v{9}")
A(f"v_lshlrev_b32 v{8}, 7, v{8}")
A(f"v_bfe_u32 v{9}, v0, 3, 1")
A(f"v_lshl_add_u32 v{8}, v{9}, 6, v{8}")
A(f"v_bfe_u32 v{9}, v0, 4, 1")
A(f"v_lshl_add_u32 v{8}, v{9}, 5, v{8}")
A(f"v_and_b32 v{9}, 3, v0")
A(f"v_lshl_add_u32 v{8}, v{9}, 3, v{8}")
A(f"v_add_u32 v{dR}, {sr(sLB)}, v{8}")
A(f"v_xor_b32 v{dR + 1}, 64, v{dR}")
A(f"s_lshl2_add_u32 {sr(sT0)}, {sr(sW)}, {sr(sRO)}")
A(f"s_and_b32 {sr(sT0)}, {sr(sT0)}, 15")
A(f"s_lshl_b32 {sr(sT0)}, {sr(sT0)}, 10")
A(f"s_add_u32 {sr(sT0)}, {sr(sT0)}, {sr(sWSB)}")
A(f"s_add_u32 {sr(sT6)}, {sr(sT0)}, {WH}")
A(f"s_lshl_b32 {sr(sT7)}, {sr(sW)}, 12")
A.wait_lg0()
poll(A, cFA, None, 14, 15)
A("s_barrier")
stamp(A, 12)
A("s_setprio 0")
ht = []
for t in range(4):
    A(f"s_add_u32 m0, {sr(sT7)}, {L_WO + t * 16384}")
    if t:
        A(f"s_add_u32 {sr(sT6)}, {sr(sT6)}, 16384")
    for i in range(4):
        tk = dma(A, aKS, SWS, sr(sT6), i * 1024, "sc1")
    ht.append(tk)
    if t == 0:
        for i in range(4):
            tst = A.vm(f"buffer_load_dword v{16 + i}, v13, {srd(SWS)}, {sr(sT1)} offen offset:{256 * i} sc1")
    if t == 1:
        A.wait(vm=ht[0])
        A("s_barrier")
A.wait(vm=tst)
A("v_add_f32 v16, v16, v17")
A("v_add_f32 v18, v18, v19")
A("v_add_f32 v16, v16, v18")
A("v_mov_b32 v17, v16")
A("v_permlane32_swap_b32 v16, v17")
A("v_add_f32 v16, v16, v17")
A("v_mov_b32 v17, v16")
A("v_permlane16_swap_b32 v16, v17")
C0 = -2.0 * 0.7978845608028654 * 1.4426950408889634
C1 = C0 * 0.044715
A(f"v_mul_f32 v16, {hx(f2u(-1.0 / 512))}, v16")
A(f"v_mul_f32 v17, {hx(f2u(1.0 / 512))}, v17")
A("v_fma_f32 v17, -v16, v16, v17")
A("v_max_f32 v17, 0, v17")
A(f"v_add_f32 v18, {hx(f2u(1e-5))}, v17")
A("v_rsq_f32 v18, v18")
A("v_cmp_gt_u32 s[60:61], 16, v0")
A("v_mul_f32 v17, v17, v18")
A(f"v_fmaak_f32 v17, v17, v18, {hx(f2u(1e-5))}")
A("v_rsq_f32 v17, v17")
A("v_and_b32 v24, 15, v0")
A("v_mul_f32 v17, v17, v18")
A("v_rcp_f32 v22, v17")
A(f"v_mul_f32 v20, {hx(f2u(C0))}, v17")
A("v_mul_f32 v21, v17, v17")
A("v_mul_f32 v21, v21, v17")
A(f"v_mul_f32 v21, {hx(f2u(C1))}, v21")
A("v_mov_b32 v23, 0")
A("v_cndmask_b32 v16, v16, v22, s[60:61]")
A("v_cvt_pk_bf16_f32 v17, v16, 0")
A("v_lshlrev_b32 v17, 16, v17")
A("v_sub_f32 v17, v16, v17")
A("v_cndmask_b32 v18, v16, v17, s[60:61]")
A("v_cvt_pk_bf16_f32 v18, v16, v18")
A("v_cvt_pk_bf16_f32 v19, v17, 0")
A(f"s_lshl_b32 {sr(sT0)}, {sr(sW)}, 8")
A(f"s_add_u32 {sr(sT0)}, {sr(sT0)}, {L_C4}")
A(f"v_lshl_add_u32 v24, v24, 4, {sr(sT0)}")
A(f"s_lshl_b32 {sr(sT0)}, {sr(sW)}, 9")
A(f"s_add_u32 {sr(sT0)}, {sr(sT0)}, {L_IB}")
A(f"v_lshl_add_u32 v25, v0, 3, {sr(sT0)}")
A.ds("ds_write_b64 v25, v[18:19]")
A("s_mov_b64 exec, 0xffff")
A.ds("ds_write_b128 v24, v[20:23]")
A("s_mov_b64 exec, -1")

dW2 = 80
w2_tok = {}


def w2_issue(e):
    jj, ee = divmod(e, 11)
    ww, kind = divmod(ee, 3)
    f0 = 176 * jj + 48 * ww
    for hf in range(2):
        row = f0 + (4 * (2 * kind + hf) if kind < 2 else 32 + 8 * hf)
        A(f"s_add_u32 m0, {sr(sLB)}, {(e % 10) * 2048 + hf * 1024}")
        A(f"s_mov_b32 {sr(sT0)}, {row * 1024}")
        w2_tok[e] = dma(A, dP if kind < 2 else dG, SW2, sr(sT0))


w2_rd = {}


def w2_drain(e):
    A.wait(vm=w2_tok[e])
    for ch in range(2):
        for h in range(2):
            w2_rd[e] = A.ds(f"ds_read_b64_tr_b16 {vr(dW2 + 8 * e + 4 * ch + 2 * h, 2)}, v{dR + ch} offset:{(e % 10) * 2048 + h * 512}")


for e in range(3):
    w2_issue(e)
A.wait(vm=ht[3], lg=A.lg_n)
A("s_barrier")
if OPT["pretouch"]:
    A(f"v_lshlrev_b32 v8, 7, v0")
    A(f"s_and_b32 {sr(sT0)}, {sr(sW)}, 1")
    A(f"s_mul_i32 {sr(sT0)}, {sr(sT0)}, {44 * 128}")
    A(f"s_lshr_b32 {sr(sT1)}, {sr(sW)}, 1")
    A(f"s_mul_i32 {sr(sT1)}, {sr(sT1)}, {H1H}")
    A(f"s_add_u32 {sr(sT0)}, {sr(sT0)}, {sr(sT1)}")
    A(f"s_mul_i32 {sr(sT1)}, {sr(sJ)}, {11 * 1024}")
    A(f"s_add_u32 {sr(sT0)}, {sr(sT0)}, {sr(sT1)}")
    A(f"s_add_u32 {sr(sT0)}, {sr(sT0)}, {sr(sWSB)}")
    A(f"s_add_u32 {sr(sT0)}, {sr(sT0)}, {WH1}")
    A("s_mov_b32 exec_hi, 0xfff")
    A.vm(f"buffer_load_dword v9, v8, {srd(SWS)}, {sr(sT0)} offen sc1")
    A("s_mov_b32 exec_hi, -1")
DIST = 6
for e in range(3, DIST):
    w2_issue(e)
for e in range(22):
    if e + DIST < 22:
        if e + DIST - 10 >= 0:
            A.wait(lg=w2_rd[e + DIST - 10])
        w2_issue(e + DIST)
    w2_drain(e)
stamp(A, 13)
dAC, dHF, dPW = 8, 40, 4
NHF = 10
A(f"v_and_b32 v1, 7, v0")
A(f"s_lshl_b32 {sr(sT0)}, {sr(sW)}, 5")
A(f"s_add_u32 {sr(sT0)}, {sr(sT0)}, {sr(sWSB)}")
A(f"s_add_u32 {sr(sT0)}, {sr(sT0)}, {FLD}")
A(f"v_lshl_add_u32 v2, v1, 2, {sr(sT0)}")
A.wait_lg0()
A(f"v_lshrrev_b32 v8, 5, v0")
A(f"v_xor_b32 v8, v8, v1")
A(f"v_lshlrev_b32 v8, 4, v8")
A(f"v_and_b32 v9, 31, v0")
A(f"v_lshl_add_u32 v8, v9, 8, v8")
A(f"v_add_u32 v{dPW}, {sr(sLB)}, v8")
for a in range(1, 4):
    A(f"v_xor_b32 v{dPW + a}, {32 * a}, v{dPW}")
A(f"s_mul_i32 {sr(sT6)}, {sr(sW)}, {22 * 1024}")
A(f"s_add_u32 {sr(sT6)}, {sr(sT6)}, {sr(sWSB)}")
A(f"s_add_u32 {sr(sT6)}, {sr(sT6)}, {WH1}")
poll(A, 2, None, 1, 8)
A("s_setprio 1")
stamp(A, 14)
h1_tok = {}


def h1_load(q):
    half, e = divmod(q, 22)
    if e % 4 == 0:
        A(f"s_add_u32 {sr(sT0)}, {sr(sT6)}, {half * H1H + e * 1024}")
    h1_tok[q] = A.vm(f"buffer_load_dwordx4 {vr(dHF + 4 * (q % NHF), 4)}, v{aKS}, {srd(SWS)}, {sr(sT0)} offen offset:{(e % 4) * 1024} sc1")


for q in range(NHF):
    h1_load(q)
for q in range(44):
    half, e = divmod(q, 22)
    A.wait(vm=h1_tok[q])
    for ch in range(2):
        mf32(A, dAC + 16 * ch, dW2 + 8 * e + 4 * ch, dHF + 4 * (q % NHF), "0" if e == 0 else None)
    if q + NHF < 44:
        h1_load(q + NHF)
    if e == 21:
        for ch in range(2):
            for a in range(4):
                A.ds(f"ds_write_b128 v{dPW + a}, {vr(dAC + 16 * ch + 4 * a, 4)} offset:{half * 8192 + ch * 128}")
        A.wait_lg0()
        A("s_barrier")
dump_stamps(A, 1)
A("L_exit:")
A("s_endpgm")

rep = []
body = pad_hazards(P.L + B.L, rep) + pad_hazards(A.L, rep) + pad_hazards(F.L) + tail
nb = lambda L: sum(1 for x in L if x.strip().startswith("s_barrier"))
assert nb(A.L) == nb(B.L), (nb(A.L), nb(B.L))
hdr = open("sequential_preLN__sliding_block__mixer_channel_mlp__prompt.s.ref").read().split("; Override launch")[0]
out = hdr + f"""; One persistent launch: 256 workgroups x 8 waves; generated by gen/gen.py ({' '.join(f'{k}={v}' for k, v in OPT.items())})
; @launch grid=(256,1,1) block=(512,1,1) lds={LDS_BYTES}
.amdgcn_target "amdgcn-amd-amdhsa--gfx950"
.text
.globl {NAME}
.p2align 8
.type {NAME},@function
{NAME}:
""" + "\n".join(body) + f"""
L_end:
    s_endpgm
.section .rodata,"a"
.p2align 6
.amdhsa_kernel {NAME}
  .amdhsa_next_free_vgpr 256
  .amdhsa_next_free_sgpr 102
  .amdhsa_accum_offset 256
  .amdhsa_group_segment_fixed_size 0
  .amdhsa_kernarg_size 88
  .amdhsa_user_sgpr_count 2
  .amdhsa_user_sgpr_kernarg_segment_ptr 1
  .amdhsa_system_sgpr_workgroup_id_x 1
.end_amdhsa_kernel
"""
open(sys.argv[1], "w").write(out)
tot = sum(r[0] for r in rep)
print(f"wrote {sys.argv[1]}: {len(body)} lines, barriers {nb(A.L)}, padded states {tot}", file=sys.stderr)
if "-v" in sys.argv[1]:
    pass
for r in rep:
    if r[0] >= 3:
        print("  pad", r, file=sys.stderr)
```

```python
import sys, struct
from asmlib import Stream, pad_hazards, vr, sr

NAME = "sequential_preLN__sliding_block__mixer_channel_mlp__prompt_kernel"

OPT = dict(stamps=0, warm=1, pretouch=1, local=1, g1=4, g2a=3, rotw=1, force_fb=0, codepf=1, xnt=0, diag=0, da=0, db=0, dk=1, dteam=0)
for a in sys.argv[2:]:
    k, v = a.split("=")
    assert k in OPT, k
    OPT[k] = int(v)


def f2u(x):
    return struct.unpack("<I", struct.pack("<f", x))[0]


def hx(x):
    return hex(x & 0xffffffff)


SX, SWQ, SWO, SW1, SW2, SWS, SOUT, SB1, SB2, SDBG = 4, 8, 12, 16, 20, 24, 28, 32, 36, 40
sRB, sJ, sW, sROT, sWSB, sNONCE, sXCC, sRO = 44, 45, 46, 47, 48, 49, 50, 51
sT0, sT1, sT2, sT3, sT4, sT5, sT6, sT7 = 52, 53, 54, 55, 56, 57, 58, 59
sM0, sM1, sM2, sM3 = 60, 62, 64, 66
sCNT = 68
sLB = 69
sSTAMP = 70
srd = lambda b: sr(b, 4)

RBS = 0x80000
WKV, WO_, WH, WH1, WST, WFL = 0, 0x20000, 0x30000, 0x40000, 0x6C000, 0x70000
FLA, FLX, FLB, FLC, FLD = WFL, WFL + 0x1000, WFL + 0x1080, WFL + 0x1100, WFL + 0x1180
WSTAMP = 0x78000
WEPOCH = 0x7F000
H1H = 88 * 1024
WS_BYTES = 32 * RBS
OOB = 0x4000000

LDS_BYTES = 163840
SLOT = 32768
L_G0 = 98304
L_MISC = 159744
L_RS, L_NM, L_NONCE, L_C4, L_IB = L_MISC, L_MISC + 256, L_MISC + 512, L_MISC + 1024, L_MISC + 2048
L_HALO, HBLK, HHEAD = 0, 2080, 16640
L_OWNV = 66560
L_WO = 94208
L_HST = 86016
W1S = 12288
W2W = 21504

TIMEOUT = 200000
tail = []
_lab = [0]


def lab(p):
    _lab[0] += 1
    return f"L_{p}{_lab[0]}"


def stamp(S, i):
    if OPT["stamps"]:
        S(f"s_memtime {sr(sSTAMP + 2 * i, 2)}")


def dma(S, vaddr, base, soff, off=0, fl=""):
    o = f" offset:{off}" if off else ""
    fl = f" {fl}" if fl else ""
    return S.vm(f"buffer_load_dwordx4 {vr(vaddr)}, {srd(base)}, {soff} offen{o}{fl} lds")


def pub(S, stores):
    slow, join = lab("slow"), lab("join")
    S(f"s_cbranch_vccz {slow}")
    t = None
    for st in stores:
        t = S.vm(st)
    S(f"{join}:")
    tail.append(f"{slow}:")
    for st in stores:
        tail.append("    " + st + " sc1")
    tail.append(f"    s_branch {join}")
    return t


def poll(S, vaddr, vmask, vt, vu):
    lp, dn = lab("poll"), lab("pdone")
    S(f"s_mov_b32 {sr(sCNT)}, 0")
    S(f"{lp}:")
    S.vm(f"buffer_load_dword {vr(vt)}, {vr(vaddr)}, {srd(SWS)}, 0 offen sc1")
    S(f"s_add_u32 {sr(sCNT)}, {sr(sCNT)}, 1")
    S(f"s_cmp_gt_u32 {sr(sCNT)}, {TIMEOUT}")
    S.wait_vm0()
    S(f"s_cbranch_scc1 {dn}")
    if vmask is None:
        S(f"v_cmp_ne_u32 {sr(sM0, 2)}, {sr(sNONCE)}, {vr(vt)}")
    else:
        S(f"v_xor_b32 {vr(vu)}, {sr(sNONCE)}, {vr(vt)}")
        S(f"v_and_b32 {vr(vu)}, {vr(vu)}, {vr(vmask)}")
        S(f"v_cmp_ne_u32 {sr(sM0, 2)}, 0, {vr(vu)}")
    S(f"s_cmp_lg_u64 {sr(sM0, 2)}, 0")
    S(f"s_cbranch_scc1 {lp}")
    S(f"{dn}:")


def mf16(S, d, a, b, c=None):
    S(f"v_mfma_f32_16x16x32_bf16 {vr(d, 4)}, {vr(a, 4)}, {vr(b, 4)}, {vr(d, 4) if c is None else c}")


def mf32(S, d, a, b, c=None):
    S(f"v_mfma_f32_32x32x16_bf16 {vr(d, 16)}, {vr(a, 4)}, {vr(b, 4)}, {vr(d, 16) if c is None else c}")


def diag_spin(S, team):
    if OPT["diag"] == 1 and team == 0:
        S("s_mov_b32 s52, 0")
        S("L_diag:")
        for _ in range(64):
            S("s_nop 15")
        S("s_add_u32 s52, s52, 1")
        S(f"s_cmp_lt_u32 s52, {OPT['dk']}")
        S("s_cbranch_scc1 L_diag")
    if OPT["diag"] == 2 and team == OPT["dteam"]:
        S("s_memtime s[52:53]")
        S("s_waitcnt lgkmcnt(0)")
        S(f"s_sub_u32 s54, {sr(sSTAMP + 2 * OPT['db'])}, {sr(sSTAMP + 2 * OPT['da'])}")
        S(f"s_mul_i32 s54, s54, {OPT['dk']}")
        S("L_diag:")
        S("s_memtime s[56:57]")
        S("s_waitcnt lgkmcnt(0)")
        S("s_sub_u32 s56, s56, s52")
        S("s_cmp_lt_u32 s56, s54")
        S("s_cbranch_scc1 L_diag")


def dump_stamps(S, team):
    diag_spin(S, team)
    if OPT["stamps"] != 1:
        return
    S("s_waitcnt lgkmcnt(0)")
    S(f"s_lshl_b32 {sr(sT0)}, {sr(sJ)}, 10")
    S(f"s_lshl_b32 {sr(sT1)}, {sr(sW)}, 7")
    S(f"s_add_u32 {sr(sT0)}, {sr(sT0)}, {sr(sT1)}")
    S(f"s_add_u32 {sr(sT0)}, {sr(sT0)}, {WSTAMP + team * 512}")
    S(f"s_add_u32 {sr(sT0)}, {sr(sT0)}, {sr(sWSB)}")
    S("v_mov_b32 v1, 0")
    for i in range(16):
        S(f"v_mov_b32 v2, {sr(sSTAMP + 2 * i)}")
        S.vm(f"buffer_store_dword v2, v1, {srd(SWS)}, {sr(sT0)} offen offset:{4 * i}")
    S.wait_vm0()


P = Stream()
for base, off in ((SX, 0), (SWQ, 8), (SWS, 80), (SW1, 32), (SWO, 16), (SW2, 48), (SB1, 40), (SB2, 56), (SOUT, 64), (SDBG, 72)):
    P(f"s_load_dwordx2 {sr(base, 2)}, s[0:1], {off}")
P("s_cmp_ge_u32 s2, 256")
P("s_cbranch_scc1 L_exit")
if OPT["stamps"]:
    P(f"s_memtime {sr(sSTAMP, 2)}")
    P(f"s_memrealtime {sr(sSTAMP + 30, 2)}")
P("v_lshrrev_b32 v1, 6, v0")
P("v_and_b32 v0, 63, v0")
P(f"v_readfirstlane_b32 {sr(sT0)}, v1")
for base, n in ((SX, 2097152), (SWQ, 1572864), (SWS, WS_BYTES), (SW1, 1409024), (SWO, 524288), (SW2, 1409024),
                (SB1, 2752), (SB2, 1024), (SOUT, 2097152), (SDBG, 256)):
    P(f"s_mov_b32 {sr(base + 2)}, {n}")
    P(f"s_mov_b32 {sr(base + 3)}, 0x20000")
P(f"s_and_b32 {sr(sW)}, {sr(sT0)}, 3")
P(f"s_bfe_u32 {sr(sJ)}, s2, 0x30003")
P(f"s_lshr_b32 {sr(sT1)}, s2, 6")
P(f"s_and_b32 {sr(sT2)}, s2, 7")
P(f"s_lshl2_add_u32 {sr(sRB)}, {sr(sT2)}, {sr(sT1)}")
P(f"s_lshl_b32 {sr(sWSB)}, {sr(sRB)}, 19")
P(f"s_lshl1_add_u32 {sr(sROT)}, {sr(sT1)}, {sr(sJ)}")
P(f"s_and_b32 {sr(sT2)}, {sr(sT2)}, 1")
P(f"s_add_u32 {sr(sROT)}, {sr(sROT)}, {sr(sT2)}")
P(f"s_and_b32 {sr(sROT)}, {sr(sROT)}, 7")
if OPT["rotw"]:
    P(f"s_lshl_b32 {sr(sRO)}, {sr(sT1)}, 2")
else:
    P(f"s_mov_b32 {sr(sRO)}, 0")
P(f"s_cmp_ge_u32 {sr(sT0)}, 4")
P("s_cbranch_scc1 L_teamA")

B = Stream()
bX0, bX1, bWA = 1, 2, 3
bW1A = 4
bW1R = 7
bSA = 10
bONE = 16
bSUM, bSQ = 20, 24
bXF = 28
bT = 36
bCS = 48
bB1 = 60
bW1 = 64

B(f"v_lshrrev_b32 v{bT}, 3, v0")
B(f"v_lshrrev_b32 v{bT + 1}, 4, v0")
B(f"v_and_b32 v{bT + 2}, 7, v0")
B(f"s_lshl_b32 {sr(sT0)}, {sr(sRB)}, 16")
B(f"s_lshl_b32 {sr(sT1)}, {sr(sW)}, 14")
B(f"s_add_u32 {sr(sT0)}, {sr(sT0)}, {sr(sT1)}")
B(f"v_xor_b32 v{bT + 3}, v{bT + 2}, v{bT + 1}")
B(f"v_lshlrev_b32 v{bT + 3}, 4, v{bT + 3}")
B(f"v_lshl_add_u32 v{bT + 3}, v{bT}, 10, v{bT + 3}")
B(f"v_add_u32 v{bX0}, {sr(sT0)}, v{bT + 3}")
B(f"v_xor_b32 v{bX1}, 64, v{bX0}")
B(f"v_add_u32 v{bX1}, 7168, v{bX1}")
B(f"s_and_b32 {sr(sT0)}, {sr(sW)}, 1")
B(f"s_lshl_b32 {sr(sT0)}, {sr(sT0)}, 2")
B(f"v_and_b32 v{bT + 3}, 1, v{bT + 1}")
B(f"v_lshl_or_b32 v{bT + 3}, v{bT + 3}, 1, {sr(sT0)}")
B(f"v_xor_b32 v{bT + 3}, v{bT + 3}, v{bT + 2}")
B(f"v_lshlrev_b32 v{bT + 3}, 4, v{bT + 3}")
B(f"s_mul_i32 {sr(sT0)}, {sr(sW)}, {8 * 3072}")
B(f"s_lshl_b32 {sr(sT1)}, {sr(sJ)}, 7")
B(f"s_add_u32 {sr(sT0)}, {sr(sT0)}, {sr(sT1)}")
B(f"v_mul_u32_u24 v{bT + 4}, 3072, v{bT}")
B(f"v_add3_u32 v{bWA}, v{bT + 3}, v{bT + 4}, {sr(sT0)}")
sXM, sWM, sSL = sT4, sT5, sT6
B(f"s_lshl_b32 {sr(sXM)}, {sr(sW)}, 11")
B(f"s_mul_i32 {sr(sWM)}, {sr(sW)}, 3072")
B(f"s_mov_b32 {sr(sSL)}, {sr(sROT)}")
B("s_waitcnt lgkmcnt(0)")

tok_s1 = {}


def s1_issue(s, part):
    slot = (s % 3) * SLOT
    if part == 0:
        B(f"s_add_u32 m0, {sr(sXM)}, {slot}")
        B(f"s_lshl_b32 {sr(sT0)}, {sr(sSL)}, 7")
        fl = "nt" if OPT["xnt"] else ""
        dma(B, bX0, SX, sr(sT0), 0, fl)
        dma(B, bX1, SX, sr(sT0), 1024, fl)
        B(f"s_add_u32 m0, {sr(sWM)}, {slot + 8192}")
        B(f"s_mul_i32 {sr(sT1)}, {sr(sSL)}, 196608")
    else:
        B(f"s_add_u32 m0, {sr(sWM)}, {slot + 8192 + 12288}")
        B(f"s_add_u32 {sr(sT1)}, {sr(sT1)}, 98304")
    for m in (1, 2, 0):
        t = dma(B, bWA, SWQ, sr(sT1), m * 1024)
    tok_s1[(s, part)] = t
    if part == 1:
        B(f"s_add_u32 {sr(sSL)}, {sr(sSL)}, 1")
        B(f"s_and_b32 {sr(sSL)}, {sr(sSL)}, 7")


s1_issue(0, 0)
s1_issue(0, 1)
s1_issue(1, 0)
s1_issue(1, 1)
stamp(B, 1)
B(f"s_mul_i32 {sr(sT0)}, {sr(sW)}, {8 * 2752}")
B(f"s_mul_i32 {sr(sT2)}, {sr(sJ)}, 352")
B(f"s_add_u32 {sr(sT0)}, {sr(sT0)}, {sr(sT2)}")
B(f"s_mul_i32 {sr(sT2)}, {sr(sJ)}, 22")
B(f"s_sub_u32 {sr(sT2)}, 172, {sr(sT2)}")
B(f"s_min_u32 {sr(sT2)}, {sr(sT2)}, 22")
B(f"s_mov_b32 {sr(sT3)}, 2752")
for i in range(3):
    B(f"v_add_u32 v{bT + 3}, {64 * i}, v0")
    B(f"v_mul_u32_u24 v{bT + 4}, 171, v{bT + 3}")
    B(f"v_lshrrev_b32 v{bT + 4}, 12, v{bT + 4}")
    B(f"v_mul_u32_u24 v{bT + 5}, 24, v{bT + 4}")
    B(f"v_sub_u32 v{bT + 5}, v{bT + 3}, v{bT + 5}")
    B(f"v_and_b32 v{bT + 6}, 6, v{bT + 4}")
    B(f"v_xor_b32 v{bT + 5}, v{bT + 5}, v{bT + 6}")
    B(f"v_cmp_gt_u32 {sr(sM0, 2)}, {sr(sT2)}, v{bT + 5}")
    B(f"v_lshlrev_b32 v{bT + 5}, 4, v{bT + 5}")
    B(f"v_mad_u32_u24 v{bT + 5}, v{bT + 4}, {sr(sT3)}, v{bT + 5}")
    B(f"v_add_u32 v{bT + 5}, {sr(sT0)}, v{bT + 5}")
    if i:
        B(f"v_subrev_u32 v{bT + 5}, {1024 * i}, v{bT + 5}")
    B(f"v_mov_b32 v{bT + 6}, {hx(OOB)}")
    B(f"v_cndmask_b32 v{bW1A + i}, v{bT + 6}, v{bT + 5}, {sr(sM0, 2)}")
B(f"v_lshrrev_b32 v{bT + 3}, 2, v0")
B(f"v_bfe_u32 v{bT + 4}, v0, 3, 2")
B(f"v_and_b32 v{bT + 5}, 3, v0")
B(f"v_lshlrev_b32 v{bT + 5}, 3, v{bT + 5}")
B(f"v_mul_u32_u24 v{bT + 3}, 384, v{bT + 3}")
B(f"v_add_u32 v{bT + 3}, v{bT + 3}, v{bT + 5}")
B(f"v_add_u32 v{bT + 3}, {L_G0}, v{bT + 3}")
B(f"s_mul_i32 {sr(sT0)}, {sr(sW)}, 3")
for n in range(3):
    B(f"v_xor_b32 v{bT + 5}, {sr(sT0)}, v{bT + 4}")
    B(f"v_lshl_add_u32 v{bW1R + n}, v{bT + 5}, 5, v{bT + 3}")
    B(f"s_add_u32 {sr(sT0)}, {sr(sT0)}, 1")
B(f"v_and_b32 v{bT + 3}, 15, v0")
B(f"v_lshrrev_b32 v{bT + 4}, 1, v{bT + 3}")
B(f"v_xor_b32 v{bT + 4}, v{bT + 4}, v{bT + 1}")
B(f"v_lshlrev_b32 v{bT + 4}, 4, v{bT + 4}")
B(f"v_lshl_add_u32 v{bT + 4}, v{bT + 3}, 7, v{bT + 4}")
B(f"v_add_u32 v{bSA}, {sr(sXM)}, v{bT + 4}")
B(f"v_xor_b32 v{bSA + 1}, 64, v{bSA}")
B(f"v_add_u32 v{bSA + 2}, 0x10000, v{bSA}")
B(f"v_add_u32 v{bSA + 3}, 0x10000, v{bSA + 1}")
for i in range(4):
    B(f"v_mov_b32 v{bONE + i}, 0x3f803f80")
sW1K = sT7
B(f"s_mov_b32 {sr(sW1K)}, {sr(sRO)}")

w1_tok = {}
w1_next = [0]


def w1_issue(lds):
    i = w1_next[0]
    w1_next[0] += 1
    B(f"s_add_u32 m0, {sr(sWM)}, {lds}")
    B(f"s_mul_i32 {sr(sT0)}, {sr(sW1K)}, 88064")
    for n in range(3):
        t = dma(B, bW1A + n, SW1, sr(sT0), n * 1024)
    B(f"s_add_u32 {sr(sW1K)}, {sr(sW1K)}, 1")
    B(f"s_and_b32 {sr(sW1K)}, {sr(sW1K)}, 15")
    w1_tok[i] = t
    return t


w1_base = [L_G0]


def w1_drain(first, count, lds):
    if lds != w1_base[0]:
        for n in range(3):
            B(f"v_add_u32 v{bW1R + n}, {hx(lds - w1_base[0])}, v{bW1R + n}")
        w1_base[0] = lds
    for i in range(count):
        for n in range(3):
            for h in range(2):
                B.ds(f"ds_read_b64_tr_b16 {vr(bW1 + 12 * (first + i) + 4 * n + 2 * h, 2)}, v{bW1R + n} offset:{i * W1S + h * 6144}")


def w1_colsum(first, count):
    for i in range(first, first + count):
        for n in range(3):
            mf16(B, bCS + 4 * n, bONE, bW1 + 12 * i + 4 * n, "0" if i == 0 else None)


for n in range(16):
    s, t = n >> 1, n & 1
    B.wait(vm=tok_s1[(s, t)], lg=B.lg_n)
    B("s_barrier")
    if n == 0:
        stamp(B, 2)
    sl = s % 3
    tk = B.ds(f"ds_read_b128 {vr(bXF + 4 * t, 4)}, v{bSA + t + (2 if sl == 2 else 0)} offset:{(sl & 1) * SLOT}")
    if s + 2 < 8:
        s1_issue(s + 2, t)
    elif n < 15:
        w1_issue(L_G0 + w1_next[0] * W1S)
    B.wait(lg=tk)
    mf16(B, bSUM, bONE, bXF + 4 * t, "0" if n == 0 else None)
    mf16(B, bSQ, bXF + 4 * t, bXF + 4 * t, "0" if n == 0 else None)
stamp(B, 3)
B(f"v_and_b32 v{bT}, 3, v0")
B(f"v_cmp_eq_u32 {sr(sM0, 2)}, 1, v{bT}")
B(f"v_cmp_eq_u32 {sr(sM1, 2)}, 2, v{bT}")
B(f"v_cmp_eq_u32 {sr(sM2, 2)}, 3, v{bT}")
B(f"v_and_b32 v{bT + 2}, 15, v0")
B(f"s_lshl_b32 {sr(sT0)}, {sr(sW)}, 6")
B(f"s_add_u32 {sr(sT0)}, {sr(sT0)}, {L_RS}")
B(f"v_lshl_add_u32 v{bT + 2}, v{bT + 2}, 2, {sr(sT0)}")
B(f"v_mul_f32 v{bT + 3}, {hx(f2u(-1.0 / 512))}, v{bSUM}")
B(f"v_cndmask_b32 v{bT + 1}, v{bSQ}, v{bSQ + 1}, {sr(sM0, 2)}")
B(f"v_cndmask_b32 v{bT + 1}, v{bT + 1}, v{bSQ + 2}, {sr(sM1, 2)}")
B(f"v_cndmask_b32 v{bT + 1}, v{bT + 1}, v{bSQ + 3}, {sr(sM2, 2)}")
B(f"v_mul_f32 v{bT + 1}, {hx(f2u(1.0 / 512))}, v{bT + 1}")
B(f"v_fma_f32 v{bT + 1}, -v{bT + 3}, v{bT + 3}, v{bT + 1}")
B(f"v_max_f32 v{bT + 1}, 0, v{bT + 1}")
B(f"v_add_f32 v{bT + 1}, {hx(f2u(1e-5))}, v{bT + 1}")
B(f"v_rsq_f32 v{bT + 1}, v{bT + 1}")
B("s_mov_b32 exec_lo, 0x00f0000f")
B("s_mov_b32 exec_hi, 0xf0000f00")
B(f"v_mul_f32 v{bT + 3}, v{bT + 3}, v{bT + 1}")
B.ds(f"ds_write2st64_b32 v{bT + 2}, v{bT + 1}, v{bT + 3} offset0:0 offset1:1")
B("s_mov_b64 exec, -1")
B.wait_lg0()
B("s_barrier")
stamp(B, 4)
B(f"v_mov_b32 v{bT}, {L_NONCE}")
tk = B.ds(f"ds_read_b32 v{bT + 1}, v{bT}")
while w1_next[0] < 5:
    w1_issue(L_G0 + w1_next[0] * W1S)
G1 = OPT["g1"]
G2A = OPT["g2a"]
G2B = 16 - 5 - G1 - G2A
assert 0 <= G2B <= 5 and G2A + G2B <= 7 and G1 <= 5
w1_issue(L_HALO)
B.wait(lg=tk)
B(f"v_readfirstlane_b32 {sr(sNONCE)}, v{bT + 1}")
bPA, bPM = 28, 29
B(f"s_getreg_b32 {sr(sXCC)}, hwreg(HW_REG_XCC_ID, 0, 4)")
B(f"s_lshl2_add_u32 {sr(sT0)}, {sr(sJ)}, {sr(sW)}")
B(f"s_lshl_b32 {sr(sT0)}, {sr(sT0)}, 7")
B(f"s_add_u32 {sr(sT0)}, {sr(sT0)}, {sr(sWSB)}")
B(f"s_add_u32 {sr(sT0)}, {sr(sT0)}, {hx(FLA - RBS)}")
B(f"v_lshlrev_b32 v{bT}, 19, v0")
B(f"v_sub_u32 v{bT}, {sr(sT0)}, v{bT}")
B(f"v_and_b32 v{bT + 1}, 7, v0")
B(f"s_add_u32 {sr(sT1)}, {sr(sWSB)}, {FLX}")
B(f"v_lshl_add_u32 v{bT + 1}, v{bT + 1}, 2, {sr(sT1)}")
B(f"s_min_u32 {sr(sT2)}, {sr(sRB)}, 4")
B(f"v_cmp_gt_u32 {sr(sM0, 2)}, {sr(sT2)}, v0")
B(f"v_mov_b32 v{bT + 2}, -16")
B(f"v_cndmask_b32 v{bPA}, v{bT + 1}, v{bT}, {sr(sM0, 2)}")
B(f"v_cndmask_b32 v{bPM}, v{bT + 2}, -1, {sr(sM0, 2)}")
for i in range(1, 2 if G1 > 1 else 1):
    w1_issue(L_HALO + i * W1S)
B.wait(vm=w1_tok[4])
B("s_barrier")
w1_drain(0, 5, L_G0)
for i in range(2, G1):
    w1_issue(L_HALO + i * W1S)
bWO, bHL = 30, 31
B(f"v_lshrrev_b32 v{bT}, 3, v0")
B(f"v_and_b32 v{bT + 1}, 6, v{bT}")
B(f"v_and_b32 v{bT + 2}, 7, v0")
B(f"v_xor_b32 v{bT + 1}, v{bT + 1}, v{bT + 2}")
B(f"v_lshlrev_b32 v{bT + 1}, 4, v{bT + 1}")
B(f"v_lshl_add_u32 v{bT + 1}, v{bT}, 10, v{bT + 1}")
B(f"s_lshl_b32 {sr(sT0)}, {sr(sW)}, 13")
B(f"s_lshl_b32 {sr(sT1)}, {sr(sJ)}, 7")
B(f"s_add_u32 {sr(sT0)}, {sr(sT0)}, {sr(sT1)}")
B(f"v_add_u32 v{bWO}, {sr(sT0)}, v{bT + 1}")
B(f"s_lshl2_add_u32 {sr(sT0)}, {sr(sJ)}, {sr(sW)}")
B(f"s_lshl_b32 {sr(sT0)}, {sr(sT0)}, 12")
B(f"v_lshl_add_u32 v{bHL}, v0, 4, {sr(sT0)}")
B.wait(vm=B.vm_n, lg=B.lg_n)
B("s_barrier")
stamp(B, 5)
w1_drain(5, G1, L_HALO)
B(f"v_lshrrev_b32 v{bT}, 1, v0")
B(f"v_add_u32 v{bT}, {sr(sRB)}, v{bT}")
B(f"v_cmp_le_u32 {sr(sM0, 2)}, 4, v{bT}")
B(f"s_mul_i32 {sr(sLB)}, {sr(sW)}, {HHEAD}")
B(f"v_mul_u32_u24 v{bT + 1}, {HBLK}, v0")
B(f"v_add_u32 v{bT + 1}, {sr(sLB)}, v{bT + 1}")
for i in range(4):
    B(f"v_cndmask_b32 v{bT + 4 + i}, 0, v{bONE}, {sr(sM0, 2)}")
B.wait_lg0()
B("s_barrier")
B("s_mov_b64 exec, 0xff")
B.ds(f"ds_write_b128 v{bT + 1}, {vr(bT + 4, 4)} offset:{L_HALO + 2048}")
B("s_mov_b64 exec, -1")
poll(B, bPA, bPM, bT + 2, bT + 3)
stamp(B, 6)
h_tok = []
for i in range(1, 5):
    B(f"s_sub_u32 {sr(sT0)}, {sr(sWSB)}, {i * RBS}")
    B(f"s_cselect_b32 {sr(sT0)}, {hx(OOB)}, {sr(sT0)}")
    for blk in (1, 0):
        B(f"s_add_u32 m0, {sr(sLB)}, {L_HALO + (8 - 2 * i + blk) * HBLK}")
        B(f"s_add_u32 {sr(sT1)}, {sr(sT0)}, {blk * 2048}")
        dma(B, bHL, SWS, sr(sT1), 0, "sc1")
        t = dma(B, bHL, SWS, sr(sT1), 1024, "sc1")
    h_tok.append(t)
    if i == 1:
        B(f"v_and_b32 v{bT + 2}, 15, v{bT + 2}")
        B(f"v_cmp_ne_u32 {sr(sM0, 2)}, {sr(sXCC)}, v{bT + 2}")
        B(f"s_and_b32 {sr(sT2)}, {sr(sM0)}, 0xff00")
        B(f"s_cselect_b64 vcc, 0, {-1 if OPT['local'] else 0}")
        B(f"v_mov_b32 v{bT}, {L_NONCE + 4}")
        B(f"v_mov_b32 v{bT + 1}, vcc_lo")
        B.ds(f"ds_write_b32 v{bT}, v{bT + 1}")
B.wait(vm=h_tok[0], lg=B.lg_n)
B("s_barrier")
stamp(B, 7)
sWOK = sT6
B(f"s_mov_b32 {sr(sWOK)}, {sr(sRO)}")
B(f"s_lshl_b32 {sr(sT3)}, {sr(sW)}, 10")
wo_next = [0]


def wo_issue(cnt):
    for _ in range(cnt):
        n = wo_next[0]
        wo_next[0] += 1
        B(f"s_add_u32 m0, {sr(sT3)}, {L_WO + n * 4096}")
        B(f"s_lshl_b32 {sr(sT0)}, {sr(sWOK)}, 15")
        dma(B, bWO, SWO, sr(sT0))
        B(f"s_add_u32 {sr(sWOK)}, {sr(sWOK)}, 1")
        B(f"s_and_b32 {sr(sWOK)}, {sr(sWOK)}, 15")


wo_issue(4)
B.wait(vm=h_tok[1])
B("s_barrier")
wo_issue(6)
B.wait(vm=h_tok[3])
B("s_barrier")
wo_issue(6)
B(f"s_add_u32 m0, {sr(sXM)}, {L_HST}")
B(f"s_lshl_b32 {sr(sT0)}, {sr(sJ)}, 7")
dma(B, bX0, SX, sr(sT0), 0)
dma(B, bX1, SX, sr(sT0), 1024)
B(f"s_mul_i32 {sr(sT0)}, {sr(sJ)}, 352")
B(f"s_mul_i32 {sr(sT1)}, {sr(sW)}, 96")
B(f"s_add_u32 {sr(sT0)}, {sr(sT0)}, {sr(sT1)}")
B(f"v_and_b32 v{bT}, 15, v0")
B(f"v_lshlrev_b32 v{bT}, 1, v{bT}")
for n in range(3):
    t = B.vm(f"buffer_load_ushort v{bB1 + n}, v{bT}, {srd(SB1)}, {sr(sT0)} offen offset:{32 * n}")
if OPT["pretouch"]:
    B(f"v_and_b32 v{bT + 1}, 15, v0")
    B(f"v_lshlrev_b32 v{bT + 1}, 7, v{bT + 1}")
    B(f"v_bfe_u32 v{bT + 2}, v0, 4, 1")
    B(f"v_lshl_add_u32 v{bT + 1}, v{bT + 2}, 16, v{bT + 1}")
    B(f"s_lshl_b32 {sr(sT0)}, {sr(sW)}, 14")
    B(f"s_lshl_b32 {sr(sT1)}, {sr(sJ)}, 11")
    B(f"s_add_u32 {sr(sT0)}, {sr(sT0)}, {sr(sT1)}")
    B(f"s_add_u32 {sr(sT0)}, {sr(sT0)}, {WO_}")
    B(f"v_add_u32 v{bT + 1}, {sr(sT0)}, v{bT + 1}")
    B(f"s_lshl_b32 {sr(sT0)}, {sr(sW)}, 10")
    B(f"s_lshl_b32 {sr(sT1)}, {sr(sJ)}, 7")
    B(f"s_add_u32 {sr(sT0)}, {sr(sT0)}, {sr(sT1)}")
    B(f"s_add_u32 {sr(sT0)}, {sr(sT0)}, {WST}")
    B(f"v_writelane_b32 v{bT + 1}, {sr(sT0)}, 32")
    B(f"s_lshl_b32 {sr(sT0)}, {sr(sW)}, 7")
    B(f"s_add_u32 {sr(sT0)}, {sr(sT0)}, {FLX}")
    B(f"v_writelane_b32 v{bT + 1}, {sr(sT0)}, 33")
    B("s_mov_b32 exec_hi, 3")
    B.vm(f"buffer_load_dword v{bT + 2}, v{bT + 1}, {srd(SWS)}, {sr(sWSB)} offen sc1")
    B("s_mov_b32 exec_hi, -1")
B.wait(vm=t)
B("s_barrier")
stamp(B, 8)
for i in range(G2A):
    w1_issue(i * W1S)
w1_colsum(0, 5 + G1)
B.wait_vm0()
B("s_barrier")
for i in range(G2B):
    w1_issue((G2A + i) * W1S)
w1_drain(5 + G1, G2A, 0)
bHA, bCA, bIA, bSP, bSG = 1, 2, 3, 10, 11
B(f"v_lshlrev_b32 v{bHA}, 4, v0")
B(f"v_add_u32 v{bHA}, {L_WO}, v{bHA}")
B(f"v_and_b32 v{bT}, 15, v0")
B(f"v_lshlrev_b32 v{bT}, 4, v{bT}")
B(f"v_add_u32 v{bCA}, {L_C4}, v{bT}")
B(f"v_lshlrev_b32 v{bIA}, 3, v0")
B(f"v_add_u32 v{bIA}, {L_IB}, v{bIA}")
B(f"s_mul_i32 {sr(sT0)}, {sr(sJ)}, 11")
B(f"s_mul_i32 {sr(sT1)}, {sr(sW)}, 3")
B(f"s_add_u32 {sr(sT0)}, {sr(sT0)}, {sr(sT1)}")
B(f"s_lshl_b32 {sr(sT0)}, {sr(sT0)}, 10")
B(f"s_add_u32 {sr(sT0)}, {sr(sT0)}, {WH1}")
B(f"v_lshrrev_b32 v{bT + 1}, 4, v0")
B(f"v_lshl_add_u32 v{bT + 2}, v{bT + 1}, 9, v{bT}")
B(f"v_add_u32 v{bSP}, {sr(sT0)}, v{bT + 2}")
B(f"v_lshrrev_b32 v{bT + 2}, 5, v0")
B(f"v_lshl_add_u32 v{bT + 2}, v{bT + 2}, 9, v{bT}")
B(f"v_and_b32 v{bT + 1}, 1, v{bT + 1}")
B(f"v_lshl_add_u32 v{bT + 2}, v{bT + 1}, 3, v{bT + 2}")
B(f"s_add_u32 {sr(sT0)}, {sr(sT0)}, 2048")
B(f"s_cmp_eq_u32 {sr(sW)}, 3")
B(f"s_cselect_b32 {sr(sT0)}, {hx(OOB)}, {sr(sT0)}")
B(f"v_add_u32 v{bSG}, {sr(sT0)}, v{bT + 2}")
B.wait_lg0()
w1_colsum(5 + G1, G2A)
B.wait_vm0()
B("s_barrier")
stamp(B, 9)
w1_drain(5 + G1 + G2A, G2B, G2A * W1S)
B(f"v_lshrrev_b32 v{bT}, 4, v0")
B(f"v_cmp_eq_u32 {sr(sM0, 2)}, 0, v{bT}")
B(f"v_cmp_eq_u32 {sr(sM1, 2)}, 1, v{bT}")
B.wait_lg0()
w1_colsum(5 + G1 + G2A, G2B)
bIN = 4
for n in range(3):
    cs = bCS + 4 * n
    B(f"v_cvt_pk_bf16_f32 v{bT}, v{cs}, 0")
    B(f"v_lshlrev_b32 v{bT + 1}, 16, v{bT}")
    B(f"v_sub_f32 v{bT + 1}, v{cs}, v{bT + 1}")
    B(f"v_cvt_pk_bf16_f32 v{bT + 1}, v{cs}, v{bT + 1}")
    B(f"v_lshl_or_b32 v{bT + 2}, v{bB1 + n}, 16, v{bB1 + n}")
    B(f"v_cndmask_b32 v{bT + 1}, 0, v{bT + 1}, {sr(sM1, 2)}")
    B(f"v_cndmask_b32 v{bIN + 2 * n}, v{bT + 1}, v{bT + 2}, {sr(sM0, 2)}")
    B(f"v_cndmask_b32 v{bIN + 2 * n + 1}, 0, v{bT}, {sr(sM1, 2)}")
B("s_setprio 2")
B("s_barrier")
stamp(B, 10)
bHF = 12
bAC = 24
bC4 = 48
bIB = 52
bG = 54
sH1 = sT3


def gelu_ops(t):
    ac = bAC + 12 * (t & 1)
    ops = []
    for p in range(6):
        a0, a1 = ac + 2 * p, ac + 2 * p + 1
        g0, g1 = bG + 2 * (p & 1), bG + 2 * (p & 1) + 1
        ops += [f"v_mul_f32 v{g0}, v{a0}, v{a0}", f"v_mul_f32 v{g1}, v{a1}, v{a1}",
                f"v_fma_f32 v{g0}, v{g0}, v{bC4 + 1}, v{bC4}", f"v_fma_f32 v{g1}, v{g1}, v{bC4 + 1}, v{bC4}",
                f"v_mul_f32 v{g0}, v{g0}, v{a0}", f"v_mul_f32 v{g1}, v{g1}, v{a1}",
                f"v_exp_f32 v{g0}, v{g0}", f"v_exp_f32 v{g1}, v{g1}",
                f"v_fma_f32 v{g0}, v{g0}, v{bC4 + 2}, v{bC4 + 2}", f"v_fma_f32 v{g1}, v{g1}, v{bC4 + 2}, v{bC4 + 2}",
                f"v_rcp_f32 v{g0}, v{g0}", f"v_rcp_f32 v{g1}, v{g1}",
                f"v_mul_f32 v{g0}, v{g0}, v{a0}", f"v_mul_f32 v{g1}, v{g1}, v{a1}",
                f"v_cvt_pk_bf16_f32 v{ac + p if p < 4 else ac + 4 + p}, v{g0}, v{g1}"]
        if p == 3:
            ops.append(("st", f"buffer_store_dwordx4 {vr(ac, 4)}, v{bSP}, {srd(SWS)}, {sr(sH1)} offen offset:{(t & 1) * 256}"))
        if p == 5:
            ops.append(("st", f"buffer_store_dwordx2 {vr(ac + 8, 2)}, v{bSG}, {srd(SWS)}, {sr(sH1)} offen offset:{(t & 1) * 256}"))
    return ops


def emit_g(op):
    if isinstance(op, tuple):
        pub(B, [op[1]])
    else:
        B(op)


def cost(op):
    if isinstance(op, tuple):
        return 8
    return 8 if op.startswith(("v_exp", "v_rcp")) else 4


B(f"s_mov_b32 {sr(sH1)}, {sr(sWSB)}")
hf_tok = {}
NF = 64


def hf_read(q):
    if q < NF:
        hf_tok[q] = B.ds(f"ds_read_b128 {vr(bHF + 4 * (q % 3), 4)}, v{bHA} offset:{q * 1024}")


hf_read(0)
hf_read(1)
for t in range(4):
    ac = bAC + 12 * (t & 1)
    g = gelu_ops(t - 1) if t else []
    tot = sum(cost(o) for o in g)
    done = 0
    gi = 0
    if t:
        c4t = B.ds(f"ds_read_b128 {vr(bC4, 4)}, v{bCA} offset:{(t - 1) * 256}")
    if t == 3:
        B(f"s_add_u32 {sr(sH1)}, {sr(sWSB)}, {H1H}")
    nm = 0
    for i in range(16):
        q = 16 * t + i
        if q == 13:
            B.wait_lg0()
            B("s_barrier")
        B.wait(lg=hf_tok[q])
        for n in range(3):
            mf16(B, ac + 4 * n, bW1 + 12 * i + 4 * n, bHF + 4 * (q % 3), "0" if i == 0 else None)
            nm += 1
            if n == 0:
                hf_read(q + 2)
                if i == 14:
                    ibt = B.ds(f"ds_read_b64 {vr(bIB, 2)}, v{bIA} offset:{t * 512}")
            if nm >= 5 and g:
                if gi == 0:
                    B.wait(lg=c4t)
                while gi < len(g) and done < tot * (nm - 4) / 42.0:
                    emit_g(g[gi])
                    done += cost(g[gi])
                    gi += 1
    while gi < len(g):
        emit_g(g[gi])
        gi += 1
    B.wait(lg=ibt)
    for n in range(3):
        B(f"v_mfma_f32_16x16x16_bf16 {vr(ac + 4 * n, 4)}, {vr(bIN + 2 * n, 2)}, {vr(bIB, 2)}, {vr(ac + 4 * n, 4)}")
c4t = B.ds(f"ds_read_b128 {vr(bC4, 4)}, v{bCA} offset:{3 * 256}")
B.wait(lg=c4t)
for o in gelu_ops(3):
    emit_g(o)
stamp(B, 11)
B(f"s_lshl2_add_u32 {sr(sT0)}, {sr(sJ)}, {sr(sW)}")
B(f"s_lshl2_add_u32 {sr(sT0)}, {sr(sT0)}, {sr(sWSB)}")
B(f"v_mov_b32 v{bG}, {FLD}")
B(f"v_mov_b32 v{bG + 1}, {sr(sNONCE)}")
B("s_mov_b64 exec, 1")
B.wait_vm0()
pub(B, [f"buffer_store_dword v{bG + 1}, v{bG}, {srd(SWS)}, {sr(sT0)} offen"])
B("s_mov_b64 exec, -1")
B("s_setprio 0")
stamp(B, 12)
fOA, fPA, fHA, fB2, fH, fP = 1, 2, 4, 8, 16, 32
B(f"v_and_b32 v{bT}, 7, v0")
B(f"v_lshrrev_b32 v{bT + 1}, 3, v0")
B(f"v_lshlrev_b32 v{bT + 2}, 4, v{bT}")
B(f"s_lshl_b32 {sr(sT0)}, {sr(sJ)}, 7")
tb2 = B.vm(f"buffer_load_dwordx4 {vr(fH, 4)}, v{bT + 2}, {srd(SB2)}, {sr(sT0)} offen")
B(f"s_lshl_b32 {sr(sT1)}, {sr(sRB)}, 16")
B(f"s_add_u32 {sr(sT0)}, {sr(sT0)}, {sr(sT1)}")
B(f"s_lshl_b32 {sr(sT1)}, {sr(sW)}, 13")
B(f"s_add_u32 {sr(sT0)}, {sr(sT0)}, {sr(sT1)}")
B(f"v_lshl_add_u32 v{fOA}, v{bT + 1}, 10, v{bT + 2}")
B(f"v_add_u32 v{fOA}, {sr(sT0)}, v{fOA}")
B(f"v_lshlrev_b32 v{bT + 3}, 1, v{bT}")
B(f"v_xor_b32 v{bT + 3}, v{bT + 3}, v{bT + 1}")
B(f"v_lshlrev_b32 v{bT + 3}, 4, v{bT + 3}")
B(f"v_lshl_add_u32 v{bT + 3}, v{bT + 1}, 8, v{bT + 3}")
B(f"s_lshl_b32 {sr(sT1)}, {sr(sW)}, 11")
B(f"v_add_u32 v{fPA}, {sr(sT1)}, v{bT + 3}")
B(f"v_xor_b32 v{fPA + 1}, 16, v{fPA}")
B(f"s_lshl_b32 {sr(sT1)}, {sr(sW)}, 3")
B(f"v_add_u32 v{bT + 3}, {sr(sT1)}, v{bT + 1}")
B(f"v_bfe_u32 v{bT + 4}, v{bT + 3}, 1, 3")
B(f"v_xor_b32 v{bT + 4}, v{bT + 4}, v{bT}")
B(f"v_lshlrev_b32 v{bT + 4}, 4, v{bT + 4}")
B(f"v_lshl_add_u32 v{bT + 4}, v{bT + 3}, 7, v{bT + 4}")
B(f"v_add_u32 v{fHA}, {L_HST}, v{bT + 4}")
B.wait(vm=tb2)
for i in range(4):
    B(f"v_lshlrev_b32 v{fB2 + 2 * i}, 16, v{fH + i}")
    B(f"v_and_b32 v{fB2 + 2 * i + 1}, 0xffff0000, v{fH + i}")
for half in range(2):
    th = B.ds(f"ds_read_b128 {vr(fH + 8, 4)}, v{fHA} offset:{half * 4096}")
    B.wait(lg=th)
    for i in range(4):
        B(f"v_lshlrev_b32 v{fH + 2 * i}, 16, v{fH + 8 + i}")
        B(f"v_and_b32 v{fH + 2 * i + 1}, 0xffff0000, v{fH + 8 + i}")
    for i in range(4):
        B(f"v_pk_add_f32 {vr(fH + 2 * i, 2)}, {vr(fH + 2 * i, 2)}, {vr(fB2 + 2 * i, 2)}")
    B("s_barrier")
    tks = []
    for p in range(4):
        for e in range(2):
            base = p * W2W + half * 8192
            if base >= 65536:
                if e == 0:
                    B(f"v_add_u32 v{fPA + 4}, {base}, v{fPA}")
                    B(f"v_add_u32 v{fPA + 5}, {base}, v{fPA + 1}")
                tks.append(B.ds(f"ds_read_b128 {vr(fP + 8 * p + 4 * e, 4)}, v{fPA + 4 + e}"))
            else:
                tks.append(B.ds(f"ds_read_b128 {vr(fP + 8 * p + 4 * e, 4)}, v{fPA + e} offset:{base}"))
    for p in range(4):
        B.wait(lg=tks[2 * p + 1])
        for i in range(8):
            B(f"v_add_f32 v{fH + i}, v{fH + i}, v{fP + 8 * p + i}")
    for i in range(4):
        B(f"v_cvt_pk_bf16_f32 v{fH + 12 + i}, v{fH + 2 * i}, v{fH + 2 * i + 1}")
    if half:
        B(f"s_mov_b32 {sr(sT0)}, 32768")
    B.vm(f"buffer_store_dwordx4 {vr(fH + 12, 4)}, v{fOA}, {srd(SOUT)}, {sr(sT0) if half else 0} offen")
stamp(B, 13)
dump_stamps(B, 0)
B("s_endpgm")

A = Stream()
A("L_teamA:")
A("s_setprio 1")
aXA, aWA = 1, 5
aT = 8
aQ, aK, aV, aCQ, aCK, aCV, aONE = 16, 32, 48, 64, 68, 72, 76
aXF = (80, 108)
aWF = (96, 124)
aCL, aCU = 136, 152
if OPT["codepf"]:
    A(f"s_getpc_b64 {sr(sM0, 2)}")
    A("L_pc:")
    A(f"s_sub_u32 {sr(sM0)}, {sr(sM0)}, L_pc-{NAME}")
    A(f"s_subb_u32 {sr(sM0 + 1)}, {sr(sM0 + 1)}, 0")
    A(f"s_mov_b32 {sr(sM0 + 2)}, L_end-{NAME}")
    A(f"s_mov_b32 {sr(sM0 + 3)}, 0x20000")
    A(f"s_lshr_b32 {sr(sT0)}, s2, 3")
    A(f"s_lshl2_add_u32 {sr(sT0)}, {sr(sT0)}, {sr(sW)}")
    A(f"s_lshl_b32 {sr(sT0)}, {sr(sT0)}, 7")
    A(f"v_lshlrev_b32 v{aT}, 14, v0")
    A("s_mov_b64 exec, 7")
    A.vm(f"buffer_load_dword v{aT + 1}, v{aT}, {srd(sM0)}, {sr(sT0)} offen")
    A("s_mov_b64 exec, -1")
A(f"v_and_b32 v{aT}, 15, v0")
A(f"v_lshrrev_b32 v{aT + 2}, 4, v0")
A(f"v_lshrrev_b32 v{aT + 3}, 1, v{aT}")
A(f"v_xor_b32 v{aT + 3}, v{aT + 3}, v{aT + 2}")
A(f"v_lshlrev_b32 v{aT + 3}, 4, v{aT + 3}")
A(f"v_lshl_add_u32 v{aXA}, v{aT}, 7, v{aT + 3}")
A(f"v_xor_b32 v{aXA + 1}, 64, v{aXA}")
A(f"v_add_u32 v{aXA + 2}, 0x10000, v{aXA}")
A(f"v_add_u32 v{aXA + 3}, 0x10000, v{aXA + 1}")
A(f"v_bfe_u32 v{aT + 3}, v0, 3, 2")
A(f"v_xor_b32 v{aT + 3}, {sr(sW)}, v{aT + 3}")
A(f"v_lshlrev_b32 v{aT + 3}, 5, v{aT + 3}")
A(f"v_and_b32 v{aT + 4}, 3, v0")
A(f"v_lshl_add_u32 v{aT + 3}, v{aT + 4}, 3, v{aT + 3}")
A(f"v_bfe_u32 v{aT + 4}, v0, 2, 2")
A(f"v_lshl_add_u32 v{aT + 3}, v{aT + 4}, 7, v{aT + 3}")
A(f"v_mul_u32_u24 v{aT + 4}, 3072, v{aT + 2}")
A(f"v_add_u32 v{aWA}, v{aT + 3}, v{aT + 4}")
A(f"v_add_u32 v{aWA + 1}, 0x10000, v{aWA}")
for i in range(4):
    A(f"v_mov_b32 v{aONE + i}, 0x3f803f80")
A("s_waitcnt lgkmcnt(0)")
if OPT["warm"]:
    A(f"s_lshl2_add_u32 {sr(sT0)}, s2, {sr(sW)}")
    A(f"s_mul_i32 {sr(sT1)}, {sr(sT0)}, {11 * 128}")
    A(f"s_lshl_b32 {sr(sT0)}, {sr(sT0)}, 9")
    A(f"v_lshlrev_b32 v{aT + 4}, 7, v0")
    A("s_mov_b64 exec, 0x7ff")
    A.vm(f"buffer_load_dword v{aT + 5}, v{aT + 4}, {srd(SW1)}, {sr(sT1)} offen")
    A.vm(f"buffer_load_dword v{aT + 6}, v{aT + 4}, {srd(SW2)}, {sr(sT1)} offen")
    A("s_mov_b64 exec, 0xf")
    A.vm(f"buffer_load_dword v{aT + 7}, v{aT + 4}, {srd(SWO)}, {sr(sT0)} offen")
    A("s_mov_b64 exec, -1")
nl = lab("nolead")
A(f"s_or_b32 {sr(sT0)}, s2, {sr(sW)}")
A(f"s_cbranch_scc1 {nl}")
A(f"v_mov_b32 v{aQ}, {WEPOCH}")
A("s_mov_b64 exec, 1")
A.raw(f"buffer_load_dword v{aQ + 2}, v{aQ}, {srd(SWS)}, 0 offen sc1")
A(f"s_mov_b32 {sr(sT0)}, 1664525")
A(f"v_mov_b32 v{aQ + 1}, 0")
A(f"v_mov_b32 v{aQ + 3}, 1")
A("s_waitcnt vmcnt(0)")
A(f"v_mul_lo_u32 v{aQ + 2}, v{aQ + 2}, {sr(sT0)}")
A(f"v_add_u32 v{aQ + 2}, 1013904223, v{aQ + 2}")
A.raw(f"buffer_store_dwordx2 {vr(aQ + 2, 2)}, v{aQ + 1}, {srd(SDBG)}, 0 offen sc1")
A.raw(f"buffer_store_dword v{aQ + 2}, v{aQ}, {srd(SWS)}, 0 offen sc1")
A("s_mov_b64 exec, -1")
A(f"{nl}:")
A(f"v_lshrrev_b32 v{aT + 3}, 5, v0")
A(f"v_lshlrev_b32 v{aT + 3}, 2, v{aT + 3}")
A(f"v_and_b32 v{aT + 4}, 31, v0")
A(f"v_sub_u32 v{aT + 3}, v{aT + 4}, v{aT + 3}")
A(f"v_mov_b32 v{aT + 4}, {hx(f2u(-1e30))}")
for i in range(16):
    m = 8 * (i >> 2) + (i & 3)
    pr = (sM0, sM1)[i & 1]
    A(f"v_cmp_le_i32 {sr(pr, 2)}, {m}, v{aT + 3}")
    A(f"v_cndmask_b32 v{aCL + i}, v{aT + 4}, 0, {sr(pr, 2)}")
    A(f"v_cndmask_b32 v{aCU + i}, 0, v{aT + 4}, {sr(pr, 2)}")
stamp(A, 1)

rd = {}


def s1_reads(n):
    s, t = n >> 1, n & 1
    sl = s % 3
    hi = 1 if sl == 2 else 0
    base = (sl & 1) * SLOT
    xf, wf = aXF[n & 1], aWF[n & 1]
    X = lambda q: (("x", q), f"ds_read_b128 {vr(xf + 4 * q, 4)}, v{aXA + t + 2 * hi} offset:{base + q * 2048}")
    W = lambda m, h: (("w", m), f"ds_read_b64_tr_b16 {vr(wf + 4 * m + 2 * h, 2)}, v{aWA + hi} offset:{base + 8192 + t * 12288 + m * 1024 + h * 512}")
    return [W(1, 0), W(1, 1), X(0), W(2, 0), W(2, 1), X(1), W(0, 0), W(0, 1), X(2), X(3)]


def s1_rd(n, item):
    rd[(n,) + item[0]] = A.ds(item[1])


A("s_barrier")
stamp(A, 2)
for it in s1_reads(0):
    s1_rd(0, it)
order = [("c", 1), (1, 0), ("c", 2), (2, 0), (1, 1), (2, 1), ("c", 0), (0, 0), (0, 1), (1, 2), (2, 2), (0, 2), (1, 3), (2, 3), (0, 3)]
aNP = 7
for n in range(16):
    xf, wf = aXF[n & 1], aWF[n & 1]
    z = "0" if n == 0 else None
    nxt = s1_reads(n + 1) if n < 15 else []
    for k, (m, q) in enumerate(order):
        if k == 6 and n < 15:
            A.wait_lg0()
            A("s_barrier")
            if n == 10:
                A(f"v_mov_b32 v{aNP}, 0")
                tnp = A.vm(f"buffer_load_dwordx2 {vr(aT, 2)}, v{aNP}, {srd(SDBG)}, 0 offen sc1")
        if m == "c":
            A.wait(lg=rd[(n, "w", q)])
            if q == 2:
                mf16(A, aCV, aONE, wf + 8, z)
            else:
                mf16(A, (aCQ, aCK)[q], wf + 4 * q, aONE, z)
        else:
            A.wait(lg=max(rd[(n, "w", m)], rd[(n, "x", q)]))
            if m == 2:
                mf16(A, aV + 4 * q, xf + 4 * q, wf + 8, z)
            else:
                mf16(A, (aQ, aK)[m] + 4 * q, wf + 4 * m, xf + 4 * q, z)
        if k >= 6 and nxt:
            for _ in range(2 if k == 6 else 1):
                if nxt:
                    s1_rd(n + 1, nxt.pop(0))
stamp(A, 3)
lp, dn = lab("np"), lab("npd")
A(f"s_mov_b32 {sr(sCNT)}, 0")
A(f"{lp}:")
A.wait_vm0()
A(f"v_readfirstlane_b32 {sr(sT0)}, v{aT + 1}")
A(f"v_readfirstlane_b32 {sr(sNONCE)}, v{aT}")
A(f"s_cmp_lg_u32 {sr(sT0)}, 0")
A(f"s_cbranch_scc0 {lp}x")
A(f"{dn}:")
tail += [f"{lp}x:", f"    s_add_u32 {sr(sCNT)}, {sr(sCNT)}, 1", f"    s_cmp_gt_u32 {sr(sCNT)}, {TIMEOUT}", f"    s_cbranch_scc1 {dn}",
         f"    buffer_load_dwordx2 {vr(aT, 2)}, v{aNP}, {srd(SDBG)}, 0 offen sc1", f"    s_branch {lp}"]
A(f"v_mov_b32 v{aT + 2}, {L_NONCE}")
A.ds(f"ds_write_b32 v{aT + 2}, v{aT}")
aSA, aSB, aKS, aZ = 1, 2, 3, 7
A(f"v_and_b32 v{aSA}, 15, v0")
A(f"v_lshlrev_b32 v{aSA}, 2, v{aSA}")
A(f"v_add_u32 v{aSA}, {L_RS}, v{aSA}")
A(f"v_and_b32 v{aSB}, 48, v0")
A(f"v_add_u32 v{aSB}, {L_RS}, v{aSB}")
A(f"v_lshlrev_b32 v{aKS}, 4, v0")
sKV, sFA = sT4, sT5
A(f"s_lshl2_add_u32 {sr(sT0)}, {sr(sJ)}, {sr(sW)}")
A(f"s_lshl_b32 {sr(sKV)}, {sr(sT0)}, 12")
A(f"s_add_u32 {sr(sKV)}, {sr(sKV)}, {sr(sWSB)}")
A(f"s_lshl_b32 {sr(sFA)}, {sr(sT0)}, 7")
A(f"s_add_u32 {sr(sFA)}, {sr(sFA)}, {sr(sWSB)}")
A(f"s_add_u32 {sr(sFA)}, {sr(sFA)}, {FLA}")
A.wait_lg0()
A("s_barrier")
stamp(A, 4)
eL, eRS, eNM = 80, 88, 104
aQF, aKF, aVC = 176, 184, 192
tl = []
for t in range(4):
    tl.append(A.ds(f"ds_read2_b32 {vr(eL + 2 * t, 2)}, v{aSA} offset0:{16 * t} offset1:{64 + 16 * t}"))
tv = []
for t in range(4):
    A.ds(f"ds_read_b128 {vr(eRS + 4 * t, 4)}, v{aSB} offset:{64 * t}")
    tv.append(A.ds(f"ds_read_b128 {vr(eNM + 4 * t, 4)}, v{aSB} offset:{256 + 64 * t}"))


def qk_epi(acc, cs, dst):
    for t in range(4):
        for p in range(2):
            A(f"v_pk_mul_f32 {vr(aT + 4, 2)}, {vr(cs + 2 * p, 2)}, {vr(eL + 2 * t, 2)} op_sel:[0,1] op_sel_hi:[1,1]")
            A(f"v_pk_fma_f32 {vr(acc + 4 * t + 2 * p, 2)}, {vr(acc + 4 * t + 2 * p, 2)}, {vr(eL + 2 * t, 2)}, {vr(aT + 4, 2)} op_sel:[0,0,0] op_sel_hi:[1,0,1]")
    for t in range(4):
        for p in range(2):
            A(f"v_cvt_pk_bf16_f32 v{dst + 2 * t + p}, v{acc + 4 * t + 2 * p}, v{acc + 4 * t + 2 * p + 1}")
    for b in range(2):
        for p in range(2):
            A(f"v_permlane16_swap_b32 v{dst + 4 * b + p}, v{dst + 4 * b + 2 + p}")


A.wait(lg=tl[3])
qk_epi(aK, aCK, aKF)
for b in range(2):
    A.vm(f"buffer_store_dwordx4 {vr(aKF + 4 * b, 4)}, v{aKS}, {srd(SWS)}, {sr(sKV)} offen offset:{2048 * b} sc1")
A.wait(lg=tv[3])
for t in range(4):
    for p in range(2):
        A(f"v_pk_mul_f32 {vr(aT + 4, 2)}, {vr(eNM + 4 * t + 2 * p, 2)}, {vr(aCV, 2)}")
        A(f"v_pk_fma_f32 {vr(aV + 4 * t + 2 * p, 2)}, {vr(aV + 4 * t + 2 * p, 2)}, {vr(eRS + 4 * t + 2 * p, 2)}, {vr(aT + 4, 2)}")
for t in range(4):
    for p in range(2):
        A(f"v_cvt_pk_bf16_f32 v{aVC + 2 * t + p}, v{aV + 4 * t + 2 * p}, v{aV + 4 * t + 2 * p + 1}")
for b in range(2):
    for p in range(2):
        A(f"v_permlane32_swap_b32 v{aVC + 4 * b + p}, v{aVC + 4 * b + 2 + p}")
for b in range(2):
    A.vm(f"buffer_store_dwordx4 {vr(aVC + 4 * b, 4)}, v{aKS}, {srd(SWS)}, {sr(sKV)} offen offset:{2048 * b + 1024} sc1")
stamp(A, 5)
A(f"s_getreg_b32 {sr(sXCC)}, hwreg(HW_REG_XCC_ID, 0, 4)")
A(f"s_and_b32 {sr(sT0)}, {sr(sNONCE)}, -16")
A(f"s_or_b32 {sr(sT0)}, {sr(sT0)}, {sr(sXCC)}")
A(f"v_mov_b32 v{aT + 2}, {sr(sT0)}")
A(f"s_lshl2_add_u32 {sr(sT1)}, {sr(sJ)}, {sr(sWSB)}")
A(f"s_add_u32 {sr(sT1)}, {sr(sT1)}, {FLX}")
A(f"s_cmp_eq_u32 {sr(sW)}, 0")
A(f"s_cselect_b32 {sr(sT1)}, {sr(sT1)}, {hx(OOB)}")
A("s_mov_b64 exec, 1")
A.vm(f"buffer_store_dword v{aT + 2}, v{aZ}, {srd(SWS)}, {sr(sT1)} offen sc1")
A("s_mov_b64 exec, -1")
aKA, aVA, aOVA = 1, 4, 8
A(f"s_mul_i32 {sr(sT0)}, {sr(sW)}, 2112")
A(f"s_add_u32 {sr(sT0)}, {sr(sT0)}, {L_OWNV}")
A(f"v_add_u32 v{aT + 2}, {sr(sT0)}, v{aKS}")
for b in range(2):
    A.ds(f"ds_write_b128 v{aT + 2}, {vr(aVC + 4 * b, 4)} offset:{1056 * b}")
A(f"v_mov_b32 v{aT + 2}, {sr(sT0)}")
for b in range(2):
    A.ds(f"ds_write_b128 v{aT + 2}, {vr(aONE, 4)} offset:{1056 * b + 1024}")
A(f"v_and_b32 v{aT + 3}, 15, v0")
A(f"v_lshrrev_b32 v{aT + 4}, 5, v0")
A(f"v_lshl_add_u32 v{aT + 3}, v{aT + 4}, 4, v{aT + 3}")
A(f"v_lshlrev_b32 v{aT + 3}, 4, v{aT + 3}")
A(f"v_add_u32 v{aT + 4}, 512, v{aT + 3}")
A(f"s_mov_b32 {sr(sM0)}, 0xffff")
A(f"s_mov_b32 {sr(sM0 + 1)}, 0xffff")
A(f"v_mov_b32 v{aT + 5}, 1024")
A(f"v_cndmask_b32 v{aT + 3}, v{aT + 5}, v{aT + 3}, {sr(sM0, 2)}")
A(f"v_cndmask_b32 v{aT + 4}, v{aT + 5}, v{aT + 4}, {sr(sM0, 2)}")
A(f"s_mul_i32 {sr(sT1)}, {sr(sW)}, {HHEAD}")
A(f"v_add_u32 v{aKA}, {sr(sT1)}, v{aKS}")
A(f"s_add_u32 {sr(sT1)}, {sr(sT1)}, 1024")
A(f"v_add_u32 v{aVA}, {sr(sT1)}, v{aT + 3}")
A(f"v_add_u32 v{aVA + 1}, {sr(sT1)}, v{aT + 4}")
A(f"v_add_u32 v{aOVA}, {sr(sT0)}, v{aT + 3}")
A(f"v_add_u32 v{aOVA + 1}, {sr(sT0)}, v{aT + 4}")
aKB = (200, 204, 208)
aVB = (212, 220, 228)
vt = {}
for b in range(2):
    for p in range(2):
        vt[b] = A.ds(f"ds_read_b128 {vr(aVB[b] + 4 * p, 4)}, v{aOVA + p} offset:{1056 * b}")
QS = 0.25 * 1.4426950408889634
for t in range(4):
    A(f"v_mul_f32 v{eL + 2 * t}, {hx(f2u(QS))}, v{eL + 2 * t}")
    A(f"v_mul_f32 v{eL + 2 * t + 1}, {hx(f2u(QS))}, v{eL + 2 * t + 1}")
qk_epi(aQ, aCQ, aQF)

aS = (16, 32)
aO = (48, 64)
aP = 80


def run_tiles(tiles, hooks, first_o):
    def s_mfma(i):
        qb, kreg, vreg, c, kt, vtk = tiles[i]
        if kt:
            A.wait(lg=kt())
        mf32(A, aS[i & 1], kreg, aQF + 4 * qb, c)

    def pv(i, p):
        qb, kreg, vreg, c, kt, vtk = tiles[i]
        if vtk:
            A.wait(lg=vtk())
        z = None
        if p == 0 and qb in first_o:
            first_o.discard(qb)
            z = "0"
        mf32(A, aO[qb], vreg + 4 * p, aP + 4 * p, z)

    s_mfma(0)
    for i in range(len(tiles)):
        s = aS[i & 1]
        e = lambda k: A(f"v_exp_f32 v{s + k}, v{s + k}")
        c = lambda k: A(f"v_cvt_pk_bf16_f32 v{aP + k}, v{s + 2 * k}, v{s + 2 * k + 1}")
        if i + 1 < len(tiles):
            s_mfma(i + 1)
        e(0); e(1); e(2); c(0); e(3); e(4); c(1)
        if i:
            pv(i - 1, 1)
        if i in hooks:
            hooks[i]()
        e(5); e(6); c(2); e(7); e(8); c(3); e(9); e(10)
        pv(i, 0)
        c(4); e(11); e(12); c(5); e(13); e(14); e(15); c(6); c(7)
    pv(len(tiles) - 1, 1)


first_o = {0, 1}
CL, CU = vr(aCL, 16), vr(aCU, 16)


def flag_a():
    A(f"v_mov_b32 v{aT + 2}, {sr(sNONCE)}")
    A("s_mov_b64 exec, 1")
    A.wait_vm0()
    A.vm(f"buffer_store_dword v{aT + 2}, v{aZ}, {srd(SWS)}, {sr(sFA)} offen sc1")
    A("s_mov_b64 exec, -1")


run_tiles([(0, aKF, aVB[0], CL, None, lambda: vt[0]), (1, aKF, aVB[0], "0", None, None), (1, aKF + 4, aVB[1], CL, None, lambda: vt[1])],
          {}, first_o)
flag_a()
stamp(A, 6)
A("s_barrier")
A("s_barrier")
A("s_barrier")
A(f"v_mov_b32 v{aT + 2}, {L_NONCE + 4}")
A("s_barrier")
stamp(A, 7)
kt, vt2 = {}, {}


def kv_read(b):
    i = (7 - b) % 3
    kt[b] = A.ds(f"ds_read_b128 {vr(aKB[i], 4)}, v{aKA} offset:{L_HALO + b * HBLK}")
    for p in range(2):
        vt2[b] = A.ds(f"ds_read_b128 {vr(aVB[i] + 4 * p, 4)}, v{aVA + p} offset:{L_HALO + b * HBLK}")


kv_read(7)
tloc = A.ds(f"ds_read_b32 v{aT + 3}, v{aT + 2}")
tiles, hooks = [], {}
for b in range(7, -1, -1):
    i = (7 - b) % 3
    for qb in range(2):
        if b == 0 and qb == 1:
            continue
        c = CU if b == qb else "0"
        tiles.append((qb, aKB[i], aVB[i], c, (lambda b=b: kt[b]), (lambda b=b: vt2[b])))
    if b - 1 >= 0:
        def hk(b=b):
            if b - 1 in (5, 3):
                A("s_barrier")
            kv_read(b - 1)
        hooks[len(tiles) - 2] = hk
run_tiles(tiles, hooks, first_o)
stamp(A, 8)
aOS = 1
A(f"v_cmp_ne_u32 vcc, 0, v{aT + 3}")
A(f"v_and_b32 v{aT + 4}, 15, v0")
A(f"v_lshlrev_b32 v{aT + 4}, 4, v{aT + 4}")
A(f"v_bfe_u32 v{aT + 5}, v0, 4, 1")
A(f"v_lshl_add_u32 v{aT + 4}, v{aT + 5}, 14, v{aT + 4}")
A(f"v_lshrrev_b32 v{aT + 5}, 5, v0")
A(f"v_lshl_add_u32 v{aOS}, v{aT + 5}, 8, v{aT + 4}")
A(f"s_lshl2_add_u32 {sr(sT0)}, {sr(sJ)}, {sr(sW)}")
A(f"s_lshl_b32 {sr(sT0)}, {sr(sT0)}, 9")
A(f"s_add_u32 {sr(sT0)}, {sr(sT0)}, {sr(sWSB)}")
A(f"s_add_u32 {sr(sT6)}, {sr(sT0)}, {WO_}")
A(f"s_add_u32 {sr(sT7)}, {sr(sT6)}, 32768")
A(f"v_subrev_u32 v{aT + 4}, {hx(f2u(2.0 ** -40))}, v{aO[0] + 8}")
A(f"v_subrev_u32 v{aT + 5}, {hx(f2u(2.0 ** -40))}, v{aO[1] + 8}")
A(f"v_max_u32 v{aT + 4}, v{aT + 4}, v{aT + 5}")
A(f"s_mov_b32 {sr(sT0)}, {0 if OPT['force_fb'] else hx(f2u(2.0 ** 40) - f2u(2.0 ** -40))}")
A(f"v_cmp_le_u32 {sr(sM0, 2)}, {sr(sT0)}, v{aT + 4}")
A(f"s_cmp_lg_u64 {sr(sM0, 2)}, 0")
A("s_cbranch_scc1 L_fallback")
A("L_fb_done:")
aOP = 16
for qb in range(2):
    o = aO[qb]
    A(f"v_rcp_f32 v{o + 8}, v{o + 8}")
for qb in range(2):
    o = aO[qb]
    for p in range(4):
        A(f"v_pk_mul_f32 {vr(o + 2 * p, 2)}, {vr(o + 2 * p, 2)}, {vr(o + 8, 2)} op_sel:[0,0] op_sel_hi:[1,0]")
    for p in range(4):
        A(f"v_cvt_pk_bf16_f32 v{aOP + 4 * qb + p}, v{o + 2 * p}, v{o + 2 * p + 1}")
pub(A, [f"buffer_store_dwordx4 {vr(aOP + 4 * qb, 4)}, v{aOS}, {srd(SWS)}, {sr((sT6, sT7)[qb])} offen" for qb in range(2)])

F = Stream()
fK, fV, fM, fQ, fO, fA0, fA1 = 200, 212, 88, 92, 96, 90, 91
sQB, sKB, sKO = sT0, sT1, sT2
F("L_fallback:")
F.fence()
F(f"v_and_b32 v{fA0}, 15, v0")
F(f"v_lshrrev_b32 v{fA1}, 5, v0")
F(f"v_lshl_add_u32 v{fA0}, v{fA1}, 4, v{fA0}")
F(f"v_lshlrev_b32 v{fA0}, 4, v{fA0}")
F(f"s_mov_b32 {sr(sQB)}, 0")
F("L_fb_q:")
for i in range(4):
    F(f"v_mov_b32 v{fQ + i}, v{aQF + i}")
    F(f"v_mov_b32 v{aQF + i}, v{aQF + 4 + i}")
F(f"v_mov_b32 v{fM}, {hx(f2u(-3e38))}")
for i in range(16):
    F(f"v_mov_b32 v{fO + i}, 0")
for i in range(8):
    F(f"v_mov_b32 v{fV + i}, 0x3f803f80")
for ps in range(2):
    F(f"s_lshl1_add_u32 {sr(sT3)}, {sr(sRB)}, {sr(sQB)}")
    F(f"s_min_u32 {sr(sKB)}, {sr(sT3)}, 8")
    F(f"L_fb_k{ps}:")
    F(f"s_sub_u32 {sr(sKO)}, {sr(sT3)}, {sr(sKB)}")
    F(f"s_and_b32 {sr(sCNT)}, {sr(sKO)}, 1")
    F(f"s_lshl_b32 {sr(sCNT)}, {sr(sCNT)}, 11")
    F(f"s_lshr_b32 {sr(sKO)}, {sr(sKO)}, 1")
    F(f"s_sub_u32 {sr(sKO)}, {sr(sRB)}, {sr(sKO)}")
    F(f"s_lshl_b32 {sr(sKO)}, {sr(sKO)}, 19")
    F(f"s_sub_u32 {sr(sKO)}, {sr(sKV)}, {sr(sKO)}")
    F(f"s_add_u32 {sr(sKO)}, {sr(sKO)}, {sr(sCNT)}")
    F.raw(f"buffer_load_dwordx4 {vr(fK, 4)}, v{aKS}, {srd(SWS)}, {sr(sKO)} offen sc1")
    if ps:
        F("s_mov_b32 exec_lo, 0xffff")
        F("s_mov_b32 exec_hi, 0xffff")
        F.raw(f"buffer_load_dwordx4 {vr(fV, 4)}, v{fA0}, {srd(SWS)}, {sr(sKO)} offen offset:1024 sc1")
        F.raw(f"buffer_load_dwordx4 {vr(fV + 4, 4)}, v{fA0}, {srd(SWS)}, {sr(sKO)} offen offset:1536 sc1")
        F("s_mov_b64 exec, -1")
    F("s_waitcnt vmcnt(0)")
    F(f"s_cmp_eq_u32 {sr(sKB)}, 8")
    F(f"s_cbranch_scc1 L_fb_u{ps}")
    F(f"s_cmp_eq_u32 {sr(sKB)}, 0")
    F(f"s_cbranch_scc1 L_fb_l{ps}")
    mf32(F, aS[0], fK, fQ, "0")
    F(f"s_branch L_fb_s{ps}")
    F(f"L_fb_u{ps}:")
    mf32(F, aS[0], fK, fQ, CU)
    F(f"s_branch L_fb_s{ps}")
    F(f"L_fb_l{ps}:")
    mf32(F, aS[0], fK, fQ, CL)
    F(f"L_fb_s{ps}:")
    F.fence()
    s = aS[0]
    if ps == 0:
        for i in range(8):
            F(f"v_max3_f32 v{fM}, v{fM}, v{s + 2 * i}, v{s + 2 * i + 1}")
    else:
        for i in range(16):
            F(f"v_sub_f32 v{s + i}, v{s + i}, v{fM}")
        for i in range(16):
            F(f"v_exp_f32 v{s + i}, v{s + i}")
        for i in range(8):
            F(f"v_cvt_pk_bf16_f32 v{aP + i}, v{s + 2 * i}, v{s + 2 * i + 1}")
        mf32(F, fO, fV, aP)
        mf32(F, fO, fV + 4, aP + 4)
        F.fence()
    F(f"s_sub_u32 {sr(sKB)}, {sr(sKB)}, 1")
    F(f"s_cbranch_scc0 L_fb_k{ps}")
    if ps == 0:
        F(f"v_mov_b32 v{fM + 1}, v{fM}")
        F(f"v_permlane32_swap_b32 v{fM}, v{fM + 1}")
        F(f"v_max_f32 v{fM}, v{fM}, v{fM + 1}")
for i in range(9):
    F(f"v_mov_b32 v{aO[0] + i}, v{aO[1] + i}")
    F(f"v_mov_b32 v{aO[1] + i}, v{fO + i}")
F(f"s_add_u32 {sr(sQB)}, {sr(sQB)}, 1")
F(f"s_cmp_lt_u32 {sr(sQB)}, 2")
F("s_cbranch_scc1 L_fb_q")
F("s_branch L_fb_done")

cWA, cXA, cFA = 4, 8, 12
cAC, cOF, cWO = 24, 40, 80
NOF, NWO = 10, 11
A(f"v_bfe_u32 v{aT + 5}, v0, 2, 3")
A(f"v_lshrrev_b32 v{aT + 6}, 5, v0")
A(f"v_lshl_add_u32 v{aT + 5}, v{aT + 6}, 4, v{aT + 5}")
A(f"v_lshlrev_b32 v{aT + 5}, 7, v{aT + 5}")
A(f"v_bfe_u32 v{aT + 6}, v0, 3, 2")
A(f"v_lshl_add_u32 v{aT + 5}, v{aT + 6}, 5, v{aT + 5}")
A(f"v_and_b32 v{aT + 6}, 3, v0")
A(f"v_lshl_add_u32 v{aT + 5}, v{aT + 6}, 3, v{aT + 5}")
A(f"v_add_u32 v{cWA}, {L_WO}, v{aT + 5}")
for a in range(1, 4):
    A(f"v_xor_b32 v{cWA + a}, {32 * a}, v{cWA}")
A("s_barrier")
stamp(A, 9)
wo_tok = {}


def wo_read(n):
    r = cWO + 16 * (n % NWO)
    for a in range(4):
        for h in range(2):
            wo_tok[n] = A.ds(f"ds_read_b64_tr_b16 {vr(r + 4 * a + 2 * h, 2)}, v{cWA + a} offset:{n * 4096 + h * 1024}")


for n in range(5):
    wo_read(n)
cZ = 2
A(f"v_mov_b32 v{cZ}, {FLB}")
A(f"v_mov_b32 v{aT + 5}, {sr(sNONCE)}")
sFO = sT5
A(f"s_lshl2_add_u32 {sr(sFO)}, {sr(sJ)}, {sr(sW)}")
A(f"s_lshl2_add_u32 {sr(sFO)}, {sr(sFO)}, {sr(sWSB)}")
A("s_mov_b64 exec, 1")
A.wait_vm0()
pub(A, [f"buffer_store_dword v{aT + 5}, v{cZ}, {srd(SWS)}, {sr(sFO)} offen"])
A("s_mov_b64 exec, -1")
A(f"v_and_b32 v{aT + 5}, 15, v0")
A(f"v_lshrrev_b32 v{aT + 6}, 1, v{aT + 5}")
A(f"v_lshrrev_b32 v{aT + 7}, 5, v0")
A(f"v_xor_b32 v{aT + 6}, v{aT + 6}, v{aT + 7}")
A(f"v_lshlrev_b32 v{aT + 6}, 4, v{aT + 6}")
A(f"v_lshl_add_u32 v{aT + 5}, v{aT + 5}, 7, v{aT + 6}")
A(f"v_bfe_u32 v{aT + 6}, v0, 4, 1")
A(f"v_lshl_add_u32 v{aT + 5}, v{aT + 6}, 3, v{aT + 5}")
A(f"s_lshl_b32 {sr(sT0)}, {sr(sW)}, 11")
A(f"s_add_u32 {sr(sT0)}, {sr(sT0)}, {L_HST}")
A(f"v_add_u32 v{cXA}, {sr(sT0)}, v{aT + 5}")
for a in range(1, 4):
    A(f"v_xor_b32 v{cXA + a}, {32 * a}, v{cXA}")
for a in range(4):
    tx = A.ds(f"ds_read_b64 {vr(cOF + 2 * a, 2)}, v{cXA + a}")
A(f"v_and_b32 v{cFA}, 31, v0")
A(f"s_add_u32 {sr(sT0)}, {sr(sWSB)}, {FLB}")
A(f"v_lshl_add_u32 v{cFA}, v{cFA}, 2, {sr(sT0)}")
A.wait(lg=tx)
for i in range(8):
    A(f"v_lshlrev_b32 v{cAC + 2 * i}, 16, v{cOF + i}")
    A(f"v_and_b32 v{cAC + 2 * i + 1}, 0xffff0000, v{cOF + i}")
for n in range(5, NWO):
    wo_read(n)
sOB, sOK = sT6, sT7
A(f"s_lshl_b32 {sr(sOB)}, {sr(sW)}, 14")
A(f"s_add_u32 {sr(sOB)}, {sr(sOB)}, {sr(sWSB)}")
A(f"s_add_u32 {sr(sOB)}, {sr(sOB)}, {WO_}")
A(f"s_lshl_b32 {sr(sOK)}, {sr(sRO)}, 10")
poll(A, cFA, None, 13, 14)
stamp(A, 10)
of_tok = {}


def of_load(n):
    if n % 4 == 0:
        A(f"s_add_u32 {sr(sT0)}, {sr(sOB)}, {sr(sOK)}")
        A(f"s_add_u32 {sr(sOK)}, {sr(sOK)}, 4096")
        A(f"s_and_b32 {sr(sOK)}, {sr(sOK)}, 0x3fff")
    of_tok[n] = A.vm(f"buffer_load_dwordx4 {vr(cOF + 4 * (n % NOF), 4)}, v{aKS}, {srd(SWS)}, {sr(sT0)} offen offset:{(n % 4) * 1024} sc1")


for n in range(NOF):
    of_load(n)
for n in range(16):
    A.wait(vm=of_tok[n], lg=wo_tok[n])
    for a in range(4):
        mf16(A, cAC + 4 * a, cWO + 16 * (n % NWO) + 4 * a, cOF + 4 * (n % NOF))
    if n + NOF < 16:
        of_load(n + NOF)
        if n + NOF == 15:
            A("s_barrier")
    if n + NWO < 16:
        wo_read(n + NWO)
cHP = 16
A(f"s_lshl_b32 {sr(sT0)}, {sr(sJ)}, 11")
A(f"s_add_u32 {sr(sT0)}, {sr(sT0)}, {sr(sOB)}")
A(f"s_add_u32 {sr(sT0)}, {sr(sT0)}, {WH - WO_}")
A(f"s_lshl_b32 {sr(sT1)}, {sr(sW)}, 10")
A(f"s_add_u32 {sr(sT1)}, {sr(sT1)}, {sr(sWSB)}")
A(f"s_add_u32 {sr(sT1)}, {sr(sT1)}, {WST}")
A(f"s_lshl_b32 {sr(sT2)}, {sr(sJ)}, 7")
A(f"s_add_u32 {sr(sT2)}, {sr(sT2)}, {sr(sT1)}")
for i in range(8):
    A(f"v_cvt_pk_bf16_f32 v{cHP + i}, v{cAC + 2 * i}, v{cAC + 2 * i + 1}")
pub(A, [f"buffer_store_dwordx4 {vr(cHP + 4 * s, 4)}, v{aKS}, {srd(SWS)}, {sr(sT0)} offen offset:{1024 * s}" for s in range(2)])
cS, cQ = 40, 42
A(f"v_pk_add_f32 {vr(cS, 2)}, {vr(cAC, 2)}, {vr(cAC + 2, 2)}")
A(f"v_pk_mul_f32 {vr(cQ, 2)}, {vr(cAC, 2)}, {vr(cAC, 2)}")
for i in range(1, 8):
    if i > 1:
        A(f"v_pk_add_f32 {vr(cS, 2)}, {vr(cS, 2)}, {vr(cAC + 2 * i, 2)}")
    A(f"v_pk_fma_f32 {vr(cQ, 2)}, {vr(cAC + 2 * i, 2)}, {vr(cAC + 2 * i, 2)}, {vr(cQ, 2)}")
A(f"v_add_f32 v{cS}, v{cS}, v{cS + 1}")
A(f"v_add_f32 v{cQ}, v{cQ}, v{cQ + 1}")
A(f"v_lshlrev_b32 v{13}, 2, v0")
A(f"v_permlane16_swap_b32 v{cS}, v{cQ}")
A(f"v_add_f32 v{cS}, v{cS}, v{cQ}")
A(f"v_mov_b32 v{cQ}, v{cS}")
A(f"v_permlane32_swap_b32 v{cS}, v{cQ}")
A(f"v_add_f32 v{cS}, v{cS}, v{cQ}")
A("s_mov_b32 exec_hi, 0")
pub(A, [f"buffer_store_dword v{cS}, v13, {srd(SWS)}, {sr(sT2)} offen"])
A("s_mov_b32 exec_hi, -1")
stamp(A, 11)
for a in range(4):
    A.ds(f"ds_write_b64 v{cXA + a}, {vr(cHP + 2 * a, 2)}")
A(f"v_mov_b32 v14, {sr(sNONCE)}")
A(f"v_add_u32 v{cFA}, {FLC - FLB}, v{cFA}")
A("s_mov_b64 exec, 1")
A.wait_vm0()
pub(A, [f"buffer_store_dword v14, v{cZ}, {srd(SWS)}, {sr(sFO)} offen offset:{FLC - FLB}"])
A("s_mov_b64 exec, -1")
dP, dG, dR = 4, 5, 6
A(f"v_lshrrev_b32 v{8}, 5, v0")
A(f"v_bfe_u32 v{9}, v0, 3, 2")
A(f"v_and_b32 v{10}, 7, v0")
A(f"v_bfe_u32 v{11}, v0, 4, 1")
A(f"v_lshlrev_b32 v{11}, 2, v{11}")
A(f"v_xor_b32 v{10}, v{10}, v{11}")
A(f"v_lshlrev_b32 v{10}, 4, v{10}")
A(f"v_lshl_add_u32 v{10}, v{9}, 10, v{10}")
A(f"s_mul_i32 {sr(sT0)}, {sr(sW)}, {352 * 1024}")
A(f"s_lshl_b32 {sr(sT2)}, {sr(sJ)}, 7")
A(f"s_add_u32 {sr(sT0)}, {sr(sT0)}, {sr(sT2)}")
A(f"v_add_u32 v{10}, {sr(sT0)}, v{10}")
A(f"v_lshl_add_u32 v{dP}, v{8}, 14, v{10}")
A(f"v_lshl_add_u32 v{dG}, v{8}, 12, v{10}")
A(f"s_mul_i32 {sr(sLB)}, {sr(sW)}, {W2W}")
A(f"v_bfe_u32 v{9}, v0, 2, 2")
A(f"v_lshl_add_u32 v{8}, v{8}, 3, v{9}")
A(f"v_lshlrev_b32 v{8}, 7, v{8}")
A(f"v_bfe_u32 v{9}, v0, 3, 1")
A(f"v_lshl_add_u32 v{8}, v{9}, 6, v{8}")
A(f"v_bfe_u32 v{9}, v0, 4, 1")
A(f"v_lshl_add_u32 v{8}, v{9}, 5, v{8}")
A(f"v_and_b32 v{9}, 3, v0")
A(f"v_lshl_add_u32 v{8}, v{9}, 3, v{8}")
A(f"v_add_u32 v{dR}, {sr(sLB)}, v{8}")
A(f"v_xor_b32 v{dR + 1}, 64, v{dR}")
A(f"s_lshl2_add_u32 {sr(sT0)}, {sr(sW)}, {sr(sRO)}")
A(f"s_and_b32 {sr(sT0)}, {sr(sT0)}, 15")
A(f"s_lshl_b32 {sr(sT0)}, {sr(sT0)}, 10")
A(f"s_add_u32 {sr(sT0)}, {sr(sT0)}, {sr(sWSB)}")
A(f"s_add_u32 {sr(sT6)}, {sr(sT0)}, {WH}")
A(f"s_lshl_b32 {sr(sT7)}, {sr(sW)}, 12")
A.wait_lg0()
poll(A, cFA, None, 14, 15)
A("s_barrier")
stamp(A, 12)
A("s_setprio 0")
ht = []
for t in range(4):
    A(f"s_add_u32 m0, {sr(sT7)}, {L_WO + t * 16384}")
    if t:
        A(f"s_add_u32 {sr(sT6)}, {sr(sT6)}, 16384")
    for i in range(4):
        tk = dma(A, aKS, SWS, sr(sT6), i * 1024, "sc1")
    ht.append(tk)
    if t == 0:
        for i in range(4):
            tst = A.vm(f"buffer_load_dword v{16 + i}, v13, {srd(SWS)}, {sr(sT1)} offen offset:{256 * i} sc1")
    if t == 1:
        A.wait(vm=ht[0])
        A("s_barrier")
A.wait(vm=tst)
A("v_add_f32 v16, v16, v17")
A("v_add_f32 v18, v18, v19")
A("v_add_f32 v16, v16, v18")
A("v_mov_b32 v17, v16")
A("v_permlane32_swap_b32 v16, v17")
A("v_add_f32 v16, v16, v17")
A("v_mov_b32 v17, v16")
A("v_permlane16_swap_b32 v16, v17")
C0 = -2.0 * 0.7978845608028654 * 1.4426950408889634
C1 = C0 * 0.044715
A(f"v_mul_f32 v16, {hx(f2u(-1.0 / 512))}, v16")
A(f"v_mul_f32 v17, {hx(f2u(1.0 / 512))}, v17")
A("v_fma_f32 v17, -v16, v16, v17")
A("v_max_f32 v17, 0, v17")
A(f"v_add_f32 v18, {hx(f2u(1e-5))}, v17")
A("v_rsq_f32 v18, v18")
A("v_cmp_gt_u32 s[60:61], 16, v0")
A("v_mul_f32 v17, v17, v18")
A(f"v_fmaak_f32 v17, v17, v18, {hx(f2u(1e-5))}")
A("v_rsq_f32 v17, v17")
A("v_and_b32 v24, 15, v0")
A("v_mul_f32 v17, v17, v18")
A("v_rcp_f32 v22, v17")
A(f"v_mul_f32 v20, {hx(f2u(C0))}, v17")
A("v_mul_f32 v21, v17, v17")
A("v_mul_f32 v21, v21, v17")
A(f"v_mul_f32 v21, {hx(f2u(C1))}, v21")
A("v_mov_b32 v23, 0")
A("v_cndmask_b32 v16, v16, v22, s[60:61]")
A("v_cvt_pk_bf16_f32 v17, v16, 0")
A("v_lshlrev_b32 v17, 16, v17")
A("v_sub_f32 v17, v16, v17")
A("v_cndmask_b32 v18, v16, v17, s[60:61]")
A("v_cvt_pk_bf16_f32 v18, v16, v18")
A("v_cvt_pk_bf16_f32 v19, v17, 0")
A(f"s_lshl_b32 {sr(sT0)}, {sr(sW)}, 8")
A(f"s_add_u32 {sr(sT0)}, {sr(sT0)}, {L_C4}")
A(f"v_lshl_add_u32 v24, v24, 4, {sr(sT0)}")
A(f"s_lshl_b32 {sr(sT0)}, {sr(sW)}, 9")
A(f"s_add_u32 {sr(sT0)}, {sr(sT0)}, {L_IB}")
A(f"v_lshl_add_u32 v25, v0, 3, {sr(sT0)}")
A.ds("ds_write_b64 v25, v[18:19]")
A("s_mov_b64 exec, 0xffff")
A.ds("ds_write_b128 v24, v[20:23]")
A("s_mov_b64 exec, -1")

dW2 = 80
w2_tok = {}


def w2_issue(e):
    jj, ee = divmod(e, 11)
    ww, kind = divmod(ee, 3)
    f0 = 176 * jj + 48 * ww
    for hf in range(2):
        row = f0 + (4 * (2 * kind + hf) if kind < 2 else 32 + 8 * hf)
        A(f"s_add_u32 m0, {sr(sLB)}, {(e % 10) * 2048 + hf * 1024}")
        A(f"s_mov_b32 {sr(sT0)}, {row * 1024}")
        w2_tok[e] = dma(A, dP if kind < 2 else dG, SW2, sr(sT0))


w2_rd = {}


def w2_drain(e):
    A.wait(vm=w2_tok[e])
    for ch in range(2):
        for h in range(2):
            w2_rd[e] = A.ds(f"ds_read_b64_tr_b16 {vr(dW2 + 8 * e + 4 * ch + 2 * h, 2)}, v{dR + ch} offset:{(e % 10) * 2048 + h * 512}")


for e in range(3):
    w2_issue(e)
A.wait(vm=ht[3], lg=A.lg_n)
A("s_barrier")
if OPT["pretouch"]:
    A(f"v_lshlrev_b32 v8, 7, v0")
    A(f"s_and_b32 {sr(sT0)}, {sr(sW)}, 1")
    A(f"s_mul_i32 {sr(sT0)}, {sr(sT0)}, {44 * 128}")
    A(f"s_lshr_b32 {sr(sT1)}, {sr(sW)}, 1")
    A(f"s_mul_i32 {sr(sT1)}, {sr(sT1)}, {H1H}")
    A(f"s_add_u32 {sr(sT0)}, {sr(sT0)}, {sr(sT1)}")
    A(f"s_mul_i32 {sr(sT1)}, {sr(sJ)}, {11 * 1024}")
    A(f"s_add_u32 {sr(sT0)}, {sr(sT0)}, {sr(sT1)}")
    A(f"s_add_u32 {sr(sT0)}, {sr(sT0)}, {sr(sWSB)}")
    A(f"s_add_u32 {sr(sT0)}, {sr(sT0)}, {WH1}")
    A("s_mov_b32 exec_hi, 0xfff")
    A.vm(f"buffer_load_dword v9, v8, {srd(SWS)}, {sr(sT0)} offen sc1")
    A("s_mov_b32 exec_hi, -1")
DIST = 6
for e in range(3, DIST):
    w2_issue(e)
for e in range(22):
    if e + DIST < 22:
        if e + DIST - 10 >= 0:
            A.wait(lg=w2_rd[e + DIST - 10])
        w2_issue(e + DIST)
    w2_drain(e)
stamp(A, 13)
dAC, dHF, dPW = 8, 40, 4
NHF = 10
A(f"v_and_b32 v1, 7, v0")
A(f"s_lshl_b32 {sr(sT0)}, {sr(sW)}, 5")
A(f"s_add_u32 {sr(sT0)}, {sr(sT0)}, {sr(sWSB)}")
A(f"s_add_u32 {sr(sT0)}, {sr(sT0)}, {FLD}")
A(f"v_lshl_add_u32 v2, v1, 2, {sr(sT0)}")
A.wait_lg0()
A(f"v_lshrrev_b32 v8, 5, v0")
A(f"v_xor_b32 v8, v8, v1")
A(f"v_lshlrev_b32 v8, 4, v8")
A(f"v_and_b32 v9, 31, v0")
A(f"v_lshl_add_u32 v8, v9, 8, v8")
A(f"v_add_u32 v{dPW}, {sr(sLB)}, v8")
for a in range(1, 4):
    A(f"v_xor_b32 v{dPW + a}, {32 * a}, v{dPW}")
A(f"s_mul_i32 {sr(sT6)}, {sr(sW)}, {22 * 1024}")
A(f"s_add_u32 {sr(sT6)}, {sr(sT6)}, {sr(sWSB)}")
A(f"s_add_u32 {sr(sT6)}, {sr(sT6)}, {WH1}")
poll(A, 2, None, 1, 8)
A("s_setprio 1")
stamp(A, 14)
h1_tok = {}


def h1_load(q):
    half, e = divmod(q, 22)
    if e % 4 == 0:
        A(f"s_add_u32 {sr(sT0)}, {sr(sT6)}, {half * H1H + e * 1024}")
    h1_tok[q] = A.vm(f"buffer_load_dwordx4 {vr(dHF + 4 * (q % NHF), 4)}, v{aKS}, {srd(SWS)}, {sr(sT0)} offen offset:{(e % 4) * 1024} sc1")


for q in range(NHF):
    h1_load(q)
for q in range(44):
    half, e = divmod(q, 22)
    A.wait(vm=h1_tok[q])
    for ch in range(2):
        mf32(A, dAC + 16 * ch, dW2 + 8 * e + 4 * ch, dHF + 4 * (q % NHF), "0" if e == 0 else None)
    if q + NHF < 44:
        h1_load(q + NHF)
    if e == 21:
        for ch in range(2):
            for a in range(4):
                A.ds(f"ds_write_b128 v{dPW + a}, {vr(dAC + 16 * ch + 4 * a, 4)} offset:{half * 8192 + ch * 128}")
        A.wait_lg0()
        A("s_barrier")
dump_stamps(A, 1)
A("L_exit:")
A("s_endpgm")

rep = []
body = pad_hazards(P.L + B.L, rep) + pad_hazards(A.L, rep) + pad_hazards(F.L) + tail
nb = lambda L: sum(1 for x in L if x.strip().startswith("s_barrier"))
assert nb(A.L) == nb(B.L), (nb(A.L), nb(B.L))
hdr = open("sequential_preLN__sliding_block__mixer_channel_mlp__prompt.s.ref").read().split("; Override launch")[0]
out = hdr + f"""; One persistent launch: 256 workgroups x 8 waves; generated by gen/gen.py ({' '.join(f'{k}={v}' for k, v in OPT.items())})
; @launch grid=(256,1,1) block=(512,1,1) lds={LDS_BYTES}
.amdgcn_target "amdgcn-amd-amdhsa--gfx950"
.text
.globl {NAME}
.p2align 8
.type {NAME},@function
{NAME}:
""" + "\n".join(body) + f"""
L_end:
    s_endpgm
.section .rodata,"a"
.p2align 6
.amdhsa_kernel {NAME}
  .amdhsa_next_free_vgpr 256
  .amdhsa_next_free_sgpr 102
  .amdhsa_accum_offset 256
  .amdhsa_group_segment_fixed_size 0
  .amdhsa_kernarg_size 88
  .amdhsa_user_sgpr_count 2
  .amdhsa_user_sgpr_kernarg_segment_ptr 1
  .amdhsa_system_sgpr_workgroup_id_x 1
.end_amdhsa_kernel
"""
open(sys.argv[1], "w").write(out)
tot = sum(r[0] for r in rep)
print(f"wrote {sys.argv[1]}: {len(body)} lines, barriers {nb(A.L)}, padded states {tot}", file=sys.stderr)
if "-v" in sys.argv[1]:
    pass
for r in rep:
    if r[0] >= 3:
        print("  pad", r, file=sys.stderr)
```

```python
import sys, struct
from asmlib import Stream, pad_hazards, vr, sr

NAME = "sequential_preLN__sliding_block__mixer_channel_mlp__prompt_kernel"

OPT = dict(stamps=0, warm=1, pretouch=1, local=1, g1=4, g2a=3, rotw=1, force_fb=0, codepf=1, xnt=0, diag=0, da='', db='', dk=1, dteam=0, set='main', infl=6, rot1=1, fa=0, wb=0, outsc=0)
for a in sys.argv[2:]:
    k, v = a.split("=")
    assert k in OPT, k
    OPT[k] = v if isinstance(OPT[k], str) else int(v)


def f2u(x):
    return struct.unpack("<I", struct.pack("<f", x))[0]


def hx(x):
    return hex(x & 0xffffffff)


SX, SWQ, SWO, SW1, SW2, SWS, SOUT, SB1, SB2, SDBG = 4, 8, 12, 16, 20, 24, 28, 32, 36, 40
sRB, sJ, sW, sROT, sWSB, sNONCE, sXCC, sRO = 44, 45, 46, 47, 48, 49, 50, 51
sT0, sT1, sT2, sT3, sT4, sT5, sT6, sT7 = 52, 53, 54, 55, 56, 57, 58, 59
sM0, sM1, sM2, sM3 = 60, 62, 64, 66
sCNT = 68
sLB = 69
sSTAMP = 70
srd = lambda b: sr(b, 4)

RBS = 0x80000
WKV, WO_, WH, WH1, WST, WFL = 0, 0x20000, 0x30000, 0x40000, 0x6C000, 0x70000
FLA, FLX, FLB, FLC, FLD = WFL, WFL + 0x1000, WFL + 0x1080, WFL + 0x1100, WFL + 0x1180
WSTAMP = 0x78000
WEPOCH = 0x7F000
H1H = 88 * 1024
WS_BYTES = 32 * RBS
OOB = 0x4000000

LDS_BYTES = 163840
SLOT = 32768
L_G0 = 98304
L_MISC = 159744
L_RS, L_NM, L_NONCE, L_C4, L_IB = L_MISC, L_MISC + 256, L_MISC + 512, L_MISC + 1024, L_MISC + 2048
L_HALO, HBLK, HHEAD = 0, 2080, 16640
L_OWNV = 66560
L_WO = 94208
L_HST = 86016
W1S = 12288
W2W = 21504

TIMEOUT = 200000
tail = []
_lab = [0]


def lab(p):
    _lab[0] += 1
    return f"L_{p}{_lab[0]}"


STN = {}


def stamp(S, name, sets="main"):
    nm = STN.setdefault(id(S), ["t0"])
    if OPT["stamps"] and (OPT["set"] in sets.split() or name in (OPT["da"], OPT["db"])):
        assert len(nm) < 15
        S(f"s_memtime {sr(sSTAMP + 2 * len(nm), 2)}")
        nm.append(name)


def dma(S, vaddr, base, soff, off=0, fl=""):
    o = f" offset:{off}" if off else ""
    fl = f" {fl}" if fl else ""
    return S.vm(f"buffer_load_dwordx4 {vr(vaddr)}, {srd(base)}, {soff} offen{o}{fl} lds")


def bg(S, *a, **k):
    S.wait(vm=S.vm_n - OPT["infl"] + 1)
    return dma(S, *a, **k)


def pub(S, stores):
    slow, join = lab("slow"), lab("join")
    S(f"s_cbranch_vccz {slow}")
    t = None
    for st in stores:
        t = S.vm(st)
    S(f"{join}:")
    tail.append(f"{slow}:")
    for st in stores:
        tail.append("    " + st + " sc1")
    tail.append(f"    s_branch {join}")
    return t


def poll(S, vaddr, vmask, vt, vu):
    lp, dn = lab("poll"), lab("pdone")
    S(f"s_mov_b32 {sr(sCNT)}, 0")
    S(f"{lp}:")
    S.vm(f"buffer_load_dword {vr(vt)}, {vr(vaddr)}, {srd(SWS)}, 0 offen sc1")
    S(f"s_add_u32 {sr(sCNT)}, {sr(sCNT)}, 1")
    S(f"s_cmp_gt_u32 {sr(sCNT)}, {TIMEOUT}")
    S.wait_vm0()
    S(f"s_cbranch_scc1 {dn}")
    if vmask is None:
        S(f"v_cmp_ne_u32 {sr(sM0, 2)}, {sr(sNONCE)}, {vr(vt)}")
    else:
        S(f"v_xor_b32 {vr(vu)}, {sr(sNONCE)}, {vr(vt)}")
        S(f"v_and_b32 {vr(vu)}, {vr(vu)}, {vr(vmask)}")
        S(f"v_cmp_ne_u32 {sr(sM0, 2)}, 0, {vr(vu)}")
    S(f"s_cmp_lg_u64 {sr(sM0, 2)}, 0")
    S(f"s_cbranch_scc1 {lp}")
    S(f"{dn}:")


def mf16(S, d, a, b, c=None):
    S(f"v_mfma_f32_16x16x32_bf16 {vr(d, 4)}, {vr(a, 4)}, {vr(b, 4)}, {vr(d, 4) if c is None else c}")


def mf32(S, d, a, b, c=None):
    S(f"v_mfma_f32_32x32x16_bf16 {vr(d, 16)}, {vr(a, 4)}, {vr(b, 4)}, {vr(d, 16) if c is None else c}")


def diag_spin(S, team):
    if OPT["diag"] == 1 and team == 0:
        if OPT["wb"] == 9:
            S("s_waitcnt vmcnt(0)")
            S.raw("buffer_wbl2 sc1")
        S("s_mov_b32 s52, 0")
        S("L_diag:")
        for _ in range(64):
            S("s_nop 15")
        S("s_add_u32 s52, s52, 1")
        S(f"s_cmp_lt_u32 s52, {OPT['dk']}")
        S("s_cbranch_scc1 L_diag")
    if OPT["diag"] == 2 and team == OPT["dteam"]:
        S("s_memtime s[52:53]")
        S("s_waitcnt lgkmcnt(0)")
        S(f"s_sub_u32 s54, {sr(sSTAMP + 2 * STN[id(S)].index(OPT['db']))}, {sr(sSTAMP + 2 * STN[id(S)].index(OPT['da']))}")
        S(f"s_mul_i32 s54, s54, {OPT['dk']}")
        S("L_diag:")
        S("s_memtime s[56:57]")
        S("s_waitcnt lgkmcnt(0)")
        S("s_sub_u32 s56, s56, s52")
        S("s_cmp_lt_u32 s56, s54")
        S("s_cbranch_scc1 L_diag")


def dump_stamps(S, team):
    if OPT["diag"] == 3 and team == 0:
        S("s_memrealtime s[52:53]")
        S("s_waitcnt lgkmcnt(0)")
        S(f"s_sub_u32 s54, s52, {sr(sSTAMP + 30)}")
        S("L_diag:")
        S("s_memrealtime s[56:57]")
        S("s_waitcnt lgkmcnt(0)")
        S("s_sub_u32 s56, s56, s52")
        S("s_cmp_lt_u32 s56, s54")
        S("s_cbranch_scc1 L_diag")
    diag_spin(S, team)
    if OPT["stamps"] != 1:
        return
    S("s_waitcnt lgkmcnt(0)")
    S(f"s_lshl_b32 {sr(sT0)}, {sr(sJ)}, 10")
    S(f"s_lshl_b32 {sr(sT1)}, {sr(sW)}, 7")
    S(f"s_add_u32 {sr(sT0)}, {sr(sT0)}, {sr(sT1)}")
    S(f"s_add_u32 {sr(sT0)}, {sr(sT0)}, {WSTAMP + team * 512}")
    S(f"s_add_u32 {sr(sT0)}, {sr(sT0)}, {sr(sWSB)}")
    S("v_mov_b32 v1, 0")
    for i in range(16):
        S(f"v_mov_b32 v2, {sr(sSTAMP + 2 * i)}")
        S.vm(f"buffer_store_dword v2, v1, {srd(SWS)}, {sr(sT0)} offen offset:{4 * i}")
    S.wait_vm0()


P = Stream()
SRDS = {SX: (0, 2097152), SWQ: (8, 1572864), SWS: (80, WS_BYTES), SW1: (32, 1409024), SWO: (16, 524288), SW2: (48, 1409024),
        SB1: (40, 2752), SB2: (56, 1024), SOUT: (64, 2097152), SDBG: (72, 256)}


def srd_load(S, bases):
    for b in bases:
        S(f"s_load_dwordx2 {sr(b, 2)}, s[0:1], {SRDS[b][0]}")


def srd_fill(S, bases):
    for b in bases:
        S(f"s_mov_b32 {sr(b + 2)}, {SRDS[b][1]}")
        S(f"s_mov_b32 {sr(b + 3)}, 0x20000")


srd_load(P, (SX, SWQ))
P("s_cmp_ge_u32 s2, 256")
P("s_cbranch_scc1 L_exit")
if OPT["stamps"]:
    P(f"s_memtime {sr(sSTAMP, 2)}")
    P(f"s_memrealtime {sr(sSTAMP + 30, 2)}")
P(f"s_bfe_u32 {sr(sJ)}, s2, 0x30003")
if OPT["codepf"]:
    P(f"s_getpc_b64 {sr(sM0, 2)}")
    P("L_pc:")
    P(f"s_mov_b32 {sr(sM0 + 2)}, L_end-L_pc")
    P(f"s_mov_b32 {sr(sM0 + 3)}, 0x20000")
    P(f"s_lshl_b32 {sr(sT0)}, {sr(sJ)}, 7")
    P("v_lshrrev_b32 v1, 4, v0")
    P("v_lshlrev_b32 v1, 10, v1")
    P("s_mov_b32 exec_lo, 0x10001")
    P("s_mov_b32 exec_hi, 0x10001")
    P.raw(f"buffer_load_dword v255, v1, {srd(sM0)}, {sr(sT0)} offen")
    P("s_mov_b64 exec, -1")
P(f"v_readfirstlane_b32 {sr(sT0)}, v0")
P("v_and_b32 v0, 63, v0")
P(f"s_lshr_b32 {sr(sT1)}, s2, 6")
P(f"s_and_b32 {sr(sT2)}, s2, 7")
P(f"s_lshl2_add_u32 {sr(sRB)}, {sr(sT2)}, {sr(sT1)}")
P(f"s_bfe_u32 {sr(sW)}, {sr(sT0)}, 0x20006")
P(f"s_cmp_ge_u32 {sr(sT0)}, 256")
P("s_cbranch_scc1 L_teamA")


def late_ids(S):
    S(f"s_lshl_b32 {sr(sWSB)}, {sr(sRB)}, 19")
    if OPT["rotw"] == 1:
        S(f"s_lshl_b32 {sr(sRO)}, s2, 2")
        S(f"s_and_b32 {sr(sRO)}, {sr(sRO)}, 12")
    elif OPT["rotw"] == 2:
        S(f"s_lshr_b32 {sr(sRO)}, s2, 6")
        S(f"s_lshl_b32 {sr(sRO)}, {sr(sRO)}, 2")
    else:
        S(f"s_mov_b32 {sr(sRO)}, 0")


B = Stream()
bX0, bX1, bWA = 1, 2, 3
bW1A = 4
bW1R = 7
bSA = 10
bONE = 16
bSUM, bSQ = 20, 24
bXF = 28
bT = 36
bCS = 48
bB1 = 60
bW1 = 64

B("s_setprio 2")
srd_fill(B, (SX, SWQ))
if OPT["rot1"] == 1:
    B(f"s_add_u32 {sr(sROT)}, {sr(sT2)}, {sr(sJ)}")
elif OPT["rot1"] == 2:
    B(f"s_lshl1_add_u32 {sr(sROT)}, {sr(sT1)}, {sr(sJ)}")
    B(f"s_and_b32 {sr(sT2)}, {sr(sT2)}, 1")
    B(f"s_add_u32 {sr(sROT)}, {sr(sROT)}, {sr(sT2)}")
elif OPT["rot1"] == 3:
    B(f"s_and_b32 {sr(sT1)}, {sr(sT1)}, 1")
    B(f"s_lshl2_add_u32 {sr(sROT)}, {sr(sT1)}, {sr(sJ)}")
    B(f"s_add_u32 {sr(sROT)}, {sr(sROT)}, {sr(sT2)}")
else:
    B(f"s_mov_b32 {sr(sROT)}, {sr(sJ)}")
B(f"v_lshrrev_b32 v{bT}, 3, v0")
B(f"v_lshrrev_b32 v{bT + 1}, 4, v0")
B(f"v_and_b32 v{bT + 2}, 7, v0")
B(f"s_lshl_b32 {sr(sT0)}, {sr(sRB)}, 16")
B(f"s_lshl_b32 {sr(sT1)}, {sr(sW)}, 14")
B(f"s_add_u32 {sr(sT0)}, {sr(sT0)}, {sr(sT1)}")
B(f"v_xor_b32 v{bT + 3}, v{bT + 2}, v{bT + 1}")
B(f"v_lshlrev_b32 v{bT + 3}, 4, v{bT + 3}")
B(f"v_lshl_add_u32 v{bT + 3}, v{bT}, 10, v{bT + 3}")
B(f"v_add_u32 v{bX0}, {sr(sT0)}, v{bT + 3}")
B(f"v_xor_b32 v{bX1}, 64, v{bX0}")
B(f"v_add_u32 v{bX1}, 7168, v{bX1}")
B(f"s_and_b32 {sr(sT0)}, {sr(sW)}, 1")
B(f"s_lshl_b32 {sr(sT0)}, {sr(sT0)}, 2")
B(f"v_and_b32 v{bT + 3}, 1, v{bT + 1}")
B(f"v_lshl_or_b32 v{bT + 3}, v{bT + 3}, 1, {sr(sT0)}")
B(f"v_xor_b32 v{bT + 3}, v{bT + 3}, v{bT + 2}")
B(f"v_lshlrev_b32 v{bT + 3}, 4, v{bT + 3}")
B(f"s_mul_i32 {sr(sT0)}, {sr(sW)}, {8 * 3072}")
B(f"s_lshl_b32 {sr(sT1)}, {sr(sJ)}, 7")
B(f"s_add_u32 {sr(sT0)}, {sr(sT0)}, {sr(sT1)}")
B(f"v_mul_u32_u24 v{bT + 4}, 3072, v{bT}")
B(f"v_add3_u32 v{bWA}, v{bT + 3}, v{bT + 4}, {sr(sT0)}")
sXM, sWM, sSL = sT4, sT5, sT6
B(f"s_lshl_b32 {sr(sXM)}, {sr(sW)}, 11")
B(f"s_mul_i32 {sr(sWM)}, {sr(sW)}, 3072")
B(f"s_and_b32 {sr(sSL)}, {sr(sROT)}, 7")
stamp(B, "prek", "start")
B("s_waitcnt lgkmcnt(0)")
stamp(B, "karg", "start")

tok_s1 = {}


def s1_issue(s, part):
    slot = (s % 3) * SLOT
    if part == 0:
        B(f"s_add_u32 m0, {sr(sXM)}, {slot}")
        B(f"s_lshl_b32 {sr(sT0)}, {sr(sSL)}, 7")
        fl = "nt" if OPT["xnt"] else ""
        dma(B, bX0, SX, sr(sT0), 0, fl)
        dma(B, bX1, SX, sr(sT0), 1024, fl)
        B(f"s_add_u32 m0, {sr(sWM)}, {slot + 8192}")
        B(f"s_mul_i32 {sr(sT1)}, {sr(sSL)}, 196608")
        dma(B, bWA, SWQ, sr(sT1), 1024)
        dma(B, bWA, SWQ, sr(sT1), 2048)
    else:
        tok_s1[(s, 0)] = dma(B, bWA, SWQ, sr(sT1), 0)
        B(f"s_add_u32 m0, {sr(sWM)}, {slot + 8192 + 12288}")
        B(f"s_add_u32 {sr(sT1)}, {sr(sT1)}, 98304")
        for m in (1, 2, 0):
            tok_s1[(s, 1)] = dma(B, bWA, SWQ, sr(sT1), m * 1024)
        B(f"s_add_u32 {sr(sSL)}, {sr(sSL)}, 1")
        B(f"s_and_b32 {sr(sSL)}, {sr(sSL)}, 7")


s1_issue(0, 0)
stamp(B, "iss5", "start")
s1_issue(0, 1)
stamp(B, "iss8", "start")
REST = (SWS, SW1, SWO, SW2, SB1, SB2, SOUT, SDBG)
srd_load(B, REST)
srd_fill(B, REST)
late_ids(B)
B(f"s_mul_i32 {sr(sT0)}, {sr(sW)}, {8 * 2752}")
B(f"s_mul_i32 {sr(sT2)}, {sr(sJ)}, 352")
B(f"s_add_u32 {sr(sT0)}, {sr(sT0)}, {sr(sT2)}")
B(f"s_mul_i32 {sr(sT2)}, {sr(sJ)}, 22")
B(f"s_sub_u32 {sr(sT2)}, 172, {sr(sT2)}")
B(f"s_min_u32 {sr(sT2)}, {sr(sT2)}, 22")
B(f"s_mov_b32 {sr(sT3)}, 2752")
for i in range(3):
    B(f"v_add_u32 v{bT + 3}, {64 * i}, v0")
    B(f"v_mul_u32_u24 v{bT + 4}, 171, v{bT + 3}")
    B(f"v_lshrrev_b32 v{bT + 4}, 12, v{bT + 4}")
    B(f"v_mul_u32_u24 v{bT + 5}, 24, v{bT + 4}")
    B(f"v_sub_u32 v{bT + 5}, v{bT + 3}, v{bT + 5}")
    B(f"v_and_b32 v{bT + 6}, 6, v{bT + 4}")
    B(f"v_xor_b32 v{bT + 5}, v{bT + 5}, v{bT + 6}")
    B(f"v_cmp_gt_u32 {sr(sM0, 2)}, {sr(sT2)}, v{bT + 5}")
    B(f"v_lshlrev_b32 v{bT + 5}, 4, v{bT + 5}")
    B(f"v_mad_u32_u24 v{bT + 5}, v{bT + 4}, {sr(sT3)}, v{bT + 5}")
    B(f"v_add_u32 v{bT + 5}, {sr(sT0)}, v{bT + 5}")
    if i:
        B(f"v_subrev_u32 v{bT + 5}, {1024 * i}, v{bT + 5}")
    B(f"v_mov_b32 v{bT + 6}, {hx(OOB)}")
    B(f"v_cndmask_b32 v{bW1A + i}, v{bT + 6}, v{bT + 5}, {sr(sM0, 2)}")
B(f"v_lshrrev_b32 v{bT + 3}, 2, v0")
B(f"v_bfe_u32 v{bT + 4}, v0, 3, 2")
B(f"v_and_b32 v{bT + 5}, 3, v0")
B(f"v_lshlrev_b32 v{bT + 5}, 3, v{bT + 5}")
B(f"v_mul_u32_u24 v{bT + 3}, 384, v{bT + 3}")
B(f"v_add_u32 v{bT + 3}, v{bT + 3}, v{bT + 5}")
B(f"v_add_u32 v{bT + 3}, {L_G0}, v{bT + 3}")
B(f"s_mul_i32 {sr(sT0)}, {sr(sW)}, 3")
for n in range(3):
    B(f"v_xor_b32 v{bT + 5}, {sr(sT0)}, v{bT + 4}")
    B(f"v_lshl_add_u32 v{bW1R + n}, v{bT + 5}, 5, v{bT + 3}")
    B(f"s_add_u32 {sr(sT0)}, {sr(sT0)}, 1")
B(f"v_and_b32 v{bT + 3}, 15, v0")
B(f"v_lshrrev_b32 v{bT + 4}, 1, v{bT + 3}")
B(f"v_xor_b32 v{bT + 4}, v{bT + 4}, v{bT + 1}")
B(f"v_lshlrev_b32 v{bT + 4}, 4, v{bT + 4}")
B(f"v_lshl_add_u32 v{bT + 4}, v{bT + 3}, 7, v{bT + 4}")
B(f"v_add_u32 v{bSA}, {sr(sXM)}, v{bT + 4}")
B(f"v_xor_b32 v{bSA + 1}, 64, v{bSA}")
B(f"v_add_u32 v{bSA + 2}, 0x10000, v{bSA}")
B(f"v_add_u32 v{bSA + 3}, 0x10000, v{bSA + 1}")
for i in range(4):
    B(f"v_mov_b32 v{bONE + i}, 0x3f803f80")
sW1K = sT7
B(f"s_mov_b32 {sr(sW1K)}, {sr(sRO)}")
B("s_waitcnt lgkmcnt(0)")
s1_issue(1, 0)
stamp(B, "iss12", "main start")

w1_tok = {}
w1_next = [0]


def w1_issue(lds, thr=True):
    i = w1_next[0]
    w1_next[0] += 1
    B(f"s_add_u32 m0, {sr(sWM)}, {lds}")
    B(f"s_mul_i32 {sr(sT0)}, {sr(sW1K)}, 88064")
    for n in range(3):
        t = (bg if thr else dma)(B, bW1A + n, SW1, sr(sT0), n * 1024)
    B(f"s_add_u32 {sr(sW1K)}, {sr(sW1K)}, 1")
    B(f"s_and_b32 {sr(sW1K)}, {sr(sW1K)}, 15")
    w1_tok[i] = t
    return t


w1_base = [L_G0]


def w1_drain(first, count, lds):
    if lds != w1_base[0]:
        for n in range(3):
            B(f"v_add_u32 v{bW1R + n}, {hx(lds - w1_base[0])}, v{bW1R + n}")
        w1_base[0] = lds
    for i in range(count):
        for n in range(3):
            for h in range(2):
                B.ds(f"ds_read_b64_tr_b16 {vr(bW1 + 12 * (first + i) + 4 * n + 2 * h, 2)}, v{bW1R + n} offset:{i * W1S + h * 6144}")


def w1_colsum(first, count):
    for i in range(first, first + count):
        for n in range(3):
            mf16(B, bCS + 4 * n, bONE, bW1 + 12 * i + 4 * n, "0" if i == 0 else None)


def st_mf(n):
    mf16(B, bSUM, bONE, bXF + 4 * (n & 1), "0" if n == 0 else None)
    mf16(B, bSQ, bXF + 4 * (n & 1), bXF + 4 * (n & 1), "0" if n == 0 else None)


for n in range(16):
    s, t = n >> 1, n & 1
    B.wait(vm=tok_s1[(s, t)], lg=B.lg_n)
    if n == 0:
        stamp(B, "land0", "start")
    B("s_barrier")
    if n == 0:
        stamp(B, "bar0", "main start")
    elif n in (2, 4, 6, 8, 10, 12, 14):
        stamp(B, f"bar{n}", "start")
    sl = s % 3
    tk = B.ds(f"ds_read_b128 {vr(bXF + 4 * t, 4)}, v{bSA + t + (2 if sl == 2 else 0)} offset:{(sl & 1) * SLOT}")
    if n:
        st_mf(n - 1)
    q = n + 3
    if q < 16:
        s1_issue(q >> 1, q & 1)
    elif n < 15:
        w1_issue(L_G0 + w1_next[0] * W1S, False)
B.wait(lg=tk)
st_mf(15)
stamp(B, "s1end")
B(f"v_and_b32 v{bT}, 3, v0")
B(f"v_cmp_eq_u32 {sr(sM0, 2)}, 1, v{bT}")
B(f"v_cmp_eq_u32 {sr(sM1, 2)}, 2, v{bT}")
B(f"v_cmp_eq_u32 {sr(sM2, 2)}, 3, v{bT}")
B(f"v_and_b32 v{bT + 2}, 15, v0")
B(f"s_lshl_b32 {sr(sT0)}, {sr(sW)}, 6")
B(f"s_add_u32 {sr(sT0)}, {sr(sT0)}, {L_RS}")
B(f"v_lshl_add_u32 v{bT + 2}, v{bT + 2}, 2, {sr(sT0)}")
B(f"v_mul_f32 v{bT + 3}, {hx(f2u(-1.0 / 512))}, v{bSUM}")
B(f"v_cndmask_b32 v{bT + 1}, v{bSQ}, v{bSQ + 1}, {sr(sM0, 2)}")
B(f"v_cndmask_b32 v{bT + 1}, v{bT + 1}, v{bSQ + 2}, {sr(sM1, 2)}")
B(f"v_cndmask_b32 v{bT + 1}, v{bT + 1}, v{bSQ + 3}, {sr(sM2, 2)}")
B(f"v_mul_f32 v{bT + 1}, {hx(f2u(1.0 / 512))}, v{bT + 1}")
B(f"v_fma_f32 v{bT + 1}, -v{bT + 3}, v{bT + 3}, v{bT + 1}")
B(f"v_max_f32 v{bT + 1}, 0, v{bT + 1}")
B(f"v_add_f32 v{bT + 1}, {hx(f2u(1e-5))}, v{bT + 1}")
B(f"v_rsq_f32 v{bT + 1}, v{bT + 1}")
B("s_mov_b32 exec_lo, 0x00f0000f")
B("s_mov_b32 exec_hi, 0xf0000f00")
B(f"v_mul_f32 v{bT + 3}, v{bT + 3}, v{bT + 1}")
B.ds(f"ds_write2st64_b32 v{bT + 2}, v{bT + 1}, v{bT + 3} offset0:0 offset1:1")
B("s_mov_b64 exec, -1")
B.wait_lg0()
B("s_barrier")
B("s_setprio 0")
stamp(B, "S1e")
B(f"v_mov_b32 v{bT}, {L_NONCE}")
tk = B.ds(f"ds_read_b32 v{bT + 1}, v{bT}")
while w1_next[0] < 5:
    w1_issue(L_G0 + w1_next[0] * W1S)
G1 = OPT["g1"]
G2A = OPT["g2a"]
G2B = 16 - 5 - G1 - G2A
assert 0 <= G2B <= 5 and G2A + G2B <= 7 and G1 <= 5
w1_issue(L_HALO)
B.wait(lg=tk)
B(f"v_readfirstlane_b32 {sr(sNONCE)}, v{bT + 1}")
bPA, bPM = 28, 29
B(f"s_getreg_b32 {sr(sXCC)}, hwreg(HW_REG_XCC_ID, 0, 4)")
B(f"s_lshl2_add_u32 {sr(sT0)}, {sr(sJ)}, {sr(sW)}")
B(f"s_lshl_b32 {sr(sT0)}, {sr(sT0)}, 7")
B(f"s_add_u32 {sr(sT0)}, {sr(sT0)}, {sr(sWSB)}")
B(f"s_add_u32 {sr(sT0)}, {sr(sT0)}, {hx(FLA - RBS)}")
B(f"v_lshlrev_b32 v{bT}, 19, v0")
B(f"v_sub_u32 v{bT}, {sr(sT0)}, v{bT}")
B(f"v_and_b32 v{bT + 1}, 7, v0")
B(f"s_add_u32 {sr(sT1)}, {sr(sWSB)}, {FLX}")
B(f"v_lshl_add_u32 v{bT + 1}, v{bT + 1}, 2, {sr(sT1)}")
B(f"s_min_u32 {sr(sT2)}, {sr(sRB)}, 4")
B(f"v_cmp_gt_u32 {sr(sM0, 2)}, {sr(sT2)}, v0")
B(f"v_mov_b32 v{bT + 2}, -16")
B(f"v_cndmask_b32 v{bPA}, v{bT + 1}, v{bT}, {sr(sM0, 2)}")
B(f"v_cndmask_b32 v{bPM}, v{bT + 2}, -1, {sr(sM0, 2)}")
for i in range(1, 2 if G1 > 1 else 1):
    w1_issue(L_HALO + i * W1S)
B.wait(vm=w1_tok[4])
B("s_barrier")
w1_drain(0, 5, L_G0)
for i in range(2, G1):
    w1_issue(L_HALO + i * W1S)
bWO, bHL = 30, 31
B(f"v_lshrrev_b32 v{bT}, 3, v0")
B(f"v_and_b32 v{bT + 1}, 6, v{bT}")
B(f"v_and_b32 v{bT + 2}, 7, v0")
B(f"v_xor_b32 v{bT + 1}, v{bT + 1}, v{bT + 2}")
B(f"v_lshlrev_b32 v{bT + 1}, 4, v{bT + 1}")
B(f"v_lshl_add_u32 v{bT + 1}, v{bT}, 10, v{bT + 1}")
B(f"s_lshl_b32 {sr(sT0)}, {sr(sW)}, 13")
B(f"s_lshl_b32 {sr(sT1)}, {sr(sJ)}, 7")
B(f"s_add_u32 {sr(sT0)}, {sr(sT0)}, {sr(sT1)}")
B(f"v_add_u32 v{bWO}, {sr(sT0)}, v{bT + 1}")
B(f"s_lshl2_add_u32 {sr(sT0)}, {sr(sJ)}, {sr(sW)}")
B(f"s_lshl_b32 {sr(sT0)}, {sr(sT0)}, 12")
B(f"v_lshl_add_u32 v{bHL}, v0, 4, {sr(sT0)}")
B.wait(vm=B.vm_n, lg=B.lg_n)
B("s_barrier")
stamp(B, "D0")
w1_drain(5, G1, L_HALO)
B(f"v_lshrrev_b32 v{bT}, 1, v0")
B(f"v_add_u32 v{bT}, {sr(sRB)}, v{bT}")
B(f"v_cmp_le_u32 {sr(sM0, 2)}, 4, v{bT}")
B(f"s_mul_i32 {sr(sLB)}, {sr(sW)}, {HHEAD}")
B(f"v_mul_u32_u24 v{bT + 1}, {HBLK}, v0")
B(f"v_add_u32 v{bT + 1}, {sr(sLB)}, v{bT + 1}")
for i in range(4):
    B(f"v_cndmask_b32 v{bT + 4 + i}, 0, v{bONE}, {sr(sM0, 2)}")
B.wait_lg0()
B("s_barrier")
B("s_mov_b64 exec, 0xff")
B.ds(f"ds_write_b128 v{bT + 1}, {vr(bT + 4, 4)} offset:{L_HALO + 2048}")
B("s_mov_b64 exec, -1")
poll(B, bPA, bPM, bT + 2, bT + 3)
stamp(B, "pollA")
h_tok = []
for i in range(1, 5):
    B(f"s_sub_u32 {sr(sT0)}, {sr(sWSB)}, {i * RBS}")
    B(f"s_cselect_b32 {sr(sT0)}, {hx(OOB)}, {sr(sT0)}")
    for blk in (1, 0):
        B(f"s_add_u32 m0, {sr(sLB)}, {L_HALO + (8 - 2 * i + blk) * HBLK}")
        B(f"s_add_u32 {sr(sT1)}, {sr(sT0)}, {blk * 2048}")
        dma(B, bHL, SWS, sr(sT1), 0, "sc1")
        t = dma(B, bHL, SWS, sr(sT1), 1024, "sc1")
    h_tok.append(t)
    if i == 1:
        B(f"v_and_b32 v{bT + 2}, 15, v{bT + 2}")
        B(f"v_cmp_ne_u32 {sr(sM0, 2)}, {sr(sXCC)}, v{bT + 2}")
        B(f"s_and_b32 {sr(sT2)}, {sr(sM0)}, 0xff00")
        B(f"s_cselect_b64 vcc, 0, {-1 if OPT['local'] else 0}")
        B(f"v_mov_b32 v{bT}, {L_NONCE + 4}")
        B(f"v_mov_b32 v{bT + 1}, vcc_lo")
        B.ds(f"ds_write_b32 v{bT}, v{bT + 1}")
B.wait(vm=h_tok[0], lg=B.lg_n)
B("s_barrier")
stamp(B, "H0")
sWOK = sT6
B(f"s_mov_b32 {sr(sWOK)}, {sr(sRO)}")
B(f"s_lshl_b32 {sr(sT3)}, {sr(sW)}, 10")
wo_next = [0]


def wo_issue(cnt):
    for _ in range(cnt):
        n = wo_next[0]
        wo_next[0] += 1
        B(f"s_add_u32 m0, {sr(sT3)}, {L_WO + n * 4096}")
        B(f"s_lshl_b32 {sr(sT0)}, {sr(sWOK)}, 15")
        bg(B, bWO, SWO, sr(sT0))
        B(f"s_add_u32 {sr(sWOK)}, {sr(sWOK)}, 1")
        B(f"s_and_b32 {sr(sWOK)}, {sr(sWOK)}, 15")


wo_issue(4)
B.wait(vm=h_tok[1])
B("s_barrier")
wo_issue(6)
B.wait(vm=h_tok[3])
B("s_barrier")
wo_issue(6)
B(f"s_add_u32 m0, {sr(sXM)}, {L_HST}")
B(f"s_lshl_b32 {sr(sT0)}, {sr(sJ)}, 7")
dma(B, bX0, SX, sr(sT0), 0)
dma(B, bX1, SX, sr(sT0), 1024)
B(f"s_mul_i32 {sr(sT0)}, {sr(sJ)}, 352")
B(f"s_mul_i32 {sr(sT1)}, {sr(sW)}, 96")
B(f"s_add_u32 {sr(sT0)}, {sr(sT0)}, {sr(sT1)}")
B(f"v_and_b32 v{bT}, 15, v0")
B(f"v_lshlrev_b32 v{bT}, 1, v{bT}")
for n in range(3):
    t = B.vm(f"buffer_load_ushort v{bB1 + n}, v{bT}, {srd(SB1)}, {sr(sT0)} offen offset:{32 * n}")
if OPT["pretouch"]:
    B(f"v_and_b32 v{bT + 1}, 15, v0")
    B(f"v_lshlrev_b32 v{bT + 1}, 7, v{bT + 1}")
    B(f"v_bfe_u32 v{bT + 2}, v0, 4, 1")
    B(f"v_lshl_add_u32 v{bT + 1}, v{bT + 2}, 16, v{bT + 1}")
    B(f"s_lshl_b32 {sr(sT0)}, {sr(sW)}, 14")
    B(f"s_lshl_b32 {sr(sT1)}, {sr(sJ)}, 11")
    B(f"s_add_u32 {sr(sT0)}, {sr(sT0)}, {sr(sT1)}")
    B(f"s_add_u32 {sr(sT0)}, {sr(sT0)}, {WO_}")
    B(f"v_add_u32 v{bT + 1}, {sr(sT0)}, v{bT + 1}")
    B(f"s_lshl_b32 {sr(sT0)}, {sr(sW)}, 10")
    B(f"s_lshl_b32 {sr(sT1)}, {sr(sJ)}, 7")
    B(f"s_add_u32 {sr(sT0)}, {sr(sT0)}, {sr(sT1)}")
    B(f"s_add_u32 {sr(sT0)}, {sr(sT0)}, {WST}")
    B(f"v_writelane_b32 v{bT + 1}, {sr(sT0)}, 32")
    B(f"s_lshl_b32 {sr(sT0)}, {sr(sW)}, 7")
    B(f"s_add_u32 {sr(sT0)}, {sr(sT0)}, {FLX}")
    B(f"v_writelane_b32 v{bT + 1}, {sr(sT0)}, 33")
    B("s_mov_b32 exec_hi, 3")
    B.vm(f"buffer_load_dword v{bT + 2}, v{bT + 1}, {srd(SWS)}, {sr(sWSB)} offen sc1")
    B("s_mov_b32 exec_hi, -1")
B.wait(vm=t)
B("s_barrier")
stamp(B, "E")
for i in range(G2A):
    w1_issue(i * W1S)
w1_colsum(0, 5 + G1)
B.wait_vm0()
B("s_barrier")
for i in range(G2B):
    w1_issue((G2A + i) * W1S)
w1_drain(5 + G1, G2A, 0)
bHA, bCA, bIA, bSP, bSG = 1, 2, 3, 10, 11
B(f"v_lshlrev_b32 v{bHA}, 4, v0")
B(f"v_add_u32 v{bHA}, {L_WO}, v{bHA}")
B(f"v_and_b32 v{bT}, 15, v0")
B(f"v_lshlrev_b32 v{bT}, 4, v{bT}")
B(f"v_add_u32 v{bCA}, {L_C4}, v{bT}")
B(f"v_lshlrev_b32 v{bIA}, 3, v0")
B(f"v_add_u32 v{bIA}, {L_IB}, v{bIA}")
B(f"s_mul_i32 {sr(sT0)}, {sr(sJ)}, 11")
B(f"s_mul_i32 {sr(sT1)}, {sr(sW)}, 3")
B(f"s_add_u32 {sr(sT0)}, {sr(sT0)}, {sr(sT1)}")
B(f"s_lshl_b32 {sr(sT0)}, {sr(sT0)}, 10")
B(f"s_add_u32 {sr(sT0)}, {sr(sT0)}, {WH1}")
B(f"v_lshrrev_b32 v{bT + 1}, 4, v0")
B(f"v_lshl_add_u32 v{bT + 2}, v{bT + 1}, 9, v{bT}")
B(f"v_add_u32 v{bSP}, {sr(sT0)}, v{bT + 2}")
B(f"v_lshrrev_b32 v{bT + 2}, 5, v0")
B(f"v_lshl_add_u32 v{bT + 2}, v{bT + 2}, 9, v{bT}")
B(f"v_and_b32 v{bT + 1}, 1, v{bT + 1}")
B(f"v_lshl_add_u32 v{bT + 2}, v{bT + 1}, 3, v{bT + 2}")
B(f"s_add_u32 {sr(sT0)}, {sr(sT0)}, 2048")
B(f"s_cmp_eq_u32 {sr(sW)}, 3")
B(f"s_cselect_b32 {sr(sT0)}, {hx(OOB)}, {sr(sT0)}")
B(f"v_add_u32 v{bSG}, {sr(sT0)}, v{bT + 2}")
B.wait_lg0()
w1_colsum(5 + G1, G2A)
B.wait_vm0()
B("s_barrier")
stamp(B, "C1")
w1_drain(5 + G1 + G2A, G2B, G2A * W1S)
B(f"v_lshrrev_b32 v{bT}, 4, v0")
B(f"v_cmp_eq_u32 {sr(sM0, 2)}, 0, v{bT}")
B(f"v_cmp_eq_u32 {sr(sM1, 2)}, 1, v{bT}")
B.wait_lg0()
w1_colsum(5 + G1 + G2A, G2B)
bIN = 4
for n in range(3):
    cs = bCS + 4 * n
    B(f"v_cvt_pk_bf16_f32 v{bT}, v{cs}, 0")
    B(f"v_lshlrev_b32 v{bT + 1}, 16, v{bT}")
    B(f"v_sub_f32 v{bT + 1}, v{cs}, v{bT + 1}")
    B(f"v_cvt_pk_bf16_f32 v{bT + 1}, v{cs}, v{bT + 1}")
    B(f"v_lshl_or_b32 v{bT + 2}, v{bB1 + n}, 16, v{bB1 + n}")
    B(f"v_cndmask_b32 v{bT + 1}, 0, v{bT + 1}, {sr(sM1, 2)}")
    B(f"v_cndmask_b32 v{bIN + 2 * n}, v{bT + 1}, v{bT + 2}, {sr(sM0, 2)}")
    B(f"v_cndmask_b32 v{bIN + 2 * n + 1}, 0, v{bT}, {sr(sM1, 2)}")
B("s_setprio 2")
B("s_barrier")
stamp(B, "T0")
bHF = 12
bAC = 24
bC4 = 48
bIB = 52
bG = 54
sH1 = sT3


def gelu_ops(t):
    ac = bAC + 12 * (t & 1)
    ops = []
    for p in range(6):
        a0, a1 = ac + 2 * p, ac + 2 * p + 1
        g0, g1 = bG + 2 * (p & 1), bG + 2 * (p & 1) + 1
        ops += [f"v_mul_f32 v{g0}, v{a0}, v{a0}", f"v_mul_f32 v{g1}, v{a1}, v{a1}",
                f"v_fma_f32 v{g0}, v{g0}, v{bC4 + 1}, v{bC4}", f"v_fma_f32 v{g1}, v{g1}, v{bC4 + 1}, v{bC4}",
                f"v_mul_f32 v{g0}, v{g0}, v{a0}", f"v_mul_f32 v{g1}, v{g1}, v{a1}",
                f"v_exp_f32 v{g0}, v{g0}", f"v_exp_f32 v{g1}, v{g1}",
                f"v_fma_f32 v{g0}, v{g0}, v{bC4 + 2}, v{bC4 + 2}", f"v_fma_f32 v{g1}, v{g1}, v{bC4 + 2}, v{bC4 + 2}",
                f"v_rcp_f32 v{g0}, v{g0}", f"v_rcp_f32 v{g1}, v{g1}",
                f"v_mul_f32 v{g0}, v{g0}, v{a0}", f"v_mul_f32 v{g1}, v{g1}, v{a1}",
                f"v_cvt_pk_bf16_f32 v{ac + p if p < 4 else ac + 4 + p}, v{g0}, v{g1}"]
        if p == 3:
            ops.append(("st", f"buffer_store_dwordx4 {vr(ac, 4)}, v{bSP}, {srd(SWS)}, {sr(sH1)} offen offset:{(t & 1) * 256}"))
        if p == 5:
            ops.append(("st", f"buffer_store_dwordx2 {vr(ac + 8, 2)}, v{bSG}, {srd(SWS)}, {sr(sH1)} offen offset:{(t & 1) * 256}"))
    return ops


def emit_g(op):
    if isinstance(op, tuple):
        pub(B, [op[1]])
    else:
        B(op)


def cost(op):
    if isinstance(op, tuple):
        return 8
    return 8 if op.startswith(("v_exp", "v_rcp")) else 4


B(f"s_mov_b32 {sr(sH1)}, {sr(sWSB)}")
hf_tok = {}
NF = 64


def hf_read(q):
    if q < NF:
        hf_tok[q] = B.ds(f"ds_read_b128 {vr(bHF + 4 * (q % 3), 4)}, v{bHA} offset:{q * 1024}")


hf_read(0)
hf_read(1)
for t in range(4):
    ac = bAC + 12 * (t & 1)
    g = gelu_ops(t - 1) if t else []
    tot = sum(cost(o) for o in g)
    done = 0
    gi = 0
    if t:
        c4t = B.ds(f"ds_read_b128 {vr(bC4, 4)}, v{bCA} offset:{(t - 1) * 256}")
    if t == 3:
        B(f"s_add_u32 {sr(sH1)}, {sr(sWSB)}, {H1H}")
    nm = 0
    for i in range(16):
        q = 16 * t + i
        if q == 13:
            B.wait_lg0()
            B("s_barrier")
        B.wait(lg=hf_tok[q])
        for n in range(3):
            mf16(B, ac + 4 * n, bW1 + 12 * i + 4 * n, bHF + 4 * (q % 3), "0" if i == 0 else None)
            nm += 1
            if n == 0:
                hf_read(q + 2)
                if i == 14:
                    ibt = B.ds(f"ds_read_b64 {vr(bIB, 2)}, v{bIA} offset:{t * 512}")
            if nm >= 5 and g:
                if gi == 0:
                    B.wait(lg=c4t)
                while gi < len(g) and done < tot * (nm - 4) / 42.0:
                    emit_g(g[gi])
                    done += cost(g[gi])
                    gi += 1
    while gi < len(g):
        emit_g(g[gi])
        gi += 1
    B.wait(lg=ibt)
    for n in range(3):
        B(f"v_mfma_f32_16x16x16_bf16 {vr(ac + 4 * n, 4)}, {vr(bIN + 2 * n, 2)}, {vr(bIB, 2)}, {vr(ac + 4 * n, 4)}")
c4t = B.ds(f"ds_read_b128 {vr(bC4, 4)}, v{bCA} offset:{3 * 256}")
B.wait(lg=c4t)
for o in gelu_ops(3):
    emit_g(o)
stamp(B, "s4end")
B(f"s_lshl2_add_u32 {sr(sT0)}, {sr(sJ)}, {sr(sW)}")
B(f"s_lshl2_add_u32 {sr(sT0)}, {sr(sT0)}, {sr(sWSB)}")
B(f"v_mov_b32 v{bG}, {FLD}")
B(f"v_mov_b32 v{bG + 1}, {sr(sNONCE)}")
B("s_mov_b64 exec, 1")
B.wait_vm0()
pub(B, [f"buffer_store_dword v{bG + 1}, v{bG}, {srd(SWS)}, {sr(sT0)} offen"])
B("s_mov_b64 exec, -1")
B("s_setprio 0")
stamp(B, "flagD")
fOA, fPA, fHA, fB2, fH, fP = 1, 2, 4, 8, 16, 32
B(f"v_and_b32 v{bT}, 7, v0")
B(f"v_lshrrev_b32 v{bT + 1}, 3, v0")
B(f"v_lshlrev_b32 v{bT + 2}, 4, v{bT}")
B(f"s_lshl_b32 {sr(sT0)}, {sr(sJ)}, 7")
tb2 = B.vm(f"buffer_load_dwordx4 {vr(fH, 4)}, v{bT + 2}, {srd(SB2)}, {sr(sT0)} offen")
B(f"s_lshl_b32 {sr(sT1)}, {sr(sRB)}, 16")
B(f"s_add_u32 {sr(sT0)}, {sr(sT0)}, {sr(sT1)}")
B(f"s_lshl_b32 {sr(sT1)}, {sr(sW)}, 13")
B(f"s_add_u32 {sr(sT0)}, {sr(sT0)}, {sr(sT1)}")
B(f"v_lshl_add_u32 v{fOA}, v{bT + 1}, 10, v{bT + 2}")
B(f"v_add_u32 v{fOA}, {sr(sT0)}, v{fOA}")
B(f"v_lshlrev_b32 v{bT + 3}, 1, v{bT}")
B(f"v_xor_b32 v{bT + 3}, v{bT + 3}, v{bT + 1}")
B(f"v_lshlrev_b32 v{bT + 3}, 4, v{bT + 3}")
B(f"v_lshl_add_u32 v{bT + 3}, v{bT + 1}, 8, v{bT + 3}")
B(f"s_lshl_b32 {sr(sT1)}, {sr(sW)}, 11")
B(f"v_add_u32 v{fPA}, {sr(sT1)}, v{bT + 3}")
B(f"v_xor_b32 v{fPA + 1}, 16, v{fPA}")
B(f"s_lshl_b32 {sr(sT1)}, {sr(sW)}, 3")
B(f"v_add_u32 v{bT + 3}, {sr(sT1)}, v{bT + 1}")
B(f"v_bfe_u32 v{bT + 4}, v{bT + 3}, 1, 3")
B(f"v_xor_b32 v{bT + 4}, v{bT + 4}, v{bT}")
B(f"v_lshlrev_b32 v{bT + 4}, 4, v{bT + 4}")
B(f"v_lshl_add_u32 v{bT + 4}, v{bT + 3}, 7, v{bT + 4}")
B(f"v_add_u32 v{fHA}, {L_HST}, v{bT + 4}")
B.wait(vm=tb2)
for i in range(4):
    B(f"v_lshlrev_b32 v{fB2 + 2 * i}, 16, v{fH + i}")
    B(f"v_and_b32 v{fB2 + 2 * i + 1}, 0xffff0000, v{fH + i}")
for half in range(2):
    th = B.ds(f"ds_read_b128 {vr(fH + 8, 4)}, v{fHA} offset:{half * 4096}")
    B.wait(lg=th)
    for i in range(4):
        B(f"v_lshlrev_b32 v{fH + 2 * i}, 16, v{fH + 8 + i}")
        B(f"v_and_b32 v{fH + 2 * i + 1}, 0xffff0000, v{fH + 8 + i}")
    for i in range(4):
        B(f"v_pk_add_f32 {vr(fH + 2 * i, 2)}, {vr(fH + 2 * i, 2)}, {vr(fB2 + 2 * i, 2)}")
    B("s_barrier")
    tks = []
    for p in range(4):
        for e in range(2):
            base = p * W2W + half * 8192
            if base >= 65536:
                if e == 0:
                    B(f"v_add_u32 v{fPA + 4}, {base}, v{fPA}")
                    B(f"v_add_u32 v{fPA + 5}, {base}, v{fPA + 1}")
                tks.append(B.ds(f"ds_read_b128 {vr(fP + 8 * p + 4 * e, 4)}, v{fPA + 4 + e}"))
            else:
                tks.append(B.ds(f"ds_read_b128 {vr(fP + 8 * p + 4 * e, 4)}, v{fPA + e} offset:{base}"))
    for p in range(4):
        B.wait(lg=tks[2 * p + 1])
        for i in range(8):
            B(f"v_add_f32 v{fH + i}, v{fH + i}, v{fP + 8 * p + i}")
    for i in range(4):
        B(f"v_cvt_pk_bf16_f32 v{fH + 12 + i}, v{fH + 2 * i}, v{fH + 2 * i + 1}")
    if half:
        B(f"s_mov_b32 {sr(sT0)}, 32768")
    B.vm(f"buffer_store_dwordx4 {vr(fH + 12, 4)}, v{fOA}, {srd(SOUT)}, {sr(sT0) if half else 0} offen{('', ' sc1', ' nt', ' sc0 sc1')[OPT['outsc']]}")
stamp(B, "end")
dump_stamps(B, 0)
B("s_endpgm")

A = Stream()
A("L_teamA:")
A("s_setprio 1")
stamp(A, "entry", "start")
aXA, aWA = 1, 5
aT = 8
aQ, aK, aV, aCQ, aCK, aCV, aONE = 16, 32, 48, 64, 68, 72, 76
aXF = (80, 108)
aWF = (96, 124)
aCL, aCU = 136, 152
srd_load(A, REST)
srd_fill(A, REST + (SX, SWQ))
late_ids(A)
A(f"v_and_b32 v{aT}, 15, v0")
A(f"v_lshrrev_b32 v{aT + 2}, 4, v0")
A(f"v_lshrrev_b32 v{aT + 3}, 1, v{aT}")
A(f"v_xor_b32 v{aT + 3}, v{aT + 3}, v{aT + 2}")
A(f"v_lshlrev_b32 v{aT + 3}, 4, v{aT + 3}")
A(f"v_lshl_add_u32 v{aXA}, v{aT}, 7, v{aT + 3}")
A(f"v_xor_b32 v{aXA + 1}, 64, v{aXA}")
A(f"v_add_u32 v{aXA + 2}, 0x10000, v{aXA}")
A(f"v_add_u32 v{aXA + 3}, 0x10000, v{aXA + 1}")
A(f"v_bfe_u32 v{aT + 3}, v0, 3, 2")
A(f"v_xor_b32 v{aT + 3}, {sr(sW)}, v{aT + 3}")
A(f"v_lshlrev_b32 v{aT + 3}, 5, v{aT + 3}")
A(f"v_and_b32 v{aT + 4}, 3, v0")
A(f"v_lshl_add_u32 v{aT + 3}, v{aT + 4}, 3, v{aT + 3}")
A(f"v_bfe_u32 v{aT + 4}, v0, 2, 2")
A(f"v_lshl_add_u32 v{aT + 3}, v{aT + 4}, 7, v{aT + 3}")
A(f"v_mul_u32_u24 v{aT + 4}, 3072, v{aT + 2}")
A(f"v_add_u32 v{aWA}, v{aT + 3}, v{aT + 4}")
A(f"v_add_u32 v{aWA + 1}, 0x10000, v{aWA}")
for i in range(4):
    A(f"v_mov_b32 v{aONE + i}, 0x3f803f80")
stamp(A, "prek", "start")
A("s_waitcnt lgkmcnt(0)")
stamp(A, "karg", "start")
if OPT["warm"]:
    A(f"s_lshl2_add_u32 {sr(sT0)}, s2, {sr(sW)}")
    A(f"s_mul_i32 {sr(sT1)}, {sr(sT0)}, {11 * 128}")
    A(f"s_lshl_b32 {sr(sT0)}, {sr(sT0)}, 9")
    A(f"v_lshlrev_b32 v{aT + 4}, 7, v0")
    A("s_mov_b64 exec, 0x7ff")
    A.vm(f"buffer_load_dword v{aT + 5}, v{aT + 4}, {srd(SW1)}, {sr(sT1)} offen")
    A.vm(f"buffer_load_dword v{aT + 6}, v{aT + 4}, {srd(SW2)}, {sr(sT1)} offen")
    A("s_mov_b64 exec, 0xf")
    A.vm(f"buffer_load_dword v{aT + 7}, v{aT + 4}, {srd(SWO)}, {sr(sT0)} offen")
    A("s_mov_b64 exec, -1")
stamp(A, "warm", "start")
nl = lab("nolead")
A(f"s_or_b32 {sr(sT0)}, s2, {sr(sW)}")
A(f"s_cbranch_scc1 {nl}")
A(f"v_mov_b32 v{aQ}, {WEPOCH}")
A("s_mov_b64 exec, 1")
A.raw(f"buffer_load_dword v{aQ + 2}, v{aQ}, {srd(SWS)}, 0 offen sc1")
A(f"s_mov_b32 {sr(sT0)}, 1664525")
A(f"v_mov_b32 v{aQ + 1}, 0")
A(f"v_mov_b32 v{aQ + 3}, 1")
A("s_waitcnt vmcnt(0)")
A(f"v_mul_lo_u32 v{aQ + 2}, v{aQ + 2}, {sr(sT0)}")
A(f"v_add_u32 v{aQ + 2}, 1013904223, v{aQ + 2}")
A.raw(f"buffer_store_dwordx2 {vr(aQ + 2, 2)}, v{aQ + 1}, {srd(SDBG)}, 0 offen sc1")
A.raw(f"buffer_store_dword v{aQ + 2}, v{aQ}, {srd(SWS)}, 0 offen sc1")
A("s_mov_b64 exec, -1")
A(f"{nl}:")
A(f"v_lshrrev_b32 v{aT + 3}, 5, v0")
A(f"v_lshlrev_b32 v{aT + 3}, 2, v{aT + 3}")
A(f"v_and_b32 v{aT + 4}, 31, v0")
A(f"v_sub_u32 v{aT + 3}, v{aT + 4}, v{aT + 3}")
A(f"v_mov_b32 v{aT + 4}, {hx(f2u(-1e30))}")
for i in range(16):
    m = 8 * (i >> 2) + (i & 3)
    pr = (sM0, sM1)[i & 1]
    A(f"v_cmp_le_i32 {sr(pr, 2)}, {m}, v{aT + 3}")
    A(f"v_cndmask_b32 v{aCL + i}, v{aT + 4}, 0, {sr(pr, 2)}")
    A(f"v_cndmask_b32 v{aCU + i}, 0, v{aT + 4}, {sr(pr, 2)}")
stamp(A, "pro", "main start")

rd = {}


def s1_reads(n):
    s, t = n >> 1, n & 1
    sl = s % 3
    hi = 1 if sl == 2 else 0
    base = (sl & 1) * SLOT
    xf, wf = aXF[n & 1], aWF[n & 1]
    X = lambda q: (("x", q), f"ds_read_b128 {vr(xf + 4 * q, 4)}, v{aXA + t + 2 * hi} offset:{base + q * 2048}")
    W = lambda m, h: (("w", m), f"ds_read_b64_tr_b16 {vr(wf + 4 * m + 2 * h, 2)}, v{aWA + hi} offset:{base + 8192 + t * 12288 + m * 1024 + h * 512}")
    return [W(1, 0), W(1, 1), X(0), W(2, 0), W(2, 1), X(1), W(0, 0), W(0, 1), X(2), X(3)]


def s1_rd(n, item):
    rd[(n,) + item[0]] = A.ds(item[1])


A("s_barrier")
stamp(A, "bar0", "main start")
for it in s1_reads(0):
    s1_rd(0, it)
order = [("c", 1), (1, 0), ("c", 2), (2, 0), (1, 1), (2, 1), ("c", 0), (0, 0), (0, 1), (1, 2), (2, 2), (0, 2), (1, 3), (2, 3), (0, 3)]
aNP = 7
for n in range(16):
    xf, wf = aXF[n & 1], aWF[n & 1]
    z = "0" if n == 0 else None
    nxt = s1_reads(n + 1) if n < 15 else []
    for k, (m, q) in enumerate(order):
        if k == 6 and n < 15:
            A.wait_lg0()
            A("s_barrier")
            if n == 10:
                A(f"v_mov_b32 v{aNP}, 0")
                tnp = A.vm(f"buffer_load_dwordx2 {vr(aT, 2)}, v{aNP}, {srd(SDBG)}, 0 offen sc1")
        if m == "c":
            A.wait(lg=rd[(n, "w", q)])
            if q == 2:
                mf16(A, aCV, aONE, wf + 8, z)
            else:
                mf16(A, (aCQ, aCK)[q], wf + 4 * q, aONE, z)
        else:
            A.wait(lg=max(rd[(n, "w", m)], rd[(n, "x", q)]))
            if m == 2:
                mf16(A, aV + 4 * q, xf + 4 * q, wf + 8, z)
            else:
                mf16(A, (aQ, aK)[m] + 4 * q, wf + 4 * m, xf + 4 * q, z)
        if k >= 6 and nxt:
            for _ in range(2 if k == 6 else 1):
                if nxt:
                    s1_rd(n + 1, nxt.pop(0))
stamp(A, "s1end")
lp, dn = lab("np"), lab("npd")
A(f"s_mov_b32 {sr(sCNT)}, 0")
A(f"{lp}:")
A.wait_vm0()
A(f"v_readfirstlane_b32 {sr(sT0)}, v{aT + 1}")
A(f"v_readfirstlane_b32 {sr(sNONCE)}, v{aT}")
A(f"s_cmp_lg_u32 {sr(sT0)}, 0")
A(f"s_cbranch_scc0 {lp}x")
A(f"{dn}:")
tail += [f"{lp}x:", f"    s_add_u32 {sr(sCNT)}, {sr(sCNT)}, 1", f"    s_cmp_gt_u32 {sr(sCNT)}, {TIMEOUT}", f"    s_cbranch_scc1 {dn}",
         f"    buffer_load_dwordx2 {vr(aT, 2)}, v{aNP}, {srd(SDBG)}, 0 offen sc1", f"    s_branch {lp}"]
A(f"v_mov_b32 v{aT + 2}, {L_NONCE}")
A.ds(f"ds_write_b32 v{aT + 2}, v{aT}")
aSA, aSB, aKS, aZ = 1, 2, 3, 7
A(f"v_and_b32 v{aSA}, 15, v0")
A(f"v_lshlrev_b32 v{aSA}, 2, v{aSA}")
A(f"v_add_u32 v{aSA}, {L_RS}, v{aSA}")
A(f"v_and_b32 v{aSB}, 48, v0")
A(f"v_add_u32 v{aSB}, {L_RS}, v{aSB}")
A(f"v_lshlrev_b32 v{aKS}, 4, v0")
sKV, sFA = sT4, sT5
A(f"s_lshl2_add_u32 {sr(sT0)}, {sr(sJ)}, {sr(sW)}")
A(f"s_lshl_b32 {sr(sKV)}, {sr(sT0)}, 12")
A(f"s_add_u32 {sr(sKV)}, {sr(sKV)}, {sr(sWSB)}")
A(f"s_lshl_b32 {sr(sFA)}, {sr(sT0)}, 7")
A(f"s_add_u32 {sr(sFA)}, {sr(sFA)}, {sr(sWSB)}")
A(f"s_add_u32 {sr(sFA)}, {sr(sFA)}, {FLA}")
A.wait_lg0()
A("s_barrier")
stamp(A, "S1e")
eL, eRS, eNM = 80, 88, 104
aQF, aKF, aVC = 176, 184, 192
tl = []
for t in range(4):
    tl.append(A.ds(f"ds_read2_b32 {vr(eL + 2 * t, 2)}, v{aSA} offset0:{16 * t} offset1:{64 + 16 * t}"))
tv = []
for t in range(4):
    A.ds(f"ds_read_b128 {vr(eRS + 4 * t, 4)}, v{aSB} offset:{64 * t}")
    tv.append(A.ds(f"ds_read_b128 {vr(eNM + 4 * t, 4)}, v{aSB} offset:{256 + 64 * t}"))


def qk_epi(acc, cs, dst):
    for t in range(4):
        for p in range(2):
            A(f"v_pk_mul_f32 {vr(aT + 4, 2)}, {vr(cs + 2 * p, 2)}, {vr(eL + 2 * t, 2)} op_sel:[0,1] op_sel_hi:[1,1]")
            A(f"v_pk_fma_f32 {vr(acc + 4 * t + 2 * p, 2)}, {vr(acc + 4 * t + 2 * p, 2)}, {vr(eL + 2 * t, 2)}, {vr(aT + 4, 2)} op_sel:[0,0,0] op_sel_hi:[1,0,1]")
    for t in range(4):
        for p in range(2):
            A(f"v_cvt_pk_bf16_f32 v{dst + 2 * t + p}, v{acc + 4 * t + 2 * p}, v{acc + 4 * t + 2 * p + 1}")
    for b in range(2):
        for p in range(2):
            A(f"v_permlane16_swap_b32 v{dst + 4 * b + p}, v{dst + 4 * b + 2 + p}")


A.wait(lg=tl[3])
qk_epi(aK, aCK, aKF)
for b in range(2):
    A.vm(f"buffer_store_dwordx4 {vr(aKF + 4 * b, 4)}, v{aKS}, {srd(SWS)}, {sr(sKV)} offen offset:{2048 * b} sc1")
A.wait(lg=tv[3])
for t in range(4):
    for p in range(2):
        A(f"v_pk_mul_f32 {vr(aT + 4, 2)}, {vr(eNM + 4 * t + 2 * p, 2)}, {vr(aCV, 2)}")
        A(f"v_pk_fma_f32 {vr(aV + 4 * t + 2 * p, 2)}, {vr(aV + 4 * t + 2 * p, 2)}, {vr(eRS + 4 * t + 2 * p, 2)}, {vr(aT + 4, 2)}")
for t in range(4):
    for p in range(2):
        A(f"v_cvt_pk_bf16_f32 v{aVC + 2 * t + p}, v{aV + 4 * t + 2 * p}, v{aV + 4 * t + 2 * p + 1}")
for b in range(2):
    for p in range(2):
        A(f"v_permlane32_swap_b32 v{aVC + 4 * b + p}, v{aVC + 4 * b + 2 + p}")
for b in range(2):
    A.vm(f"buffer_store_dwordx4 {vr(aVC + 4 * b, 4)}, v{aKS}, {srd(SWS)}, {sr(sKV)} offen offset:{2048 * b + 1024} sc1")
stamp(A, "kvst")
A(f"s_getreg_b32 {sr(sXCC)}, hwreg(HW_REG_XCC_ID, 0, 4)")
A(f"s_and_b32 {sr(sT0)}, {sr(sNONCE)}, -16")
A(f"s_or_b32 {sr(sT0)}, {sr(sT0)}, {sr(sXCC)}")
A(f"v_mov_b32 v{aT + 2}, {sr(sT0)}")
A(f"s_lshl2_add_u32 {sr(sT1)}, {sr(sJ)}, {sr(sWSB)}")
A(f"s_add_u32 {sr(sT1)}, {sr(sT1)}, {FLX}")
A(f"s_cmp_eq_u32 {sr(sW)}, 0")
A(f"s_cselect_b32 {sr(sT1)}, {sr(sT1)}, {hx(OOB)}")
A("s_mov_b64 exec, 1")
A.vm(f"buffer_store_dword v{aT + 2}, v{aZ}, {srd(SWS)}, {sr(sT1)} offen sc1")
A("s_mov_b64 exec, -1")
aKA, aVA, aOVA = 1, 4, 8
A(f"s_mul_i32 {sr(sT0)}, {sr(sW)}, 2112")
A(f"s_add_u32 {sr(sT0)}, {sr(sT0)}, {L_OWNV}")
A(f"v_add_u32 v{aT + 2}, {sr(sT0)}, v{aKS}")
for b in range(2):
    A.ds(f"ds_write_b128 v{aT + 2}, {vr(aVC + 4 * b, 4)} offset:{1056 * b}")
A(f"v_mov_b32 v{aT + 2}, {sr(sT0)}")
for b in range(2):
    A.ds(f"ds_write_b128 v{aT + 2}, {vr(aONE, 4)} offset:{1056 * b + 1024}")
A(f"v_and_b32 v{aT + 3}, 15, v0")
A(f"v_lshrrev_b32 v{aT + 4}, 5, v0")
A(f"v_lshl_add_u32 v{aT + 3}, v{aT + 4}, 4, v{aT + 3}")
A(f"v_lshlrev_b32 v{aT + 3}, 4, v{aT + 3}")
A(f"v_add_u32 v{aT + 4}, 512, v{aT + 3}")
A(f"s_mov_b32 {sr(sM0)}, 0xffff")
A(f"s_mov_b32 {sr(sM0 + 1)}, 0xffff")
A(f"v_mov_b32 v{aT + 5}, 1024")
A(f"v_cndmask_b32 v{aT + 3}, v{aT + 5}, v{aT + 3}, {sr(sM0, 2)}")
A(f"v_cndmask_b32 v{aT + 4}, v{aT + 5}, v{aT + 4}, {sr(sM0, 2)}")
A(f"s_mul_i32 {sr(sT1)}, {sr(sW)}, {HHEAD}")
A(f"v_add_u32 v{aKA}, {sr(sT1)}, v{aKS}")
A(f"s_add_u32 {sr(sT1)}, {sr(sT1)}, 1024")
A(f"v_add_u32 v{aVA}, {sr(sT1)}, v{aT + 3}")
A(f"v_add_u32 v{aVA + 1}, {sr(sT1)}, v{aT + 4}")
A(f"v_add_u32 v{aOVA}, {sr(sT0)}, v{aT + 3}")
A(f"v_add_u32 v{aOVA + 1}, {sr(sT0)}, v{aT + 4}")
aKB = (200, 204, 208)
aVB = (212, 220, 228)
vt = {}
for b in range(2):
    for p in range(2):
        vt[b] = A.ds(f"ds_read_b128 {vr(aVB[b] + 4 * p, 4)}, v{aOVA + p} offset:{1056 * b}")
QS = 0.25 * 1.4426950408889634
for t in range(4):
    A(f"v_mul_f32 v{eL + 2 * t}, {hx(f2u(QS))}, v{eL + 2 * t}")
    A(f"v_mul_f32 v{eL + 2 * t + 1}, {hx(f2u(QS))}, v{eL + 2 * t + 1}")
qk_epi(aQ, aCQ, aQF)

aS = (16, 32)
aO = (48, 64)
aP = 80


def run_tiles(tiles, hooks, first_o):
    def s_mfma(i):
        qb, kreg, vreg, c, kt, vtk = tiles[i]
        if kt:
            A.wait(lg=kt())
        mf32(A, aS[i & 1], kreg, aQF + 4 * qb, c)

    def pv(i, p):
        qb, kreg, vreg, c, kt, vtk = tiles[i]
        if vtk:
            A.wait(lg=vtk())
        z = None
        if p == 0 and qb in first_o:
            first_o.discard(qb)
            z = "0"
        mf32(A, aO[qb], vreg + 4 * p, aP + 4 * p, z)

    s_mfma(0)
    for i in range(len(tiles)):
        s = aS[i & 1]
        e = lambda k: A(f"v_exp_f32 v{s + k}, v{s + k}")
        c = lambda k: A(f"v_cvt_pk_bf16_f32 v{aP + k}, v{s + 2 * k}, v{s + 2 * k + 1}")
        if i + 1 < len(tiles):
            s_mfma(i + 1)
        e(0); e(1); e(2); c(0); e(3); e(4); c(1)
        if i:
            pv(i - 1, 1)
        if i in hooks:
            hooks[i]()
        e(5); e(6); c(2); e(7); e(8); c(3); e(9); e(10)
        pv(i, 0)
        c(4); e(11); e(12); c(5); e(13); e(14); e(15); c(6); c(7)
    pv(len(tiles) - 1, 1)


first_o = {0, 1}
CL, CU = vr(aCL, 16), vr(aCU, 16)


def flag_a():
    A(f"v_mov_b32 v{aT + 2}, {sr(sNONCE)}")
    A("s_mov_b64 exec, 1")
    A.wait_vm0()
    A.vm(f"buffer_store_dword v{aT + 2}, v{aZ}, {srd(SWS)}, {sr(sFA)} offen sc1")
    A("s_mov_b64 exec, -1")
    stamp(A, "flagA")


if OPT["fa"] == 0:
    flag_a()
run_tiles([(0, aKF, aVB[0], CL, None, lambda: vt[0]), (1, aKF, aVB[0], "0", None, None), (1, aKF + 4, aVB[1], CL, None, lambda: vt[1])],
          {OPT["fa"] - 1: flag_a}, first_o)
if OPT["fa"] == 4:
    flag_a()
A("s_barrier")
A("s_barrier")
A("s_barrier")
A(f"v_mov_b32 v{aT + 2}, {L_NONCE + 4}")
A("s_barrier")
stamp(A, "H0")
kt, vt2 = {}, {}


def kv_read(b):
    i = (7 - b) % 3
    kt[b] = A.ds(f"ds_read_b128 {vr(aKB[i], 4)}, v{aKA} offset:{L_HALO + b * HBLK}")
    for p in range(2):
        vt2[b] = A.ds(f"ds_read_b128 {vr(aVB[i] + 4 * p, 4)}, v{aVA + p} offset:{L_HALO + b * HBLK}")


kv_read(7)
tloc = A.ds(f"ds_read_b32 v{aT + 3}, v{aT + 2}")
tiles, hooks = [], {}
for b in range(7, -1, -1):
    i = (7 - b) % 3
    for qb in range(2):
        if b == 0 and qb == 1:
            continue
        c = CU if b == qb else "0"
        tiles.append((qb, aKB[i], aVB[i], c, (lambda b=b: kt[b]), (lambda b=b: vt2[b])))
    if b - 1 >= 0:
        def hk(b=b):
            if b - 1 in (5, 3):
                A("s_barrier")
            kv_read(b - 1)
        hooks[len(tiles) - 2] = hk
run_tiles(tiles, hooks, first_o)
stamp(A, "attend")
aOS = 1
A(f"v_cmp_ne_u32 vcc, 0, v{aT + 3}")
A(f"v_and_b32 v{aT + 4}, 15, v0")
A(f"v_lshlrev_b32 v{aT + 4}, 4, v{aT + 4}")
A(f"v_bfe_u32 v{aT + 5}, v0, 4, 1")
A(f"v_lshl_add_u32 v{aT + 4}, v{aT + 5}, 14, v{aT + 4}")
A(f"v_lshrrev_b32 v{aT + 5}, 5, v0")
A(f"v_lshl_add_u32 v{aOS}, v{aT + 5}, 8, v{aT + 4}")
A(f"s_lshl2_add_u32 {sr(sT0)}, {sr(sJ)}, {sr(sW)}")
A(f"s_lshl_b32 {sr(sT0)}, {sr(sT0)}, 9")
A(f"s_add_u32 {sr(sT0)}, {sr(sT0)}, {sr(sWSB)}")
A(f"s_add_u32 {sr(sT6)}, {sr(sT0)}, {WO_}")
A(f"s_add_u32 {sr(sT7)}, {sr(sT6)}, 32768")
A(f"v_subrev_u32 v{aT + 4}, {hx(f2u(2.0 ** -40))}, v{aO[0] + 8}")
A(f"v_subrev_u32 v{aT + 5}, {hx(f2u(2.0 ** -40))}, v{aO[1] + 8}")
A(f"v_max_u32 v{aT + 4}, v{aT + 4}, v{aT + 5}")
A(f"s_mov_b32 {sr(sT0)}, {0 if OPT['force_fb'] else hx(f2u(2.0 ** 40) - f2u(2.0 ** -40))}")
A(f"v_cmp_le_u32 {sr(sM0, 2)}, {sr(sT0)}, v{aT + 4}")
A(f"s_cmp_lg_u64 {sr(sM0, 2)}, 0")
A("s_cbranch_scc1 L_fallback")
A("L_fb_done:")
aOP = 16
for qb in range(2):
    o = aO[qb]
    A(f"v_rcp_f32 v{o + 8}, v{o + 8}")
for qb in range(2):
    o = aO[qb]
    for p in range(4):
        A(f"v_pk_mul_f32 {vr(o + 2 * p, 2)}, {vr(o + 2 * p, 2)}, {vr(o + 8, 2)} op_sel:[0,0] op_sel_hi:[1,0]")
    for p in range(4):
        A(f"v_cvt_pk_bf16_f32 v{aOP + 4 * qb + p}, v{o + 2 * p}, v{o + 2 * p + 1}")
pub(A, [f"buffer_store_dwordx4 {vr(aOP + 4 * qb, 4)}, v{aOS}, {srd(SWS)}, {sr((sT6, sT7)[qb])} offen" for qb in range(2)])

F = Stream()
fK, fV, fM, fQ, fO, fA0, fA1 = 200, 212, 88, 92, 96, 90, 91
sQB, sKB, sKO = sT0, sT1, sT2
F("L_fallback:")
F.fence()
F(f"v_and_b32 v{fA0}, 15, v0")
F(f"v_lshrrev_b32 v{fA1}, 5, v0")
F(f"v_lshl_add_u32 v{fA0}, v{fA1}, 4, v{fA0}")
F(f"v_lshlrev_b32 v{fA0}, 4, v{fA0}")
F(f"s_mov_b32 {sr(sQB)}, 0")
F("L_fb_q:")
for i in range(4):
    F(f"v_mov_b32 v{fQ + i}, v{aQF + i}")
    F(f"v_mov_b32 v{aQF + i}, v{aQF + 4 + i}")
F(f"v_mov_b32 v{fM}, {hx(f2u(-3e38))}")
for i in range(16):
    F(f"v_mov_b32 v{fO + i}, 0")
for i in range(8):
    F(f"v_mov_b32 v{fV + i}, 0x3f803f80")
for ps in range(2):
    F(f"s_lshl1_add_u32 {sr(sT3)}, {sr(sRB)}, {sr(sQB)}")
    F(f"s_min_u32 {sr(sKB)}, {sr(sT3)}, 8")
    F(f"L_fb_k{ps}:")
    F(f"s_sub_u32 {sr(sKO)}, {sr(sT3)}, {sr(sKB)}")
    F(f"s_and_b32 {sr(sCNT)}, {sr(sKO)}, 1")
    F(f"s_lshl_b32 {sr(sCNT)}, {sr(sCNT)}, 11")
    F(f"s_lshr_b32 {sr(sKO)}, {sr(sKO)}, 1")
    F(f"s_sub_u32 {sr(sKO)}, {sr(sRB)}, {sr(sKO)}")
    F(f"s_lshl_b32 {sr(sKO)}, {sr(sKO)}, 19")
    F(f"s_sub_u32 {sr(sKO)}, {sr(sKV)}, {sr(sKO)}")
    F(f"s_add_u32 {sr(sKO)}, {sr(sKO)}, {sr(sCNT)}")
    F.raw(f"buffer_load_dwordx4 {vr(fK, 4)}, v{aKS}, {srd(SWS)}, {sr(sKO)} offen sc1")
    if ps:
        F("s_mov_b32 exec_lo, 0xffff")
        F("s_mov_b32 exec_hi, 0xffff")
        F.raw(f"buffer_load_dwordx4 {vr(fV, 4)}, v{fA0}, {srd(SWS)}, {sr(sKO)} offen offset:1024 sc1")
        F.raw(f"buffer_load_dwordx4 {vr(fV + 4, 4)}, v{fA0}, {srd(SWS)}, {sr(sKO)} offen offset:1536 sc1")
        F("s_mov_b64 exec, -1")
    F("s_waitcnt vmcnt(0)")
    F(f"s_cmp_eq_u32 {sr(sKB)}, 8")
    F(f"s_cbranch_scc1 L_fb_u{ps}")
    F(f"s_cmp_eq_u32 {sr(sKB)}, 0")
    F(f"s_cbranch_scc1 L_fb_l{ps}")
    mf32(F, aS[0], fK, fQ, "0")
    F(f"s_branch L_fb_s{ps}")
    F(f"L_fb_u{ps}:")
    mf32(F, aS[0], fK, fQ, CU)
    F(f"s_branch L_fb_s{ps}")
    F(f"L_fb_l{ps}:")
    mf32(F, aS[0], fK, fQ, CL)
    F(f"L_fb_s{ps}:")
    F.fence()
    s = aS[0]
    if ps == 0:
        for i in range(8):
            F(f"v_max3_f32 v{fM}, v{fM}, v{s + 2 * i}, v{s + 2 * i + 1}")
    else:
        for i in range(16):
            F(f"v_sub_f32 v{s + i}, v{s + i}, v{fM}")
        for i in range(16):
            F(f"v_exp_f32 v{s + i}, v{s + i}")
        for i in range(8):
            F(f"v_cvt_pk_bf16_f32 v{aP + i}, v{s + 2 * i}, v{s + 2 * i + 1}")
        mf32(F, fO, fV, aP)
        mf32(F, fO, fV + 4, aP + 4)
        F.fence()
    F(f"s_sub_u32 {sr(sKB)}, {sr(sKB)}, 1")
    F(f"s_cbranch_scc0 L_fb_k{ps}")
    if ps == 0:
        F(f"v_mov_b32 v{fM + 1}, v{fM}")
        F(f"v_permlane32_swap_b32 v{fM}, v{fM + 1}")
        F(f"v_max_f32 v{fM}, v{fM}, v{fM + 1}")
for i in range(9):
    F(f"v_mov_b32 v{aO[0] + i}, v{aO[1] + i}")
    F(f"v_mov_b32 v{aO[1] + i}, v{fO + i}")
F(f"s_add_u32 {sr(sQB)}, {sr(sQB)}, 1")
F(f"s_cmp_lt_u32 {sr(sQB)}, 2")
F("s_cbranch_scc1 L_fb_q")
F("s_branch L_fb_done")

cWA, cXA, cFA = 4, 8, 12
cAC, cOF, cWO = 24, 40, 80
NOF, NWO = 10, 11
A(f"v_bfe_u32 v{aT + 5}, v0, 2, 3")
A(f"v_lshrrev_b32 v{aT + 6}, 5, v0")
A(f"v_lshl_add_u32 v{aT + 5}, v{aT + 6}, 4, v{aT + 5}")
A(f"v_lshlrev_b32 v{aT + 5}, 7, v{aT + 5}")
A(f"v_bfe_u32 v{aT + 6}, v0, 3, 2")
A(f"v_lshl_add_u32 v{aT + 5}, v{aT + 6}, 5, v{aT + 5}")
A(f"v_and_b32 v{aT + 6}, 3, v0")
A(f"v_lshl_add_u32 v{aT + 5}, v{aT + 6}, 3, v{aT + 5}")
A(f"v_add_u32 v{cWA}, {L_WO}, v{aT + 5}")
for a in range(1, 4):
    A(f"v_xor_b32 v{cWA + a}, {32 * a}, v{cWA}")
A("s_barrier")
stamp(A, "E")
wo_tok = {}


def wo_read(n):
    r = cWO + 16 * (n % NWO)
    for a in range(4):
        for h in range(2):
            wo_tok[n] = A.ds(f"ds_read_b64_tr_b16 {vr(r + 4 * a + 2 * h, 2)}, v{cWA + a} offset:{n * 4096 + h * 1024}")


for n in range(5):
    wo_read(n)
cZ = 2
A(f"v_mov_b32 v{cZ}, {FLB}")
A(f"v_mov_b32 v{aT + 5}, {sr(sNONCE)}")
sFO = sT5
A(f"s_lshl2_add_u32 {sr(sFO)}, {sr(sJ)}, {sr(sW)}")
A(f"s_lshl2_add_u32 {sr(sFO)}, {sr(sFO)}, {sr(sWSB)}")
A("s_mov_b64 exec, 1")
A.wait_vm0()
pub(A, [f"buffer_store_dword v{aT + 5}, v{cZ}, {srd(SWS)}, {sr(sFO)} offen"])
A("s_mov_b64 exec, -1")
A(f"v_and_b32 v{aT + 5}, 15, v0")
A(f"v_lshrrev_b32 v{aT + 6}, 1, v{aT + 5}")
A(f"v_lshrrev_b32 v{aT + 7}, 5, v0")
A(f"v_xor_b32 v{aT + 6}, v{aT + 6}, v{aT + 7}")
A(f"v_lshlrev_b32 v{aT + 6}, 4, v{aT + 6}")
A(f"v_lshl_add_u32 v{aT + 5}, v{aT + 5}, 7, v{aT + 6}")
A(f"v_bfe_u32 v{aT + 6}, v0, 4, 1")
A(f"v_lshl_add_u32 v{aT + 5}, v{aT + 6}, 3, v{aT + 5}")
A(f"s_lshl_b32 {sr(sT0)}, {sr(sW)}, 11")
A(f"s_add_u32 {sr(sT0)}, {sr(sT0)}, {L_HST}")
A(f"v_add_u32 v{cXA}, {sr(sT0)}, v{aT + 5}")
for a in range(1, 4):
    A(f"v_xor_b32 v{cXA + a}, {32 * a}, v{cXA}")
for a in range(4):
    tx = A.ds(f"ds_read_b64 {vr(cOF + 2 * a, 2)}, v{cXA + a}")
A(f"v_and_b32 v{cFA}, 31, v0")
A(f"s_add_u32 {sr(sT0)}, {sr(sWSB)}, {FLB}")
A(f"v_lshl_add_u32 v{cFA}, v{cFA}, 2, {sr(sT0)}")
A.wait(lg=tx)
for i in range(8):
    A(f"v_lshlrev_b32 v{cAC + 2 * i}, 16, v{cOF + i}")
    A(f"v_and_b32 v{cAC + 2 * i + 1}, 0xffff0000, v{cOF + i}")
for n in range(5, NWO):
    wo_read(n)
sOB, sOK = sT6, sT7
A(f"s_lshl_b32 {sr(sOB)}, {sr(sW)}, 14")
A(f"s_add_u32 {sr(sOB)}, {sr(sOB)}, {sr(sWSB)}")
A(f"s_add_u32 {sr(sOB)}, {sr(sOB)}, {WO_}")
A(f"s_lshl_b32 {sr(sOK)}, {sr(sRO)}, 10")
poll(A, cFA, None, 13, 14)
stamp(A, "pollB")
of_tok = {}


def of_load(n):
    if n % 4 == 0:
        A(f"s_add_u32 {sr(sT0)}, {sr(sOB)}, {sr(sOK)}")
        A(f"s_add_u32 {sr(sOK)}, {sr(sOK)}, 4096")
        A(f"s_and_b32 {sr(sOK)}, {sr(sOK)}, 0x3fff")
    of_tok[n] = A.vm(f"buffer_load_dwordx4 {vr(cOF + 4 * (n % NOF), 4)}, v{aKS}, {srd(SWS)}, {sr(sT0)} offen offset:{(n % 4) * 1024} sc1")


for n in range(NOF):
    of_load(n)
for n in range(16):
    A.wait(vm=of_tok[n], lg=wo_tok[n])
    for a in range(4):
        mf16(A, cAC + 4 * a, cWO + 16 * (n % NWO) + 4 * a, cOF + 4 * (n % NOF))
    if n + NOF < 16:
        of_load(n + NOF)
        if n + NOF == 15:
            A("s_barrier")
    if n + NWO < 16:
        wo_read(n + NWO)
cHP = 16
A(f"s_lshl_b32 {sr(sT0)}, {sr(sJ)}, 11")
A(f"s_add_u32 {sr(sT0)}, {sr(sT0)}, {sr(sOB)}")
A(f"s_add_u32 {sr(sT0)}, {sr(sT0)}, {WH - WO_}")
A(f"s_lshl_b32 {sr(sT1)}, {sr(sW)}, 10")
A(f"s_add_u32 {sr(sT1)}, {sr(sT1)}, {sr(sWSB)}")
A(f"s_add_u32 {sr(sT1)}, {sr(sT1)}, {WST}")
A(f"s_lshl_b32 {sr(sT2)}, {sr(sJ)}, 7")
A(f"s_add_u32 {sr(sT2)}, {sr(sT2)}, {sr(sT1)}")
for i in range(8):
    A(f"v_cvt_pk_bf16_f32 v{cHP + i}, v{cAC + 2 * i}, v{cAC + 2 * i + 1}")
pub(A, [f"buffer_store_dwordx4 {vr(cHP + 4 * s, 4)}, v{aKS}, {srd(SWS)}, {sr(sT0)} offen offset:{1024 * s}" for s in range(2)])
cS, cQ = 40, 42
A(f"v_pk_add_f32 {vr(cS, 2)}, {vr(cAC, 2)}, {vr(cAC + 2, 2)}")
A(f"v_pk_mul_f32 {vr(cQ, 2)}, {vr(cAC, 2)}, {vr(cAC, 2)}")
for i in range(1, 8):
    if i > 1:
        A(f"v_pk_add_f32 {vr(cS, 2)}, {vr(cS, 2)}, {vr(cAC + 2 * i, 2)}")
    A(f"v_pk_fma_f32 {vr(cQ, 2)}, {vr(cAC + 2 * i, 2)}, {vr(cAC + 2 * i, 2)}, {vr(cQ, 2)}")
A(f"v_add_f32 v{cS}, v{cS}, v{cS + 1}")
A(f"v_add_f32 v{cQ}, v{cQ}, v{cQ + 1}")
A(f"v_lshlrev_b32 v{13}, 2, v0")
A(f"v_permlane16_swap_b32 v{cS}, v{cQ}")
A(f"v_add_f32 v{cS}, v{cS}, v{cQ}")
A(f"v_mov_b32 v{cQ}, v{cS}")
A(f"v_permlane32_swap_b32 v{cS}, v{cQ}")
A(f"v_add_f32 v{cS}, v{cS}, v{cQ}")
A("s_mov_b32 exec_hi, 0")
pub(A, [f"buffer_store_dword v{cS}, v13, {srd(SWS)}, {sr(sT2)} offen"])
A("s_mov_b32 exec_hi, -1")
stamp(A, "s3end")
for a in range(4):
    A.ds(f"ds_write_b64 v{cXA + a}, {vr(cHP + 2 * a, 2)}")
A(f"v_mov_b32 v14, {sr(sNONCE)}")
A(f"v_add_u32 v{cFA}, {FLC - FLB}, v{cFA}")
A("s_mov_b64 exec, 1")
A.wait_vm0()
pub(A, [f"buffer_store_dword v14, v{cZ}, {srd(SWS)}, {sr(sFO)} offen offset:{FLC - FLB}"])
A("s_mov_b64 exec, -1")
dP, dG, dR = 4, 5, 6
A(f"v_lshrrev_b32 v{8}, 5, v0")
A(f"v_bfe_u32 v{9}, v0, 3, 2")
A(f"v_and_b32 v{10}, 7, v0")
A(f"v_bfe_u32 v{11}, v0, 4, 1")
A(f"v_lshlrev_b32 v{11}, 2, v{11}")
A(f"v_xor_b32 v{10}, v{10}, v{11}")
A(f"v_lshlrev_b32 v{10}, 4, v{10}")
A(f"v_lshl_add_u32 v{10}, v{9}, 10, v{10}")
A(f"s_mul_i32 {sr(sT0)}, {sr(sW)}, {352 * 1024}")
A(f"s_lshl_b32 {sr(sT2)}, {sr(sJ)}, 7")
A(f"s_add_u32 {sr(sT0)}, {sr(sT0)}, {sr(sT2)}")
A(f"v_add_u32 v{10}, {sr(sT0)}, v{10}")
A(f"v_lshl_add_u32 v{dP}, v{8}, 14, v{10}")
A(f"v_lshl_add_u32 v{dG}, v{8}, 12, v{10}")
A(f"s_mul_i32 {sr(sLB)}, {sr(sW)}, {W2W}")
A(f"v_bfe_u32 v{9}, v0, 2, 2")
A(f"v_lshl_add_u32 v{8}, v{8}, 3, v{9}")
A(f"v_lshlrev_b32 v{8}, 7, v{8}")
A(f"v_bfe_u32 v{9}, v0, 3, 1")
A(f"v_lshl_add_u32 v{8}, v{9}, 6, v{8}")
A(f"v_bfe_u32 v{9}, v0, 4, 1")
A(f"v_lshl_add_u32 v{8}, v{9}, 5, v{8}")
A(f"v_and_b32 v{9}, 3, v0")
A(f"v_lshl_add_u32 v{8}, v{9}, 3, v{8}")
A(f"v_add_u32 v{dR}, {sr(sLB)}, v{8}")
A(f"v_xor_b32 v{dR + 1}, 64, v{dR}")
A(f"s_lshl2_add_u32 {sr(sT0)}, {sr(sW)}, {sr(sRO)}")
A(f"s_and_b32 {sr(sT0)}, {sr(sT0)}, 15")
A(f"s_lshl_b32 {sr(sT0)}, {sr(sT0)}, 10")
A(f"s_add_u32 {sr(sT0)}, {sr(sT0)}, {sr(sWSB)}")
A(f"s_add_u32 {sr(sT6)}, {sr(sT0)}, {WH}")
A(f"s_lshl_b32 {sr(sT7)}, {sr(sW)}, 12")
A.wait_lg0()
poll(A, cFA, None, 14, 15)
A("s_barrier")
stamp(A, "C1")
A("s_setprio 0")
ht = []
for t in range(4):
    A(f"s_add_u32 m0, {sr(sT7)}, {L_WO + t * 16384}")
    if t:
        A(f"s_add_u32 {sr(sT6)}, {sr(sT6)}, 16384")
    for i in range(4):
        tk = dma(A, aKS, SWS, sr(sT6), i * 1024, "sc1")
    ht.append(tk)
    if t == 0:
        for i in range(4):
            tst = A.vm(f"buffer_load_dword v{16 + i}, v13, {srd(SWS)}, {sr(sT1)} offen offset:{256 * i} sc1")
    if t == 1:
        A.wait(vm=ht[0])
        A("s_barrier")
A.wait(vm=tst)
A("v_add_f32 v16, v16, v17")
A("v_add_f32 v18, v18, v19")
A("v_add_f32 v16, v16, v18")
A("v_mov_b32 v17, v16")
A("v_permlane32_swap_b32 v16, v17")
A("v_add_f32 v16, v16, v17")
A("v_mov_b32 v17, v16")
A("v_permlane16_swap_b32 v16, v17")
C0 = -2.0 * 0.7978845608028654 * 1.4426950408889634
C1 = C0 * 0.044715
A(f"v_mul_f32 v16, {hx(f2u(-1.0 / 512))}, v16")
A(f"v_mul_f32 v17, {hx(f2u(1.0 / 512))}, v17")
A("v_fma_f32 v17, -v16, v16, v17")
A("v_max_f32 v17, 0, v17")
A(f"v_add_f32 v18, {hx(f2u(1e-5))}, v17")
A("v_rsq_f32 v18, v18")
A("v_cmp_gt_u32 s[60:61], 16, v0")
A("v_mul_f32 v17, v17, v18")
A(f"v_fmaak_f32 v17, v17, v18, {hx(f2u(1e-5))}")
A("v_rsq_f32 v17, v17")
A("v_and_b32 v24, 15, v0")
A("v_mul_f32 v17, v17, v18")
A("v_rcp_f32 v22, v17")
A(f"v_mul_f32 v20, {hx(f2u(C0))}, v17")
A("v_mul_f32 v21, v17, v17")
A("v_mul_f32 v21, v21, v17")
A(f"v_mul_f32 v21, {hx(f2u(C1))}, v21")
A("v_mov_b32 v23, 0")
A("v_cndmask_b32 v16, v16, v22, s[60:61]")
A("v_cvt_pk_bf16_f32 v17, v16, 0")
A("v_lshlrev_b32 v17, 16, v17")
A("v_sub_f32 v17, v16, v17")
A("v_cndmask_b32 v18, v16, v17, s[60:61]")
A("v_cvt_pk_bf16_f32 v18, v16, v18")
A("v_cvt_pk_bf16_f32 v19, v17, 0")
A(f"s_lshl_b32 {sr(sT0)}, {sr(sW)}, 8")
A(f"s_add_u32 {sr(sT0)}, {sr(sT0)}, {L_C4}")
A(f"v_lshl_add_u32 v24, v24, 4, {sr(sT0)}")
A(f"s_lshl_b32 {sr(sT0)}, {sr(sW)}, 9")
A(f"s_add_u32 {sr(sT0)}, {sr(sT0)}, {L_IB}")
A(f"v_lshl_add_u32 v25, v0, 3, {sr(sT0)}")
A.ds("ds_write_b64 v25, v[18:19]")
A("s_mov_b64 exec, 0xffff")
A.ds("ds_write_b128 v24, v[20:23]")
A("s_mov_b64 exec, -1")

dW2 = 80
w2_tok = {}


def w2_issue(e):
    jj, ee = divmod(e, 11)
    ww, kind = divmod(ee, 3)
    f0 = 176 * jj + 48 * ww
    for hf in range(2):
        row = f0 + (4 * (2 * kind + hf) if kind < 2 else 32 + 8 * hf)
        A(f"s_add_u32 m0, {sr(sLB)}, {(e % 10) * 2048 + hf * 1024}")
        A(f"s_mov_b32 {sr(sT0)}, {row * 1024}")
        w2_tok[e] = bg(A, dP if kind < 2 else dG, SW2, sr(sT0))


w2_rd = {}


def w2_drain(e):
    A.wait(vm=w2_tok[e])
    for ch in range(2):
        for h in range(2):
            w2_rd[e] = A.ds(f"ds_read_b64_tr_b16 {vr(dW2 + 8 * e + 4 * ch + 2 * h, 2)}, v{dR + ch} offset:{(e % 10) * 2048 + h * 512}")


for e in range(3):
    w2_issue(e)
A.wait(vm=ht[3], lg=A.lg_n)
A("s_barrier")
if OPT["pretouch"]:
    A(f"v_lshlrev_b32 v8, 7, v0")
    A(f"s_and_b32 {sr(sT0)}, {sr(sW)}, 1")
    A(f"s_mul_i32 {sr(sT0)}, {sr(sT0)}, {44 * 128}")
    A(f"s_lshr_b32 {sr(sT1)}, {sr(sW)}, 1")
    A(f"s_mul_i32 {sr(sT1)}, {sr(sT1)}, {H1H}")
    A(f"s_add_u32 {sr(sT0)}, {sr(sT0)}, {sr(sT1)}")
    A(f"s_mul_i32 {sr(sT1)}, {sr(sJ)}, {11 * 1024}")
    A(f"s_add_u32 {sr(sT0)}, {sr(sT0)}, {sr(sT1)}")
    A(f"s_add_u32 {sr(sT0)}, {sr(sT0)}, {sr(sWSB)}")
    A(f"s_add_u32 {sr(sT0)}, {sr(sT0)}, {WH1}")
    A("s_mov_b32 exec_hi, 0xfff")
    A.vm(f"buffer_load_dword v9, v8, {srd(SWS)}, {sr(sT0)} offen sc1")
    A("s_mov_b32 exec_hi, -1")
DIST = 6
for e in range(3, DIST):
    w2_issue(e)
for e in range(22):
    if e + DIST < 22:
        if e + DIST - 10 >= 0:
            A.wait(lg=w2_rd[e + DIST - 10])
        w2_issue(e + DIST)
    w2_drain(e)
stamp(A, "w2end")
dAC, dHF, dPW = 8, 40, 4
NHF = 10
A(f"v_and_b32 v1, 7, v0")
A(f"s_lshl_b32 {sr(sT0)}, {sr(sW)}, 5")
A(f"s_add_u32 {sr(sT0)}, {sr(sT0)}, {sr(sWSB)}")
A(f"s_add_u32 {sr(sT0)}, {sr(sT0)}, {FLD}")
A(f"v_lshl_add_u32 v2, v1, 2, {sr(sT0)}")
A.wait_lg0()
A(f"v_lshrrev_b32 v8, 5, v0")
A(f"v_xor_b32 v8, v8, v1")
A(f"v_lshlrev_b32 v8, 4, v8")
A(f"v_and_b32 v9, 31, v0")
A(f"v_lshl_add_u32 v8, v9, 8, v8")
A(f"v_add_u32 v{dPW}, {sr(sLB)}, v8")
for a in range(1, 4):
    A(f"v_xor_b32 v{dPW + a}, {32 * a}, v{dPW}")
A(f"s_mul_i32 {sr(sT6)}, {sr(sW)}, {22 * 1024}")
A(f"s_add_u32 {sr(sT6)}, {sr(sT6)}, {sr(sWSB)}")
A(f"s_add_u32 {sr(sT6)}, {sr(sT6)}, {WH1}")
poll(A, 2, None, 1, 8)
A("s_setprio 1")
stamp(A, "pollD")
h1_tok = {}


def h1_load(q):
    half, e = divmod(q, 22)
    if e % 4 == 0:
        A(f"s_add_u32 {sr(sT0)}, {sr(sT6)}, {half * H1H + e * 1024}")
    h1_tok[q] = A.vm(f"buffer_load_dwordx4 {vr(dHF + 4 * (q % NHF), 4)}, v{aKS}, {srd(SWS)}, {sr(sT0)} offen offset:{(e % 4) * 1024} sc1")


for q in range(NHF):
    h1_load(q)
for q in range(44):
    half, e = divmod(q, 22)
    A.wait(vm=h1_tok[q])
    for ch in range(2):
        mf32(A, dAC + 16 * ch, dW2 + 8 * e + 4 * ch, dHF + 4 * (q % NHF), "0" if e == 0 else None)
    if q + NHF < 44:
        h1_load(q + NHF)
    if e == 21:
        for ch in range(2):
            for a in range(4):
                A.ds(f"ds_write_b128 v{dPW + a}, {vr(dAC + 16 * ch + 4 * a, 4)} offset:{half * 8192 + ch * 128}")
        A.wait_lg0()
        A("s_barrier")
dump_stamps(A, 1)
A("L_exit:")
A("s_endpgm")

rep = []
body = pad_hazards(P.L + B.L, rep) + pad_hazards(A.L, rep) + pad_hazards(F.L) + tail
nb = lambda L: sum(1 for x in L if x.strip().startswith("s_barrier"))
assert nb(A.L) == nb(B.L), (nb(A.L), nb(B.L))
hdr = open("sequential_preLN__sliding_block__mixer_channel_mlp__prompt.s.ref").read().split("; Override launch")[0]
out = hdr + f"""; One persistent launch: 256 workgroups x 8 waves; generated by gen/gen.py ({' '.join(f'{k}={v}' for k, v in OPT.items())})
; stampsB {' '.join(STN.get(id(B), []))}
; stampsA {' '.join(STN.get(id(A), []))}
; @launch grid=(256,1,1) block=(512,1,1) lds={LDS_BYTES}
.amdgcn_target "amdgcn-amd-amdhsa--gfx950"
.text
.globl {NAME}
.p2align 8
.type {NAME},@function
{NAME}:
""" + "\n".join(body) + f"""
L_end:
    s_endpgm
.section .rodata,"a"
.p2align 6
.amdhsa_kernel {NAME}
  .amdhsa_next_free_vgpr 256
  .amdhsa_next_free_sgpr 102
  .amdhsa_accum_offset 256
  .amdhsa_group_segment_fixed_size 0
  .amdhsa_kernarg_size 88
  .amdhsa_user_sgpr_count 2
  .amdhsa_user_sgpr_kernarg_segment_ptr 1
  .amdhsa_system_sgpr_workgroup_id_x 1
.end_amdhsa_kernel
"""
open(sys.argv[1], "w").write(out)
tot = sum(r[0] for r in rep)
print(f"wrote {sys.argv[1]}: {len(body)} lines, barriers {nb(A.L)}, padded states {tot}", file=sys.stderr)
if "-v" in sys.argv[1]:
    pass
for r in rep:
    if r[0] >= 3:
        print("  pad", r, file=sys.stderr)
```

```python
import sys, struct
from asmlib import Stream, pad_hazards, vr, sr

NAME = "sequential_preLN__sliding_block__mixer_channel_mlp__prompt_kernel"

OPT = dict(stamps=0, warm=2, local=1, lo=0, lh=0, l1=0, ga=7, gb=3, g2a=3, tlb=1, c3=0, skipw=0, rotw=1, force_fb=0, codepf=1, xnt=0, diag=0, da='', db='', dk=1, dteam=0, set='main', infl=8, rot1=1, fa=0, wb=0, outsc=0)
for a in sys.argv[2:]:
    k, v = a.split("=")
    assert k in OPT, k
    OPT[k] = v if isinstance(OPT[k], str) else int(v)


def f2u(x):
    return struct.unpack("<I", struct.pack("<f", x))[0]


def hx(x):
    return hex(x & 0xffffffff)


SX, SWQ, SWO, SW1, SW2, SWS, SOUT, SB1, SB2, SDBG = 4, 8, 12, 16, 20, 24, 28, 32, 36, 40
sRB, sJ, sW, sROT, sWSB, sNONCE, sXCC, sRO = 44, 45, 46, 47, 48, 49, 50, 51
sT0, sT1, sT2, sT3, sT4, sT5, sT6, sT7 = 52, 53, 54, 55, 56, 57, 58, 59
sM0, sM1, sM2, sM3 = 60, 62, 64, 66
sCNT = 68
sLB = 69
sSTAMP = 70
srd = lambda b: sr(b, 4)

RBS = 0x80000
WKV, WO_, WH, WH1, WST, WFL = 0, 0x20000, 0x30000, 0x40000, 0x6C000, 0x70000
FLA, FLX, FLB, FLC, FLD = WFL, WFL + 0x1000, WFL + 0x1080, WFL + 0x1100, WFL + 0x1180
WSTAMP = 0x78000
WEPOCH = 0x7F000
H1H = 88 * 1024
WS_BYTES = 32 * RBS
OOB = 0x4000000

LDS_BYTES = 163840
SLOT = 32768
L_G0 = 98304
L_MISC = 159744
L_RS, L_NM, L_NONCE, L_C4, L_IB = L_MISC, L_MISC + 256, L_MISC + 512, L_MISC + 1024, L_MISC + 2048
HBLK, HHEAD, HGRP = 2080, 4160, 16640
halo_off = lambda b: (3 - (b >> 1)) * HGRP + (b & 1) * HBLK
L_WO = 94208
L_HST = 86016
W1S = 12288
W2W = 21504

TIMEOUT = 200000
tail = []
_lab = [0]


def lab(p):
    _lab[0] += 1
    return f"L_{p}{_lab[0]}"


STN = {}


def stamp(S, name, sets="main"):
    nm = STN.setdefault(id(S), ["t0"])
    if OPT["stamps"] and (OPT["set"] in sets.split() or name in (OPT["da"], OPT["db"])):
        assert len(nm) < 15
        S(f"s_memtime {sr(sSTAMP + 2 * len(nm), 2)}")
        nm.append(name)


def dma(S, vaddr, base, soff, off=0, fl=""):
    if OPT["skipw"] and base in (SW1, SWO, SW2):
        return S.vm_n
    o = f" offset:{off}" if off else ""
    fl = f" {fl}" if fl else ""
    return S.vm(f"buffer_load_dwordx4 {vr(vaddr)}, {srd(base)}, {soff} offen{o}{fl} lds")


def bg(S, *a, **k):
    S.wait(vm=S.vm_n - OPT["infl"] + 1)
    return dma(S, *a, **k)


def pub(S, stores, plain=True):
    if not plain:
        for st in stores:
            t = S.vm(st + " sc1")
        return t
    slow, join = lab("slow"), lab("join")
    S(f"s_cbranch_vccz {slow}")
    t = None
    for st in stores:
        t = S.vm(st)
    S(f"{join}:")
    tail.append(f"{slow}:")
    for st in stores:
        tail.append("    " + st + " sc1")
    tail.append(f"    s_branch {join}")
    return t


def poll(S, vaddr, vmask, vt, vu):
    lp, dn = lab("poll"), lab("pdone")
    S(f"s_mov_b32 {sr(sCNT)}, 0")
    S(f"{lp}:")
    S.vm(f"buffer_load_dword {vr(vt)}, {vr(vaddr)}, {srd(SWS)}, 0 offen sc1")
    S(f"s_add_u32 {sr(sCNT)}, {sr(sCNT)}, 1")
    S(f"s_cmp_gt_u32 {sr(sCNT)}, {TIMEOUT}")
    S.wait_vm0()
    S(f"s_cbranch_scc1 {dn}")
    if vmask is None:
        S(f"v_cmp_ne_u32 {sr(sM0, 2)}, {sr(sNONCE)}, {vr(vt)}")
    else:
        S(f"v_xor_b32 {vr(vu)}, {sr(sNONCE)}, {vr(vt)}")
        S(f"v_and_b32 {vr(vu)}, {vr(vu)}, {vr(vmask)}")
        S(f"v_cmp_ne_u32 {sr(sM0, 2)}, 0, {vr(vu)}")
    S(f"s_cmp_lg_u64 {sr(sM0, 2)}, 0")
    S(f"s_cbranch_scc1 {lp}")
    S(f"{dn}:")


def mf16(S, d, a, b, c=None):
    S(f"v_mfma_f32_16x16x32_bf16 {vr(d, 4)}, {vr(a, 4)}, {vr(b, 4)}, {vr(d, 4) if c is None else c}")


def mf32(S, d, a, b, c=None):
    S(f"v_mfma_f32_32x32x16_bf16 {vr(d, 16)}, {vr(a, 4)}, {vr(b, 4)}, {vr(d, 16) if c is None else c}")


def diag_spin(S, team):
    if OPT["diag"] == 1 and team == 0:
        if OPT["wb"] == 9:
            S("s_waitcnt vmcnt(0)")
            S.raw("buffer_wbl2 sc1")
        S("s_mov_b32 s52, 0")
        S("L_diag:")
        for _ in range(64):
            S("s_nop 15")
        S("s_add_u32 s52, s52, 1")
        S(f"s_cmp_lt_u32 s52, {OPT['dk']}")
        S("s_cbranch_scc1 L_diag")
    if OPT["diag"] == 2 and team == OPT["dteam"]:
        S("s_memtime s[52:53]")
        S("s_waitcnt lgkmcnt(0)")
        S(f"s_sub_u32 s54, {sr(sSTAMP + 2 * STN[id(S)].index(OPT['db']))}, {sr(sSTAMP + 2 * STN[id(S)].index(OPT['da']))}")
        S(f"s_mul_i32 s54, s54, {OPT['dk']}")
        S("L_diag:")
        S("s_memtime s[56:57]")
        S("s_waitcnt lgkmcnt(0)")
        S("s_sub_u32 s56, s56, s52")
        S("s_cmp_lt_u32 s56, s54")
        S("s_cbranch_scc1 L_diag")


def dump_stamps(S, team):
    if OPT["diag"] == 3 and team == 0:
        S("s_memrealtime s[52:53]")
        S("s_waitcnt lgkmcnt(0)")
        S(f"s_sub_u32 s54, s52, {sr(sSTAMP + 30)}")
        S("L_diag:")
        S("s_memrealtime s[56:57]")
        S("s_waitcnt lgkmcnt(0)")
        S("s_sub_u32 s56, s56, s52")
        S("s_cmp_lt_u32 s56, s54")
        S("s_cbranch_scc1 L_diag")
    diag_spin(S, team)
    if OPT["stamps"] != 1:
        return
    S("s_waitcnt lgkmcnt(0)")
    S(f"s_lshl_b32 {sr(sT0)}, {sr(sJ)}, 10")
    S(f"s_lshl_b32 {sr(sT1)}, {sr(sW)}, 7")
    S(f"s_add_u32 {sr(sT0)}, {sr(sT0)}, {sr(sT1)}")
    S(f"s_add_u32 {sr(sT0)}, {sr(sT0)}, {WSTAMP + team * 512}")
    S(f"s_add_u32 {sr(sT0)}, {sr(sT0)}, {sr(sWSB)}")
    S("v_mov_b32 v1, 0")
    for i in range(16):
        S(f"v_mov_b32 v2, {sr(sSTAMP + 2 * i)}")
        S.vm(f"buffer_store_dword v2, v1, {srd(SWS)}, {sr(sT0)} offen offset:{4 * i}")
    S.wait_vm0()


P = Stream()
SRDS = {SX: (0, 2097152), SWQ: (8, 1572864), SWS: (80, WS_BYTES), SW1: (32, 1409024), SWO: (16, 524288), SW2: (48, 1409024),
        SB1: (40, 2752), SB2: (56, 1024), SOUT: (64, 2097152), SDBG: (72, 256)}


def srd_load(S, bases):
    for b in bases:
        S(f"s_load_dwordx2 {sr(b, 2)}, s[0:1], {SRDS[b][0]}")


def srd_fill(S, bases):
    for b in bases:
        S(f"s_mov_b32 {sr(b + 2)}, {SRDS[b][1]}")
        S(f"s_mov_b32 {sr(b + 3)}, 0x20000")


srd_load(P, (SX, SWQ))
P("s_cmp_ge_u32 s2, 256")
P("s_cbranch_scc1 L_exit")
if OPT["stamps"]:
    P(f"s_memtime {sr(sSTAMP, 2)}")
    P(f"s_memrealtime {sr(sSTAMP + 30, 2)}")
P(f"s_bfe_u32 {sr(sJ)}, s2, 0x30003")
if OPT["codepf"]:
    P(f"s_getpc_b64 {sr(sM0, 2)}")
    P("L_pc:")
    P(f"s_mov_b32 {sr(sM0 + 2)}, L_end-L_pc")
    P(f"s_mov_b32 {sr(sM0 + 3)}, 0x20000")
    P(f"s_lshl_b32 {sr(sT0)}, {sr(sJ)}, 7")
    P("v_lshrrev_b32 v1, 4, v0")
    P("v_lshlrev_b32 v1, 10, v1")
    P("s_mov_b32 exec_lo, 0x10001")
    P("s_mov_b32 exec_hi, 0x10001")
    P.raw(f"buffer_load_dword v255, v1, {srd(sM0)}, {sr(sT0)} offen")
    P("s_mov_b64 exec, -1")
P(f"v_readfirstlane_b32 {sr(sT0)}, v0")
P("v_and_b32 v0, 63, v0")
P(f"s_lshr_b32 {sr(sT1)}, s2, 6")
P(f"s_and_b32 {sr(sT2)}, s2, 7")
P(f"s_lshl2_add_u32 {sr(sRB)}, {sr(sT2)}, {sr(sT1)}")
P(f"s_bfe_u32 {sr(sW)}, {sr(sT0)}, 0x20006")
P(f"s_cmp_ge_u32 {sr(sT0)}, 256")
P("s_cbranch_scc1 L_teamA")


def late_ids(S):
    S(f"s_lshl_b32 {sr(sWSB)}, {sr(sRB)}, 19")
    if OPT["rotw"] == 1:
        S(f"s_lshl_b32 {sr(sRO)}, s2, 2")
        S(f"s_and_b32 {sr(sRO)}, {sr(sRO)}, 12")
    elif OPT["rotw"] == 2:
        S(f"s_lshr_b32 {sr(sRO)}, s2, 6")
        S(f"s_lshl_b32 {sr(sRO)}, {sr(sRO)}, 2")
    else:
        S(f"s_mov_b32 {sr(sRO)}, 0")


B = Stream()
bX0, bX1, bWA = 1, 2, 3
bW1A = 4
bW1R = 7
bSA = 10
bONE = 16
bSUM, bSQ = 20, 24
bXF = 28
bT = 36
bCS = 48
bB1 = 60
bW1 = 64

B("s_setprio 2")
srd_fill(B, (SX, SWQ))
if OPT["rot1"] == 1:
    B(f"s_add_u32 {sr(sROT)}, {sr(sT2)}, {sr(sJ)}")
elif OPT["rot1"] == 2:
    B(f"s_lshl1_add_u32 {sr(sROT)}, {sr(sT1)}, {sr(sJ)}")
    B(f"s_and_b32 {sr(sT2)}, {sr(sT2)}, 1")
    B(f"s_add_u32 {sr(sROT)}, {sr(sROT)}, {sr(sT2)}")
elif OPT["rot1"] == 3:
    B(f"s_and_b32 {sr(sT1)}, {sr(sT1)}, 1")
    B(f"s_lshl2_add_u32 {sr(sROT)}, {sr(sT1)}, {sr(sJ)}")
    B(f"s_add_u32 {sr(sROT)}, {sr(sROT)}, {sr(sT2)}")
else:
    B(f"s_mov_b32 {sr(sROT)}, {sr(sJ)}")
B(f"v_lshrrev_b32 v{bT}, 3, v0")
B(f"v_lshrrev_b32 v{bT + 1}, 4, v0")
B(f"v_and_b32 v{bT + 2}, 7, v0")
B(f"s_lshl_b32 {sr(sT0)}, {sr(sRB)}, 16")
B(f"s_lshl_b32 {sr(sT1)}, {sr(sW)}, 14")
B(f"s_add_u32 {sr(sT0)}, {sr(sT0)}, {sr(sT1)}")
B(f"v_xor_b32 v{bT + 3}, v{bT + 2}, v{bT + 1}")
B(f"v_lshlrev_b32 v{bT + 3}, 4, v{bT + 3}")
B(f"v_lshl_add_u32 v{bT + 3}, v{bT}, 10, v{bT + 3}")
B(f"v_add_u32 v{bX0}, {sr(sT0)}, v{bT + 3}")
B(f"v_xor_b32 v{bX1}, 64, v{bX0}")
B(f"v_add_u32 v{bX1}, 7168, v{bX1}")
B(f"s_and_b32 {sr(sT0)}, {sr(sW)}, 1")
B(f"s_lshl_b32 {sr(sT0)}, {sr(sT0)}, 2")
B(f"v_and_b32 v{bT + 3}, 1, v{bT + 1}")
B(f"v_lshl_or_b32 v{bT + 3}, v{bT + 3}, 1, {sr(sT0)}")
B(f"v_xor_b32 v{bT + 3}, v{bT + 3}, v{bT + 2}")
B(f"v_lshlrev_b32 v{bT + 3}, 4, v{bT + 3}")
B(f"s_mul_i32 {sr(sT0)}, {sr(sW)}, {8 * 3072}")
B(f"s_lshl_b32 {sr(sT1)}, {sr(sJ)}, 7")
B(f"s_add_u32 {sr(sT0)}, {sr(sT0)}, {sr(sT1)}")
B(f"v_mul_u32_u24 v{bT + 4}, 3072, v{bT}")
B(f"v_add3_u32 v{bWA}, v{bT + 3}, v{bT + 4}, {sr(sT0)}")
sXM, sWM, sSL = sT4, sT5, sT6
B(f"s_lshl_b32 {sr(sXM)}, {sr(sW)}, 11")
B(f"s_mul_i32 {sr(sWM)}, {sr(sW)}, 3072")
B(f"s_and_b32 {sr(sSL)}, {sr(sROT)}, 7")
stamp(B, "prek", "start")
B("s_waitcnt lgkmcnt(0)")
stamp(B, "karg", "start")

tok_s1 = {}


def s1_issue(s, part):
    slot = (s % 3) * SLOT
    if part == 0:
        B(f"s_add_u32 m0, {sr(sXM)}, {slot}")
        B(f"s_lshl_b32 {sr(sT0)}, {sr(sSL)}, 7")
        fl = "nt" if OPT["xnt"] else ""
        dma(B, bX0, SX, sr(sT0), 0, fl)
        dma(B, bX1, SX, sr(sT0), 1024, fl)
        B(f"s_add_u32 m0, {sr(sWM)}, {slot + 8192}")
        B(f"s_mul_i32 {sr(sT1)}, {sr(sSL)}, 196608")
        dma(B, bWA, SWQ, sr(sT1), 1024)
        dma(B, bWA, SWQ, sr(sT1), 2048)
    else:
        tok_s1[(s, 0)] = dma(B, bWA, SWQ, sr(sT1), 0)
        B(f"s_add_u32 m0, {sr(sWM)}, {slot + 8192 + 12288}")
        B(f"s_add_u32 {sr(sT1)}, {sr(sT1)}, 98304")
        for m in (1, 2, 0):
            tok_s1[(s, 1)] = dma(B, bWA, SWQ, sr(sT1), m * 1024)
        B(f"s_add_u32 {sr(sSL)}, {sr(sSL)}, 1")
        B(f"s_and_b32 {sr(sSL)}, {sr(sSL)}, 7")


s1_issue(0, 0)
stamp(B, "iss5", "start")
s1_issue(0, 1)
stamp(B, "iss8", "start")
REST = (SWS, SW1, SWO, SW2, SB1, SB2, SOUT, SDBG)
srd_load(B, REST)
srd_fill(B, REST)
late_ids(B)
B(f"s_mul_i32 {sr(sT0)}, {sr(sW)}, {8 * 2752}")
B(f"s_mul_i32 {sr(sT2)}, {sr(sJ)}, 352")
B(f"s_add_u32 {sr(sT0)}, {sr(sT0)}, {sr(sT2)}")
B(f"s_mul_i32 {sr(sT2)}, {sr(sJ)}, 22")
B(f"s_sub_u32 {sr(sT2)}, 172, {sr(sT2)}")
B(f"s_min_u32 {sr(sT2)}, {sr(sT2)}, 22")
B(f"s_mov_b32 {sr(sT3)}, 2752")
for i in range(3):
    B(f"v_add_u32 v{bT + 3}, {64 * i}, v0")
    B(f"v_mul_u32_u24 v{bT + 4}, 171, v{bT + 3}")
    B(f"v_lshrrev_b32 v{bT + 4}, 12, v{bT + 4}")
    B(f"v_mul_u32_u24 v{bT + 5}, 24, v{bT + 4}")
    B(f"v_sub_u32 v{bT + 5}, v{bT + 3}, v{bT + 5}")
    B(f"v_and_b32 v{bT + 6}, 6, v{bT + 4}")
    B(f"v_xor_b32 v{bT + 5}, v{bT + 5}, v{bT + 6}")
    B(f"v_cmp_gt_u32 {sr(sM0, 2)}, {sr(sT2)}, v{bT + 5}")
    B(f"v_lshlrev_b32 v{bT + 5}, 4, v{bT + 5}")
    B(f"v_mad_u32_u24 v{bT + 5}, v{bT + 4}, {sr(sT3)}, v{bT + 5}")
    B(f"v_add_u32 v{bT + 5}, {sr(sT0)}, v{bT + 5}")
    if i:
        B(f"v_subrev_u32 v{bT + 5}, {1024 * i}, v{bT + 5}")
    B(f"v_mov_b32 v{bT + 6}, {hx(OOB)}")
    B(f"v_cndmask_b32 v{bW1A + i}, v{bT + 6}, v{bT + 5}, {sr(sM0, 2)}")
B(f"v_lshrrev_b32 v{bT + 3}, 2, v0")
B(f"v_bfe_u32 v{bT + 4}, v0, 3, 2")
B(f"v_and_b32 v{bT + 5}, 3, v0")
B(f"v_lshlrev_b32 v{bT + 5}, 3, v{bT + 5}")
B(f"v_mul_u32_u24 v{bT + 3}, 384, v{bT + 3}")
B(f"v_add_u32 v{bT + 3}, v{bT + 3}, v{bT + 5}")
B(f"v_add_u32 v{bT + 3}, {L_G0}, v{bT + 3}")
B(f"s_mul_i32 {sr(sT0)}, {sr(sW)}, 3")
for n in range(3):
    B(f"v_xor_b32 v{bT + 5}, {sr(sT0)}, v{bT + 4}")
    B(f"v_lshl_add_u32 v{bW1R + n}, v{bT + 5}, 5, v{bT + 3}")
    B(f"s_add_u32 {sr(sT0)}, {sr(sT0)}, 1")
B(f"v_and_b32 v{bT + 3}, 15, v0")
B(f"v_lshrrev_b32 v{bT + 4}, 1, v{bT + 3}")
B(f"v_xor_b32 v{bT + 4}, v{bT + 4}, v{bT + 1}")
B(f"v_lshlrev_b32 v{bT + 4}, 4, v{bT + 4}")
B(f"v_lshl_add_u32 v{bT + 4}, v{bT + 3}, 7, v{bT + 4}")
B(f"v_add_u32 v{bSA}, {sr(sXM)}, v{bT + 4}")
B(f"v_xor_b32 v{bSA + 1}, 64, v{bSA}")
B(f"v_add_u32 v{bSA + 2}, 0x10000, v{bSA}")
B(f"v_add_u32 v{bSA + 3}, 0x10000, v{bSA + 1}")
for i in range(4):
    B(f"v_mov_b32 v{bONE + i}, 0x3f803f80")
sW1K = sT7
B(f"s_mov_b32 {sr(sW1K)}, {sr(sRO)}")
B("s_waitcnt lgkmcnt(0)")
s1_issue(1, 0)
stamp(B, "iss12", "start")

w1_tok = {}
w1_at = {}
w1_next = [0]
w1_dr = [0]


def w1_issue(lds, thr=True):
    i = w1_next[0]
    w1_next[0] += 1
    B(f"s_add_u32 m0, {sr(sWM)}, {lds}")
    B(f"s_mul_i32 {sr(sT0)}, {sr(sW1K)}, 88064")
    for n in range(3):
        t = (bg if thr else dma)(B, bW1A + n, SW1, sr(sT0), n * 1024)
    B(f"s_add_u32 {sr(sW1K)}, {sr(sW1K)}, 1")
    B(f"s_and_b32 {sr(sW1K)}, {sr(sW1K)}, 15")
    w1_tok[i] = t
    w1_at[i] = lds
    return t


w1_base = [L_G0]


def w1_drain(upto):
    todo = sorted(range(w1_dr[0], upto), key=lambda i: w1_at[i])
    w1_dr[0] = upto
    for i in todo:
        lds = w1_at[i]
        if not 0 <= lds - w1_base[0] <= 65535 - 6144:
            for n in range(3):
                B(f"v_add_u32 v{bW1R + n}, {hx(lds - w1_base[0])}, v{bW1R + n}")
            w1_base[0] = lds
        for n in range(3):
            for h in range(2):
                B.ds(f"ds_read_b64_tr_b16 {vr(bW1 + 12 * i + 4 * n + 2 * h, 2)}, v{bW1R + n} offset:{lds - w1_base[0] + h * 6144}")


def warm_touch(S, va, vd, which):
    S(f"s_lshl2_add_u32 {sr(sT0)}, s2, {sr(sW)}")
    S(f"s_mul_i32 {sr(sT2)}, {sr(sT0)}, {11 * 128}")
    S(f"s_lshl_b32 {sr(sT0)}, {sr(sT0)}, 9")
    S(f"v_lshlrev_b32 v{va}, 7, v0")
    S("s_mov_b64 exec, 0x7ff")
    if "1" in which:
        S.vm(f"buffer_load_dword v{vd}, v{va}, {srd(SW1)}, {sr(sT2)} offen")
    if "2" in which:
        S.vm(f"buffer_load_dword v{vd + 1}, v{va}, {srd(SW2)}, {sr(sT2)} offen")
    S("s_mov_b64 exec, 0xf")
    if "o" in which:
        S.vm(f"buffer_load_dword v{vd + 2}, v{va}, {srd(SWO)}, {sr(sT0)} offen")
    S("s_mov_b64 exec, -1")


def w1_colsum(first, count):
    for i in range(first, first + count):
        for n in range(3):
            mf16(B, bCS + 4 * n, bONE, bW1 + 12 * i + 4 * n, "0" if i == 0 else None)


def st_mf(n):
    mf16(B, bSUM, bONE, bXF + 4 * (n & 1), "0" if n == 0 else None)
    mf16(B, bSQ, bXF + 4 * (n & 1), bXF + 4 * (n & 1), "0" if n == 0 else None)


for n in range(16):
    s, t = n >> 1, n & 1
    B.wait(vm=tok_s1[(s, t)], lg=B.lg_n)
    if n == 0:
        stamp(B, "land0", "start")
    B("s_barrier")
    if n == 0:
        stamp(B, "bar0", "main start")
    elif n in (2, 4, 6, 8, 10, 12, 14):
        stamp(B, f"bar{n}", "start")
    sl = s % 3
    tk = B.ds(f"ds_read_b128 {vr(bXF + 4 * t, 4)}, v{bSA + t + (2 if sl == 2 else 0)} offset:{(sl & 1) * SLOT}")
    if n:
        st_mf(n - 1)
    q = n + 3
    if q < 16:
        s1_issue(q >> 1, q & 1)
    elif n < 15:
        if n == 13 and OPT["warm"] in (2, 3):
            warm_touch(B, bT + 8, bT + 9, "12o" if OPT["warm"] == 2 else "2o")
        if w1_next[0] < OPT["ga"]:
            w1_issue(L_G0 + w1_next[0] * W1S, False)
B.wait(lg=tk)
st_mf(15)
stamp(B, "s1end")
B(f"v_and_b32 v{bT}, 3, v0")
B(f"v_cmp_eq_u32 {sr(sM0, 2)}, 1, v{bT}")
B(f"v_cmp_eq_u32 {sr(sM1, 2)}, 2, v{bT}")
B(f"v_cmp_eq_u32 {sr(sM2, 2)}, 3, v{bT}")
B(f"v_and_b32 v{bT + 2}, 15, v0")
B(f"s_lshl_b32 {sr(sT0)}, {sr(sW)}, 6")
B(f"s_add_u32 {sr(sT0)}, {sr(sT0)}, {L_RS}")
B(f"v_lshl_add_u32 v{bT + 2}, v{bT + 2}, 2, {sr(sT0)}")
B(f"v_mul_f32 v{bT + 3}, {hx(f2u(-1.0 / 512))}, v{bSUM}")
B(f"v_cndmask_b32 v{bT + 1}, v{bSQ}, v{bSQ + 1}, {sr(sM0, 2)}")
B(f"v_cndmask_b32 v{bT + 1}, v{bT + 1}, v{bSQ + 2}, {sr(sM1, 2)}")
B(f"v_cndmask_b32 v{bT + 1}, v{bT + 1}, v{bSQ + 3}, {sr(sM2, 2)}")
B(f"v_mul_f32 v{bT + 1}, {hx(f2u(1.0 / 512))}, v{bT + 1}")
B(f"v_fma_f32 v{bT + 1}, -v{bT + 3}, v{bT + 3}, v{bT + 1}")
B(f"v_max_f32 v{bT + 1}, 0, v{bT + 1}")
B(f"v_add_f32 v{bT + 1}, {hx(f2u(1e-5))}, v{bT + 1}")
B(f"v_rsq_f32 v{bT + 1}, v{bT + 1}")
B("s_mov_b32 exec_lo, 0x00f0000f")
B("s_mov_b32 exec_hi, 0xf0000f00")
B(f"v_mul_f32 v{bT + 3}, v{bT + 3}, v{bT + 1}")
B.ds(f"ds_write2st64_b32 v{bT + 2}, v{bT + 1}, v{bT + 3} offset0:0 offset1:1")
B("s_mov_b64 exec, -1")
B.wait_lg0()
B("s_barrier")
B("s_setprio 0")
stamp(B, "S1e")
B(f"v_mov_b32 v{bT}, {L_NONCE}")
tk = B.ds(f"ds_read_b32 v{bT + 1}, v{bT}")
GA, GB, G2A = OPT["ga"], OPT["gb"], OPT["g2a"]
G2B = 16 - GA - GB - G2A
slots_b = [73728, 0, 12288]
slots_2a = [24576, 36864, 49152, 61440] + slots_b[GB:]
slots_2b = slots_b[:GB] + slots_2a[G2A:]
assert GA <= 7 and GB <= 3 and 0 <= G2A <= len(slots_2a) and 0 <= G2B <= len(slots_2b)
B.wait(lg=tk)
B(f"v_readfirstlane_b32 {sr(sNONCE)}, v{bT + 1}")
bPA, bPM, bWO, bHL, bPX = 28, 29, 30, 31, 32
B(f"s_getreg_b32 {sr(sXCC)}, hwreg(HW_REG_XCC_ID, 0, 4)")
B(f"s_lshl2_add_u32 {sr(sT0)}, {sr(sJ)}, {sr(sW)}")
B(f"s_lshl_b32 {sr(sT0)}, {sr(sT0)}, 7")
B(f"s_add_u32 {sr(sT0)}, {sr(sT0)}, {sr(sWSB)}")
B(f"s_add_u32 {sr(sT0)}, {sr(sT0)}, {hx(FLA - RBS)}")
B(f"v_lshlrev_b32 v{bT}, 19, v0")
B(f"v_sub_u32 v{bT}, {sr(sT0)}, v{bT}")
B(f"s_min_u32 {sr(sT2)}, {sr(sRB)}, 4")
B(f"v_cmp_gt_u32 {sr(sM0, 2)}, {sr(sT2)}, v0")
B(f"v_mov_b32 v{bT + 2}, {hx(OOB)}")
B(f"v_cndmask_b32 v{bPA}, v{bT + 2}, v{bT}, {sr(sM0, 2)}")
B(f"v_cndmask_b32 v{bPM}, 0, -1, {sr(sM0, 2)}")
B(f"v_and_b32 v{bT + 1}, 7, v0")
B(f"s_add_u32 {sr(sT1)}, {sr(sWSB)}, {FLX}")
B(f"v_lshl_add_u32 v{bPX}, v{bT + 1}, 2, {sr(sT1)}")
while w1_next[0] < GA:
    w1_issue(L_G0 + w1_next[0] * W1S if w1_next[0] < 5 else 73728 + (w1_next[0] - 5) * W1S)
B(f"v_lshrrev_b32 v{bT}, 3, v0")
B(f"v_and_b32 v{bT + 1}, 6, v{bT}")
B(f"v_and_b32 v{bT + 2}, 7, v0")
B(f"v_xor_b32 v{bT + 1}, v{bT + 1}, v{bT + 2}")
B(f"v_lshlrev_b32 v{bT + 1}, 4, v{bT + 1}")
B(f"v_lshl_add_u32 v{bT + 1}, v{bT}, 10, v{bT + 1}")
B(f"s_lshl_b32 {sr(sT0)}, {sr(sW)}, 13")
B(f"s_lshl_b32 {sr(sT1)}, {sr(sJ)}, 7")
B(f"s_add_u32 {sr(sT0)}, {sr(sT0)}, {sr(sT1)}")
B(f"v_add_u32 v{bWO}, {sr(sT0)}, v{bT + 1}")
B(f"s_lshl2_add_u32 {sr(sT0)}, {sr(sJ)}, {sr(sW)}")
B(f"s_lshl_b32 {sr(sT0)}, {sr(sT0)}, 12")
B(f"v_lshl_add_u32 v{bHL}, v0, 4, {sr(sT0)}")
B(f"v_lshrrev_b32 v{bT}, 1, v0")
B(f"v_cmp_gt_u32 {sr(sM0, 2)}, {sr(sRB)}, v{bT}")
B(f"s_mul_i32 {sr(sLB)}, {sr(sW)}, {HHEAD}")
B(f"v_mul_u32_u24 v{bT}, {HGRP - 2 * HBLK}, v{bT}")
B(f"v_mul_u32_u24 v{bT + 1}, {HBLK}, v0")
B(f"v_add3_u32 v{bT + 1}, v{bT + 1}, v{bT}, {sr(sLB)}")
for i in range(4):
    B(f"v_cndmask_b32 v{bT + 4 + i}, 0, v{bONE}, {sr(sM0, 2)}")
stamp(B, "preD")
B("s_barrier")
B("s_mov_b64 exec, 0xff")
B.ds(f"ds_write_b128 v{bT + 1}, {vr(bT + 4, 4)} offset:2048")
B("s_mov_b64 exec, -1")
B("s_setprio 2")
poll(B, bPA, bPM, bT + 2, bT + 3)
stamp(B, "pollA")
h_tok = []
for i in range(1, 5):
    B(f"s_sub_u32 {sr(sT0)}, {sr(sWSB)}, {i * RBS}")
    B(f"s_cselect_b32 {sr(sT0)}, {hx(OOB)}, {sr(sT0)}")
    for blk in (1, 0):
        B(f"s_add_u32 m0, {sr(sLB)}, {halo_off(8 - 2 * i + blk)}")
        B(f"s_add_u32 {sr(sT1)}, {sr(sT0)}, {blk * 2048}")
        dma(B, bHL, SWS, sr(sT1), 0, "sc1")
        t = dma(B, bHL, SWS, sr(sT1), 1024, "sc1")
    h_tok.append(t)
    if i == 2:
        B.wait(vm=h_tok[0], lg=B.lg_n)
        B("s_barrier")
        stamp(B, "H0")
B("s_setprio 0")
w1_drain(GA)
sWOK = sT6
B(f"s_mov_b32 {sr(sWOK)}, {sr(sRO)}")
B(f"s_lshl_b32 {sr(sT3)}, {sr(sW)}, 10")
wo_next = [0]


def wo_issue(cnt):
    for _ in range(cnt):
        n = wo_next[0]
        wo_next[0] += 1
        B(f"s_add_u32 m0, {sr(sT3)}, {L_WO + n * 4096}")
        B(f"s_lshl_b32 {sr(sT0)}, {sr(sWOK)}, 15")
        bg(B, bWO, SWO, sr(sT0))
        B(f"s_add_u32 {sr(sWOK)}, {sr(sWOK)}, 1")
        B(f"s_and_b32 {sr(sWOK)}, {sr(sWOK)}, 15")


B.wait(vm=h_tok[1], lg=B.lg_n)
B("s_barrier")
tx = B.vm(f"buffer_load_dword v{bT + 2}, v{bPX}, {srd(SWS)}, 0 offen sc1")
wo_issue(7)
lp, dn = lab("xp"), lab("xpd")
B(f"s_mov_b32 {sr(sCNT)}, 0")
B.wait(vm=tx)
B(f"{lp}:")
B(f"v_xor_b32 v{bT + 3}, {sr(sNONCE)}, v{bT + 2}")
B(f"v_cmp_le_u32 {sr(sM0, 2)}, 16, v{bT + 3}")
B(f"s_cmp_lg_u64 {sr(sM0, 2)}, 0")
B(f"s_cbranch_scc1 {lp}x")
B(f"{dn}:")
tail += [f"{lp}x:", f"    s_add_u32 {sr(sCNT)}, {sr(sCNT)}, 1", f"    s_cmp_gt_u32 {sr(sCNT)}, {TIMEOUT}", f"    s_cbranch_scc1 {dn}",
         f"    buffer_load_dword v{bT + 2}, v{bPX}, {srd(SWS)}, 0 offen sc1", "    s_waitcnt vmcnt(0)", f"    s_branch {lp}"]
B(f"v_and_b32 v{bT + 2}, 15, v{bT + 2}")
B(f"v_cmp_ne_u32 {sr(sM0, 2)}, {sr(sXCC)}, v{bT + 2}")
B(f"s_cmp_eq_u64 {sr(sM0, 2)}, 0")
B(f"s_cselect_b64 vcc, {-1 if OPT['local'] else 0}, 0")
B(f"v_mov_b32 v{bT}, {L_NONCE + 4}")
B(f"v_mov_b32 v{bT + 1}, vcc_lo")
B.ds(f"ds_write_b32 v{bT}, v{bT + 1}")
B.wait(vm=h_tok[3], lg=B.lg_n)
B("s_barrier")
wo_issue(9)
B(f"s_add_u32 m0, {sr(sXM)}, {L_HST}")
B(f"s_lshl_b32 {sr(sT0)}, {sr(sJ)}, 7")
bg(B, bX0, SX, sr(sT0), 0)
bg(B, bX1, SX, sr(sT0), 1024)
B(f"s_mul_i32 {sr(sT0)}, {sr(sJ)}, 352")
B(f"s_mul_i32 {sr(sT1)}, {sr(sW)}, 96")
B(f"s_add_u32 {sr(sT0)}, {sr(sT0)}, {sr(sT1)}")
B(f"v_and_b32 v{bT}, 15, v0")
B(f"v_lshlrev_b32 v{bT}, 1, v{bT}")
for n in range(3):
    t = B.vm(f"buffer_load_ushort v{bB1 + n}, v{bT}, {srd(SB1)}, {sr(sT0)} offen offset:{32 * n}")
if OPT["lo"] or OPT["lh"]:
    B(f"v_and_b32 v{bT + 1}, 15, v0")
    B(f"v_lshlrev_b32 v{bT + 1}, 7, v{bT + 1}")
    B(f"v_bfe_u32 v{bT + 2}, v0, 4, 1")
    B(f"v_lshl_add_u32 v{bT + 1}, v{bT + 2}, 16, v{bT + 1}")
    B(f"s_lshl_b32 {sr(sT0)}, {sr(sW)}, 14")
    B(f"s_lshl_b32 {sr(sT1)}, {sr(sJ)}, 11")
    B(f"s_add_u32 {sr(sT0)}, {sr(sT0)}, {sr(sT1)}")
    B(f"s_add_u32 {sr(sT0)}, {sr(sT0)}, {WO_}")
    B(f"v_add_u32 v{bT + 1}, {sr(sT0)}, v{bT + 1}")
    B(f"s_lshl_b32 {sr(sT0)}, {sr(sW)}, 10")
    B(f"s_lshl_b32 {sr(sT1)}, {sr(sJ)}, 7")
    B(f"s_add_u32 {sr(sT0)}, {sr(sT0)}, {sr(sT1)}")
    B(f"s_add_u32 {sr(sT0)}, {sr(sT0)}, {WST}")
    B(f"v_writelane_b32 v{bT + 1}, {sr(sT0)}, 32")
    B(f"s_mov_b32 exec_lo, {hx((0xffff if OPT['lo'] else 0) | (0xffff0000 if OPT['lh'] else 0))}")
    B(f"s_mov_b32 exec_hi, {OPT['lh']}")
    B.vm(f"buffer_load_dword v{bT + 2}, v{bT + 1}, {srd(SWS)}, {sr(sWSB)} offen sc1")
    B("s_mov_b64 exec, -1")
for i in range(GB):
    t = w1_issue(slots_b[i])
stamp(B, "preE")
B.wait(vm=t)
B("s_barrier")
stamp(B, "E")
w1_drain(GA + GB)
for i in range(G2A):
    w1_issue(slots_2a[i])
B.wait_lg0()
w1_colsum(0, GA + GB)
B.wait_vm0()
B("s_barrier")
for i in range(G2B):
    w1_issue(slots_2b[i])
w1_drain(GA + GB + G2A)
bHA, bCA, bIA, bSP, bSG = 1, 2, 3, 10, 11
B(f"v_lshlrev_b32 v{bHA}, 4, v0")
B(f"v_add_u32 v{bHA}, {L_WO}, v{bHA}")
B(f"v_and_b32 v{bT}, 15, v0")
B(f"v_lshlrev_b32 v{bT}, 4, v{bT}")
B(f"v_add_u32 v{bCA}, {L_C4}, v{bT}")
B(f"v_lshlrev_b32 v{bIA}, 3, v0")
B(f"v_add_u32 v{bIA}, {L_IB}, v{bIA}")
B(f"s_mul_i32 {sr(sT0)}, {sr(sJ)}, 11")
B(f"s_mul_i32 {sr(sT1)}, {sr(sW)}, 3")
B(f"s_add_u32 {sr(sT0)}, {sr(sT0)}, {sr(sT1)}")
B(f"s_lshl_b32 {sr(sT0)}, {sr(sT0)}, 10")
B(f"s_add_u32 {sr(sT0)}, {sr(sT0)}, {WH1}")
B(f"v_lshrrev_b32 v{bT + 1}, 4, v0")
B(f"v_lshl_add_u32 v{bT + 2}, v{bT + 1}, 9, v{bT}")
B(f"v_add_u32 v{bSP}, {sr(sT0)}, v{bT + 2}")
B(f"v_lshrrev_b32 v{bT + 2}, 5, v0")
B(f"v_lshl_add_u32 v{bT + 2}, v{bT + 2}, 9, v{bT}")
B(f"v_and_b32 v{bT + 1}, 1, v{bT + 1}")
B(f"v_lshl_add_u32 v{bT + 2}, v{bT + 1}, 3, v{bT + 2}")
B(f"s_add_u32 {sr(sT0)}, {sr(sT0)}, 2048")
B(f"s_cmp_eq_u32 {sr(sW)}, 3")
B(f"s_cselect_b32 {sr(sT0)}, {hx(OOB)}, {sr(sT0)}")
B(f"v_add_u32 v{bSG}, {sr(sT0)}, v{bT + 2}")
B.wait_lg0()
w1_colsum(GA + GB, G2A)
B.wait_vm0()
B("s_barrier")
stamp(B, "C1", "main late")
w1_drain(16)
B(f"v_lshrrev_b32 v{bT}, 4, v0")
B(f"v_cmp_eq_u32 {sr(sM0, 2)}, 0, v{bT}")
B(f"v_cmp_eq_u32 {sr(sM1, 2)}, 1, v{bT}")
B.wait_lg0()
w1_colsum(GA + GB + G2A, G2B)
bIN = 4
for n in range(3):
    cs = bCS + 4 * n
    B(f"v_cvt_pk_bf16_f32 v{bT}, v{cs}, 0")
    B(f"v_lshlrev_b32 v{bT + 1}, 16, v{bT}")
    B(f"v_sub_f32 v{bT + 1}, v{cs}, v{bT + 1}")
    B(f"v_cvt_pk_bf16_f32 v{bT + 1}, v{cs}, v{bT + 1}")
    B(f"v_lshl_or_b32 v{bT + 2}, v{bB1 + n}, 16, v{bB1 + n}")
    B(f"v_cndmask_b32 v{bT + 1}, 0, v{bT + 1}, {sr(sM1, 2)}")
    B(f"v_cndmask_b32 v{bIN + 2 * n}, v{bT + 1}, v{bT + 2}, {sr(sM0, 2)}")
    B(f"v_cndmask_b32 v{bIN + 2 * n + 1}, 0, v{bT}, {sr(sM1, 2)}")
B("s_setprio 2")
B("s_barrier")
stamp(B, "T0", "main late")
bHF = 12
bAC = 24
bC4 = 48
bIB = 52
bG = 54
sH1 = sT3


def gelu_ops(t):
    ac = bAC + 12 * (t & 1)
    ops = []
    for p in range(6):
        a0, a1 = ac + 2 * p, ac + 2 * p + 1
        g0, g1 = bG + 2 * (p & 1), bG + 2 * (p & 1) + 1
        ops += [f"v_mul_f32 v{g0}, v{a0}, v{a0}", f"v_mul_f32 v{g1}, v{a1}, v{a1}",
                f"v_fma_f32 v{g0}, v{g0}, v{bC4 + 1}, v{bC4}", f"v_fma_f32 v{g1}, v{g1}, v{bC4 + 1}, v{bC4}",
                f"v_mul_f32 v{g0}, v{g0}, v{a0}", f"v_mul_f32 v{g1}, v{g1}, v{a1}",
                f"v_exp_f32 v{g0}, v{g0}", f"v_exp_f32 v{g1}, v{g1}",
                f"v_fma_f32 v{g0}, v{g0}, v{bC4 + 2}, v{bC4 + 2}", f"v_fma_f32 v{g1}, v{g1}, v{bC4 + 2}, v{bC4 + 2}",
                f"v_rcp_f32 v{g0}, v{g0}", f"v_rcp_f32 v{g1}, v{g1}",
                f"v_mul_f32 v{g0}, v{g0}, v{a0}", f"v_mul_f32 v{g1}, v{g1}, v{a1}",
                f"v_cvt_pk_bf16_f32 v{ac + p if p < 4 else ac + 4 + p}, v{g0}, v{g1}"]
        if p == 3:
            ops.append(("st", f"buffer_store_dwordx4 {vr(ac, 4)}, v{bSP}, {srd(SWS)}, {sr(sH1)} offen offset:{(t & 1) * 256}"))
        if p == 5:
            ops.append(("st", f"buffer_store_dwordx2 {vr(ac + 8, 2)}, v{bSG}, {srd(SWS)}, {sr(sH1)} offen offset:{(t & 1) * 256}"))
    return ops


def emit_g(op):
    if isinstance(op, tuple):
        pub(B, [op[1]], OPT['l1'])
    else:
        B(op)


def cost(op):
    if isinstance(op, tuple):
        return 8
    return 8 if op.startswith(("v_exp", "v_rcp")) else 4


B(f"s_mov_b32 {sr(sH1)}, {sr(sWSB)}")
hf_tok = {}
NF = 64


def hf_read(q):
    if q < NF:
        hf_tok[q] = B.ds(f"ds_read_b128 {vr(bHF + 4 * (q % 3), 4)}, v{bHA} offset:{q * 1024}")


hf_read(0)
hf_read(1)
for t in range(4):
    ac = bAC + 12 * (t & 1)
    g = gelu_ops(t - 1) if t else []
    tot = sum(cost(o) for o in g)
    done = 0
    gi = 0
    if t:
        c4t = B.ds(f"ds_read_b128 {vr(bC4, 4)}, v{bCA} offset:{(t - 1) * 256}")
    if t == 3:
        B(f"s_add_u32 {sr(sH1)}, {sr(sWSB)}, {H1H}")
    nm = 0
    for i in range(16):
        q = 16 * t + i
        if q == 13:
            B.wait_lg0()
            stamp(B, "preT1", "late")
            B("s_barrier")
            stamp(B, "T1", "late")
        B.wait(lg=hf_tok[q])
        for n in range(3):
            mf16(B, ac + 4 * n, bW1 + 12 * i + 4 * n, bHF + 4 * (q % 3), "0" if i == 0 else None)
            nm += 1
            if n == 0:
                hf_read(q + 2)
                if i == 14:
                    ibt = B.ds(f"ds_read_b64 {vr(bIB, 2)}, v{bIA} offset:{t * 512}")
            if nm >= 5 and g:
                if gi == 0:
                    B.wait(lg=c4t)
                while gi < len(g) and done < tot * (nm - 4) / 42.0:
                    emit_g(g[gi])
                    done += cost(g[gi])
                    gi += 1
    while gi < len(g):
        emit_g(g[gi])
        gi += 1
    B.wait(lg=ibt)
    stamp(B, f"rt{t}", "late")
    for n in range(3):
        B(f"v_mfma_f32_16x16x16_bf16 {vr(ac + 4 * n, 4)}, {vr(bIN + 2 * n, 2)}, {vr(bIB, 2)}, {vr(ac + 4 * n, 4)}")
c4t = B.ds(f"ds_read_b128 {vr(bC4, 4)}, v{bCA} offset:{3 * 256}")
B.wait(lg=c4t)
for o in gelu_ops(3):
    emit_g(o)
stamp(B, "s4end", "main late")
B(f"s_lshl2_add_u32 {sr(sT0)}, {sr(sJ)}, {sr(sW)}")
B(f"s_lshl2_add_u32 {sr(sT0)}, {sr(sT0)}, {sr(sWSB)}")
B(f"v_mov_b32 v{bG}, {FLD}")
B(f"v_mov_b32 v{bG + 1}, {sr(sNONCE)}")
B("s_mov_b64 exec, 1")
B.wait_vm0()
pub(B, [f"buffer_store_dword v{bG + 1}, v{bG}, {srd(SWS)}, {sr(sT0)} offen"])
B("s_mov_b64 exec, -1")
B("s_setprio 0")
stamp(B, "flagD", "main late")
fOA, fPA, fHA, fB2, fH, fP = 1, 2, 4, 8, 16, 32
B(f"v_and_b32 v{bT}, 7, v0")
B(f"v_lshrrev_b32 v{bT + 1}, 3, v0")
B(f"v_lshlrev_b32 v{bT + 2}, 4, v{bT}")
B(f"s_lshl_b32 {sr(sT0)}, {sr(sJ)}, 7")
tb2 = B.vm(f"buffer_load_dwordx4 {vr(fH, 4)}, v{bT + 2}, {srd(SB2)}, {sr(sT0)} offen")
B(f"s_lshl_b32 {sr(sT1)}, {sr(sRB)}, 16")
B(f"s_add_u32 {sr(sT0)}, {sr(sT0)}, {sr(sT1)}")
B(f"s_lshl_b32 {sr(sT1)}, {sr(sW)}, 13")
B(f"s_add_u32 {sr(sT0)}, {sr(sT0)}, {sr(sT1)}")
B(f"v_lshl_add_u32 v{fOA}, v{bT + 1}, 10, v{bT + 2}")
B(f"v_add_u32 v{fOA}, {sr(sT0)}, v{fOA}")
B(f"v_lshlrev_b32 v{bT + 3}, 1, v{bT}")
B(f"v_xor_b32 v{bT + 3}, v{bT + 3}, v{bT + 1}")
B(f"v_lshlrev_b32 v{bT + 3}, 4, v{bT + 3}")
B(f"v_lshl_add_u32 v{bT + 3}, v{bT + 1}, 8, v{bT + 3}")
B(f"s_lshl_b32 {sr(sT1)}, {sr(sW)}, 11")
B(f"v_add_u32 v{fPA}, {sr(sT1)}, v{bT + 3}")
B(f"v_xor_b32 v{fPA + 1}, 16, v{fPA}")
B(f"s_lshl_b32 {sr(sT1)}, {sr(sW)}, 3")
B(f"v_add_u32 v{bT + 3}, {sr(sT1)}, v{bT + 1}")
B(f"v_bfe_u32 v{bT + 4}, v{bT + 3}, 1, 3")
B(f"v_xor_b32 v{bT + 4}, v{bT + 4}, v{bT}")
B(f"v_lshlrev_b32 v{bT + 4}, 4, v{bT + 4}")
B(f"v_lshl_add_u32 v{bT + 4}, v{bT + 3}, 7, v{bT + 4}")
B(f"v_add_u32 v{fHA}, {L_HST}, v{bT + 4}")
B.wait(vm=tb2)
for i in range(4):
    B(f"v_lshlrev_b32 v{fB2 + 2 * i}, 16, v{fH + i}")
    B(f"v_and_b32 v{fB2 + 2 * i + 1}, 0xffff0000, v{fH + i}")
for half in range(2):
    th = B.ds(f"ds_read_b128 {vr(fH + 8, 4)}, v{fHA} offset:{half * 4096}")
    B.wait(lg=th)
    for i in range(4):
        B(f"v_lshlrev_b32 v{fH + 2 * i}, 16, v{fH + 8 + i}")
        B(f"v_and_b32 v{fH + 2 * i + 1}, 0xffff0000, v{fH + 8 + i}")
    for i in range(4):
        B(f"v_pk_add_f32 {vr(fH + 2 * i, 2)}, {vr(fH + 2 * i, 2)}, {vr(fB2 + 2 * i, 2)}")
    B("s_barrier")
    stamp(B, f"R{half}", "late")
    tks = []
    for p in range(4):
        for e in range(2):
            base = p * W2W + half * 8192
            if base >= 65536:
                if e == 0:
                    B(f"v_add_u32 v{fPA + 4}, {base}, v{fPA}")
                    B(f"v_add_u32 v{fPA + 5}, {base}, v{fPA + 1}")
                tks.append(B.ds(f"ds_read_b128 {vr(fP + 8 * p + 4 * e, 4)}, v{fPA + 4 + e}"))
            else:
                tks.append(B.ds(f"ds_read_b128 {vr(fP + 8 * p + 4 * e, 4)}, v{fPA + e} offset:{base}"))
    for p in range(4):
        B.wait(lg=tks[2 * p + 1])
        for i in range(8):
            B(f"v_add_f32 v{fH + i}, v{fH + i}, v{fP + 8 * p + i}")
    for i in range(4):
        B(f"v_cvt_pk_bf16_f32 v{fH + 12 + i}, v{fH + 2 * i}, v{fH + 2 * i + 1}")
    if half:
        B(f"s_mov_b32 {sr(sT0)}, 32768")
    B.vm(f"buffer_store_dwordx4 {vr(fH + 12, 4)}, v{fOA}, {srd(SOUT)}, {sr(sT0) if half else 0} offen{('', ' sc1', ' nt', ' sc0 sc1')[OPT['outsc']]}")
stamp(B, "end", "main late")
dump_stamps(B, 0)
B("s_endpgm")

A = Stream()
A("L_teamA:")
A("s_setprio 1")
stamp(A, "entry", "start")
aXA, aWA = 1, 5
aT = 8
aQ, aK, aV, aCQ, aCK, aCV, aONE = 16, 32, 48, 64, 68, 72, 76
aXF = (80, 108)
aWF = (96, 124)
aCL, aCU = 136, 152
srd_load(A, REST)
srd_fill(A, REST + (SX, SWQ))
late_ids(A)
A(f"v_and_b32 v{aT}, 15, v0")
A(f"v_lshrrev_b32 v{aT + 2}, 4, v0")
A(f"v_lshrrev_b32 v{aT + 3}, 1, v{aT}")
A(f"v_xor_b32 v{aT + 3}, v{aT + 3}, v{aT + 2}")
A(f"v_lshlrev_b32 v{aT + 3}, 4, v{aT + 3}")
A(f"v_lshl_add_u32 v{aXA}, v{aT}, 7, v{aT + 3}")
A(f"v_xor_b32 v{aXA + 1}, 64, v{aXA}")
A(f"v_add_u32 v{aXA + 2}, 0x10000, v{aXA}")
A(f"v_add_u32 v{aXA + 3}, 0x10000, v{aXA + 1}")
A(f"v_bfe_u32 v{aT + 3}, v0, 3, 2")
A(f"v_xor_b32 v{aT + 3}, {sr(sW)}, v{aT + 3}")
A(f"v_lshlrev_b32 v{aT + 3}, 5, v{aT + 3}")
A(f"v_and_b32 v{aT + 4}, 3, v0")
A(f"v_lshl_add_u32 v{aT + 3}, v{aT + 4}, 3, v{aT + 3}")
A(f"v_bfe_u32 v{aT + 4}, v0, 2, 2")
A(f"v_lshl_add_u32 v{aT + 3}, v{aT + 4}, 7, v{aT + 3}")
A(f"v_mul_u32_u24 v{aT + 4}, 3072, v{aT + 2}")
A(f"v_add_u32 v{aWA}, v{aT + 3}, v{aT + 4}")
A(f"v_add_u32 v{aWA + 1}, 0x10000, v{aWA}")
for i in range(4):
    A(f"v_mov_b32 v{aONE + i}, 0x3f803f80")
stamp(A, "prek", "start")
A("s_waitcnt lgkmcnt(0)")
stamp(A, "karg", "start")
if OPT["tlb"]:
    A(f"s_lshl2_add_u32 {sr(sT0)}, {sr(sJ)}, {sr(sW)}")
    A(f"s_lshl_b32 {sr(sT0)}, {sr(sT0)}, 7")
    A(f"s_add_u32 {sr(sT0)}, {sr(sT0)}, {sr(sWSB)}")
    A(f"s_add_u32 {sr(sT0)}, {sr(sT0)}, {FLA}")
    A(f"v_lshlrev_b32 v{aT + 4}, 21, v0")
    A(f"v_sub_u32 v{aT + 4}, {sr(sT0)}, v{aT + 4}")
    A(f"s_lshl_b32 {sr(sT0)}, {sr(sW)}, 7")
    A(f"s_add_u32 {sr(sT0)}, {sr(sT0)}, {sr(sWSB)}")
    A(f"s_add_u32 {sr(sT0)}, {sr(sT0)}, {FLX}")
    A(f"v_writelane_b32 v{aT + 4}, {sr(sT0)}, 2")
    A("s_mov_b64 exec, 7")
    A.vm(f"buffer_load_dword v254, v{aT + 4}, {srd(SWS)}, 0 offen sc1")
    A("s_mov_b64 exec, -1")
if OPT["warm"] == 1:
    warm_touch(A, aT + 4, aT + 5, "12o")
stamp(A, "warm", "start")
nl = lab("nolead")
A(f"s_or_b32 {sr(sT0)}, s2, {sr(sW)}")
A(f"s_cbranch_scc1 {nl}")
A(f"v_mov_b32 v{aQ}, {WEPOCH}")
A("s_mov_b64 exec, 1")
A.raw(f"buffer_load_dword v{aQ + 2}, v{aQ}, {srd(SWS)}, 0 offen sc1")
A(f"s_mov_b32 {sr(sT0)}, 1664525")
A(f"v_mov_b32 v{aQ + 1}, 0")
A(f"v_mov_b32 v{aQ + 3}, 1")
A("s_waitcnt vmcnt(0)")
A(f"v_mul_lo_u32 v{aQ + 2}, v{aQ + 2}, {sr(sT0)}")
A(f"v_add_u32 v{aQ + 2}, 1013904223, v{aQ + 2}")
A.raw(f"buffer_store_dwordx2 {vr(aQ + 2, 2)}, v{aQ + 1}, {srd(SDBG)}, 0 offen sc1")
A.raw(f"buffer_store_dword v{aQ + 2}, v{aQ}, {srd(SWS)}, 0 offen sc1")
A("s_mov_b64 exec, -1")
A(f"{nl}:")
A(f"v_lshrrev_b32 v{aT + 3}, 5, v0")
A(f"v_lshlrev_b32 v{aT + 3}, 2, v{aT + 3}")
A(f"v_and_b32 v{aT + 4}, 31, v0")
A(f"v_sub_u32 v{aT + 3}, v{aT + 4}, v{aT + 3}")
A(f"v_mov_b32 v{aT + 4}, {hx(f2u(-1e30))}")
for i in range(16):
    m = 8 * (i >> 2) + (i & 3)
    pr = (sM0, sM1)[i & 1]
    A(f"v_cmp_le_i32 {sr(pr, 2)}, {m}, v{aT + 3}")
    A(f"v_cndmask_b32 v{aCL + i}, v{aT + 4}, 0, {sr(pr, 2)}")
    A(f"v_cndmask_b32 v{aCU + i}, 0, v{aT + 4}, {sr(pr, 2)}")
stamp(A, "pro", "main start")

rd = {}


def s1_reads(n):
    s, t = n >> 1, n & 1
    sl = s % 3
    hi = 1 if sl == 2 else 0
    base = (sl & 1) * SLOT
    xf, wf = aXF[n & 1], aWF[n & 1]
    X = lambda q: (("x", q), f"ds_read_b128 {vr(xf + 4 * q, 4)}, v{aXA + t + 2 * hi} offset:{base + q * 2048}")
    W = lambda m, h: (("w", m), f"ds_read_b64_tr_b16 {vr(wf + 4 * m + 2 * h, 2)}, v{aWA + hi} offset:{base + 8192 + t * 12288 + m * 1024 + h * 512}")
    return [W(1, 0), W(1, 1), X(0), W(2, 0), W(2, 1), X(1), W(0, 0), W(0, 1), X(2), X(3)]


def s1_rd(n, item):
    rd[(n,) + item[0]] = A.ds(item[1])


A("s_barrier")
stamp(A, "bar0", "main start")
for it in s1_reads(0):
    s1_rd(0, it)
order = [("c", 1), (1, 0), ("c", 2), (2, 0), (1, 1), (2, 1), ("c", 0), (0, 0), (0, 1), (1, 2), (2, 2), (0, 2), (1, 3), (2, 3), (0, 3)]
aNP = 7
for n in range(16):
    xf, wf = aXF[n & 1], aWF[n & 1]
    z = "0" if n == 0 else None
    nxt = s1_reads(n + 1) if n < 15 else []
    for k, (m, q) in enumerate(order):
        if k == 6 and n < 15:
            A.wait_lg0()
            A("s_barrier")
            if n == 10:
                A(f"v_mov_b32 v{aNP}, 0")
                tnp = A.vm(f"buffer_load_dwordx2 {vr(aT, 2)}, v{aNP}, {srd(SDBG)}, 0 offen sc1")
        if m == "c":
            A.wait(lg=rd[(n, "w", q)])
            if q == 2:
                mf16(A, aCV, aONE, wf + 8, z)
            else:
                mf16(A, (aCQ, aCK)[q], wf + 4 * q, aONE, z)
        else:
            A.wait(lg=max(rd[(n, "w", m)], rd[(n, "x", q)]))
            if m == 2:
                mf16(A, aV + 4 * q, xf + 4 * q, wf + 8, z)
            else:
                mf16(A, (aQ, aK)[m] + 4 * q, wf + 4 * m, xf + 4 * q, z)
        if k >= 6 and nxt:
            for _ in range(2 if k == 6 else 1):
                if nxt:
                    s1_rd(n + 1, nxt.pop(0))
stamp(A, "s1end")
lp, dn = lab("np"), lab("npd")
A(f"s_mov_b32 {sr(sCNT)}, 0")
A(f"{lp}:")
A.wait_vm0()
A(f"v_readfirstlane_b32 {sr(sT0)}, v{aT + 1}")
A(f"v_readfirstlane_b32 {sr(sNONCE)}, v{aT}")
A(f"s_cmp_lg_u32 {sr(sT0)}, 0")
A(f"s_cbranch_scc0 {lp}x")
A(f"{dn}:")
tail += [f"{lp}x:", f"    s_add_u32 {sr(sCNT)}, {sr(sCNT)}, 1", f"    s_cmp_gt_u32 {sr(sCNT)}, {TIMEOUT}", f"    s_cbranch_scc1 {dn}",
         f"    buffer_load_dwordx2 {vr(aT, 2)}, v{aNP}, {srd(SDBG)}, 0 offen sc1", f"    s_branch {lp}"]
A(f"v_mov_b32 v{aT + 2}, {L_NONCE}")
A.ds(f"ds_write_b32 v{aT + 2}, v{aT}")
aSA, aSB, aKS, aZ = 1, 2, 3, 7
A(f"v_and_b32 v{aSA}, 15, v0")
A(f"v_lshlrev_b32 v{aSA}, 2, v{aSA}")
A(f"v_add_u32 v{aSA}, {L_RS}, v{aSA}")
A(f"v_and_b32 v{aSB}, 48, v0")
A(f"v_add_u32 v{aSB}, {L_RS}, v{aSB}")
A(f"v_lshlrev_b32 v{aKS}, 4, v0")
sKV, sFA = sT4, sT5
A(f"s_lshl2_add_u32 {sr(sT0)}, {sr(sJ)}, {sr(sW)}")
A(f"s_lshl_b32 {sr(sKV)}, {sr(sT0)}, 12")
A(f"s_add_u32 {sr(sKV)}, {sr(sKV)}, {sr(sWSB)}")
A(f"s_lshl_b32 {sr(sFA)}, {sr(sT0)}, 7")
A(f"s_add_u32 {sr(sFA)}, {sr(sFA)}, {sr(sWSB)}")
A(f"s_add_u32 {sr(sFA)}, {sr(sFA)}, {FLA}")
A.wait_lg0()
A("s_barrier")
stamp(A, "S1e")
eL, eRS, eNM = 80, 88, 104
aQF, aKF, aVC = 176, 184, 192
tl = []
for t in range(4):
    tl.append(A.ds(f"ds_read2_b32 {vr(eL + 2 * t, 2)}, v{aSA} offset0:{16 * t} offset1:{64 + 16 * t}"))
tv = []
for t in range(4):
    A.ds(f"ds_read_b128 {vr(eRS + 4 * t, 4)}, v{aSB} offset:{64 * t}")
    tv.append(A.ds(f"ds_read_b128 {vr(eNM + 4 * t, 4)}, v{aSB} offset:{256 + 64 * t}"))


def qk_epi(acc, cs, dst):
    for t in range(4):
        for p in range(2):
            A(f"v_pk_mul_f32 {vr(aT + 4, 2)}, {vr(cs + 2 * p, 2)}, {vr(eL + 2 * t, 2)} op_sel:[0,1] op_sel_hi:[1,1]")
            A(f"v_pk_fma_f32 {vr(acc + 4 * t + 2 * p, 2)}, {vr(acc + 4 * t + 2 * p, 2)}, {vr(eL + 2 * t, 2)}, {vr(aT + 4, 2)} op_sel:[0,0,0] op_sel_hi:[1,0,1]")
    for t in range(4):
        for p in range(2):
            A(f"v_cvt_pk_bf16_f32 v{dst + 2 * t + p}, v{acc + 4 * t + 2 * p}, v{acc + 4 * t + 2 * p + 1}")
    for b in range(2):
        for p in range(2):
            A(f"v_permlane16_swap_b32 v{dst + 4 * b + p}, v{dst + 4 * b + 2 + p}")


A.wait(lg=tl[3])
qk_epi(aK, aCK, aKF)
for b in range(2):
    A.vm(f"buffer_store_dwordx4 {vr(aKF + 4 * b, 4)}, v{aKS}, {srd(SWS)}, {sr(sKV)} offen offset:{2048 * b} sc1")
A.wait(lg=tv[3])
for t in range(4):
    for p in range(2):
        A(f"v_pk_mul_f32 {vr(aT + 4, 2)}, {vr(eNM + 4 * t + 2 * p, 2)}, {vr(aCV, 2)}")
        A(f"v_pk_fma_f32 {vr(aV + 4 * t + 2 * p, 2)}, {vr(aV + 4 * t + 2 * p, 2)}, {vr(eRS + 4 * t + 2 * p, 2)}, {vr(aT + 4, 2)}")
for t in range(4):
    for p in range(2):
        A(f"v_cvt_pk_bf16_f32 v{aVC + 2 * t + p}, v{aV + 4 * t + 2 * p}, v{aV + 4 * t + 2 * p + 1}")
for b in range(2):
    for p in range(2):
        A(f"v_permlane32_swap_b32 v{aVC + 4 * b + p}, v{aVC + 4 * b + 2 + p}")
for b in range(2):
    A.vm(f"buffer_store_dwordx4 {vr(aVC + 4 * b, 4)}, v{aKS}, {srd(SWS)}, {sr(sKV)} offen offset:{2048 * b + 1024} sc1")
stamp(A, "kvst")
aKA, aVA = 1, 4
A(f"s_mul_i32 {sr(sT1)}, {sr(sW)}, {HHEAD}")
A(f"v_add_u32 v{aKA}, {sr(sT1)}, v{aKS}")
A(f"v_mov_b32 v{aT + 2}, {sr(sT1)}")
for b in range(2):
    A.ds(f"ds_write_b128 v{aKA}, {vr(aVC + 4 * b, 4)} offset:{halo_off(b) + 1024}")
for b in range(2):
    A.ds(f"ds_write_b128 v{aT + 2}, {vr(aONE, 4)} offset:{halo_off(b) + 2048}")
A(f"v_and_b32 v{aT + 3}, 15, v0")
A(f"v_lshrrev_b32 v{aT + 4}, 5, v0")
A(f"v_lshl_add_u32 v{aT + 3}, v{aT + 4}, 4, v{aT + 3}")
A(f"v_lshlrev_b32 v{aT + 3}, 4, v{aT + 3}")
A(f"v_add_u32 v{aT + 4}, 512, v{aT + 3}")
A(f"s_mov_b32 {sr(sM0)}, 0xffff")
A(f"s_mov_b32 {sr(sM0 + 1)}, 0xffff")
A(f"v_mov_b32 v{aT + 5}, 1024")
A(f"v_cndmask_b32 v{aT + 3}, v{aT + 5}, v{aT + 3}, {sr(sM0, 2)}")
A(f"v_cndmask_b32 v{aT + 4}, v{aT + 5}, v{aT + 4}, {sr(sM0, 2)}")
A(f"s_add_u32 {sr(sT1)}, {sr(sT1)}, 1024")
A(f"v_add_u32 v{aVA}, {sr(sT1)}, v{aT + 3}")
A(f"v_add_u32 v{aVA + 1}, {sr(sT1)}, v{aT + 4}")
aKB = (200, 204, 208)
aVB = (212, 220, 228)
vt = {}
for b in range(2):
    for p in range(2):
        vt[b] = A.ds(f"ds_read_b128 {vr(aVB[b] + 4 * p, 4)}, v{aVA + p} offset:{halo_off(b)}")
QS = 0.25 * 1.4426950408889634
for t in range(4):
    A(f"v_mul_f32 v{eL + 2 * t}, {hx(f2u(QS))}, v{eL + 2 * t}")
    A(f"v_mul_f32 v{eL + 2 * t + 1}, {hx(f2u(QS))}, v{eL + 2 * t + 1}")
qk_epi(aQ, aCQ, aQF)

aS = (16, 32)
aO = (48, 64)
aP = 80


def run_tiles(tiles, hooks, first_o):
    def s_mfma(i):
        qb, kreg, vreg, c, kt, vtk = tiles[i]
        if kt:
            A.wait(lg=kt())
        mf32(A, aS[i & 1], kreg, aQF + 4 * qb, c)

    def pv(i, p):
        qb, kreg, vreg, c, kt, vtk = tiles[i]
        if vtk:
            A.wait(lg=vtk())
        z = None
        if p == 0 and qb in first_o:
            first_o.discard(qb)
            z = "0"
        mf32(A, aO[qb], vreg + 4 * p, aP + 4 * p, z)

    s_mfma(0)
    for i in range(len(tiles)):
        s = aS[i & 1]
        e = lambda k: A(f"v_exp_f32 v{s + k}, v{s + k}")
        c = lambda k: A(f"v_cvt_pk_bf16_f32 v{aP + k}, v{s + 2 * k}, v{s + 2 * k + 1}")
        if i + 1 < len(tiles):
            s_mfma(i + 1)
        e(0); e(1); e(2); c(0); e(3); e(4); c(1)
        if i:
            pv(i - 1, 1)
        if i in hooks:
            hooks[i]()
        e(5); e(6); c(2); e(7); e(8); c(3); e(9); e(10)
        pv(i, 0)
        c(4); e(11); e(12); c(5); e(13); e(14); e(15); c(6); c(7)
    pv(len(tiles) - 1, 1)


first_o = {0, 1}
CL, CU = vr(aCL, 16), vr(aCU, 16)


def flag_a():
    A(f"s_getreg_b32 {sr(sXCC)}, hwreg(HW_REG_XCC_ID, 0, 4)")
    A(f"s_and_b32 {sr(sT0)}, {sr(sNONCE)}, -16")
    A(f"s_or_b32 {sr(sT0)}, {sr(sT0)}, {sr(sXCC)}")
    A(f"v_mov_b32 v{aT + 3}, {sr(sT0)}")
    A(f"s_lshl2_add_u32 {sr(sT1)}, {sr(sJ)}, {sr(sWSB)}")
    A(f"s_add_u32 {sr(sT1)}, {sr(sT1)}, {FLX}")
    A(f"s_cmp_eq_u32 {sr(sW)}, 0")
    A(f"s_cselect_b32 {sr(sT1)}, {sr(sT1)}, {hx(OOB)}")
    A(f"v_mov_b32 v{aT + 2}, {sr(sNONCE)}")
    A("s_mov_b64 exec, 1")
    A.wait(vm=A.vm_n, lg=A.lg_n)
    A.vm(f"buffer_store_dword v{aT + 2}, v{aZ}, {srd(SWS)}, {sr(sFA)} offen sc1")
    A("s_mov_b64 exec, -1")
    stamp(A, "flagA")
    A("s_barrier")


if OPT["fa"] == 0:
    flag_a()
run_tiles([(0, aKF, aVB[0], CL, None, lambda: vt[0]), (1, aKF, aVB[0], "0", None, None), (1, aKF + 4, aVB[1], CL, None, lambda: vt[1])],
          {OPT["fa"] - 1: flag_a}, first_o)
if OPT["fa"] == 4:
    flag_a()
A("s_mov_b64 exec, 1")
A.vm(f"buffer_store_dword v{aT + 3}, v{aZ}, {srd(SWS)}, {sr(sT1)} offen sc1")
A("s_mov_b64 exec, -1")
A(f"v_mov_b32 v{aT + 2}, {L_NONCE + 4}")
A("s_barrier")
stamp(A, "H0")
kt, vt2 = {}, {}


def kv_read(b):
    i = (7 - b) % 3
    kt[b] = A.ds(f"ds_read_b128 {vr(aKB[i], 4)}, v{aKA} offset:{halo_off(b)}")
    for p in range(2):
        vt2[b] = A.ds(f"ds_read_b128 {vr(aVB[i] + 4 * p, 4)}, v{aVA + p} offset:{halo_off(b)}")


kv_read(7)
tiles, hooks = [], {}
for b in range(7, -1, -1):
    i = (7 - b) % 3
    for qb in range(2):
        if b == 0 and qb == 1:
            continue
        c = CU if b == qb else "0"
        tiles.append((qb, aKB[i], aVB[i], c, (lambda b=b: kt[b]), (lambda b=b: vt2[b])))
    if b - 1 >= 0:
        def hk(b=b):
            if b - 1 in (5, 3):
                A.wait_lg0()
                A("s_barrier")
            kv_read(b - 1)
            if b - 1 == 3:
                A.ds(f"ds_read_b32 v{aT + 3}, v{aT + 2}")
        hooks[len(tiles) - 2] = hk
run_tiles(tiles, hooks, first_o)
stamp(A, "attend", "main late")
aOS = 1
A(f"v_cmp_ne_u32 vcc, 0, v{aT + 3}")
A(f"v_and_b32 v{aT + 4}, 15, v0")
A(f"v_lshlrev_b32 v{aT + 4}, 4, v{aT + 4}")
A(f"v_bfe_u32 v{aT + 5}, v0, 4, 1")
A(f"v_lshl_add_u32 v{aT + 4}, v{aT + 5}, 14, v{aT + 4}")
A(f"v_lshrrev_b32 v{aT + 5}, 5, v0")
A(f"v_lshl_add_u32 v{aOS}, v{aT + 5}, 8, v{aT + 4}")
A(f"s_lshl2_add_u32 {sr(sT0)}, {sr(sJ)}, {sr(sW)}")
A(f"s_lshl_b32 {sr(sT0)}, {sr(sT0)}, 9")
A(f"s_add_u32 {sr(sT0)}, {sr(sT0)}, {sr(sWSB)}")
A(f"s_add_u32 {sr(sT6)}, {sr(sT0)}, {WO_}")
A(f"s_add_u32 {sr(sT7)}, {sr(sT6)}, 32768")
A(f"v_subrev_u32 v{aT + 4}, {hx(f2u(2.0 ** -40))}, v{aO[0] + 8}")
A(f"v_subrev_u32 v{aT + 5}, {hx(f2u(2.0 ** -40))}, v{aO[1] + 8}")
A(f"v_max_u32 v{aT + 4}, v{aT + 4}, v{aT + 5}")
A(f"s_mov_b32 {sr(sT0)}, {0 if OPT['force_fb'] else hx(f2u(2.0 ** 40) - f2u(2.0 ** -40))}")
A(f"v_cmp_le_u32 {sr(sM0, 2)}, {sr(sT0)}, v{aT + 4}")
A(f"s_cmp_lg_u64 {sr(sM0, 2)}, 0")
A("s_cbranch_scc1 L_fallback")
A("L_fb_done:")
aOP = 16
for qb in range(2):
    o = aO[qb]
    A(f"v_rcp_f32 v{o + 8}, v{o + 8}")
for qb in range(2):
    o = aO[qb]
    for p in range(4):
        A(f"v_pk_mul_f32 {vr(o + 2 * p, 2)}, {vr(o + 2 * p, 2)}, {vr(o + 8, 2)} op_sel:[0,0] op_sel_hi:[1,0]")
    for p in range(4):
        A(f"v_cvt_pk_bf16_f32 v{aOP + 4 * qb + p}, v{o + 2 * p}, v{o + 2 * p + 1}")
pub(A, [f"buffer_store_dwordx4 {vr(aOP + 4 * qb, 4)}, v{aOS}, {srd(SWS)}, {sr((sT6, sT7)[qb])} offen" for qb in range(2)], OPT["lo"])

F = Stream()
fK, fV, fM, fQ, fO, fA0, fA1 = 200, 212, 88, 92, 96, 90, 91
sQB, sKB, sKO = sT0, sT1, sT2
F("L_fallback:")
F.fence()
F(f"v_and_b32 v{fA0}, 15, v0")
F(f"v_lshrrev_b32 v{fA1}, 5, v0")
F(f"v_lshl_add_u32 v{fA0}, v{fA1}, 4, v{fA0}")
F(f"v_lshlrev_b32 v{fA0}, 4, v{fA0}")
F(f"s_mov_b32 {sr(sQB)}, 0")
F("L_fb_q:")
for i in range(4):
    F(f"v_mov_b32 v{fQ + i}, v{aQF + i}")
    F(f"v_mov_b32 v{aQF + i}, v{aQF + 4 + i}")
F(f"v_mov_b32 v{fM}, {hx(f2u(-3e38))}")
for i in range(16):
    F(f"v_mov_b32 v{fO + i}, 0")
for i in range(8):
    F(f"v_mov_b32 v{fV + i}, 0x3f803f80")
for ps in range(2):
    F(f"s_lshl1_add_u32 {sr(sT3)}, {sr(sRB)}, {sr(sQB)}")
    F(f"s_min_u32 {sr(sKB)}, {sr(sT3)}, 8")
    F(f"L_fb_k{ps}:")
    F(f"s_sub_u32 {sr(sKO)}, {sr(sT3)}, {sr(sKB)}")
    F(f"s_and_b32 {sr(sCNT)}, {sr(sKO)}, 1")
    F(f"s_lshl_b32 {sr(sCNT)}, {sr(sCNT)}, 11")
    F(f"s_lshr_b32 {sr(sKO)}, {sr(sKO)}, 1")
    F(f"s_sub_u32 {sr(sKO)}, {sr(sRB)}, {sr(sKO)}")
    F(f"s_lshl_b32 {sr(sKO)}, {sr(sKO)}, 19")
    F(f"s_sub_u32 {sr(sKO)}, {sr(sKV)}, {sr(sKO)}")
    F(f"s_add_u32 {sr(sKO)}, {sr(sKO)}, {sr(sCNT)}")
    F.raw(f"buffer_load_dwordx4 {vr(fK, 4)}, v{aKS}, {srd(SWS)}, {sr(sKO)} offen sc1")
    if ps:
        F("s_mov_b32 exec_lo, 0xffff")
        F("s_mov_b32 exec_hi, 0xffff")
        F.raw(f"buffer_load_dwordx4 {vr(fV, 4)}, v{fA0}, {srd(SWS)}, {sr(sKO)} offen offset:1024 sc1")
        F.raw(f"buffer_load_dwordx4 {vr(fV + 4, 4)}, v{fA0}, {srd(SWS)}, {sr(sKO)} offen offset:1536 sc1")
        F("s_mov_b64 exec, -1")
    F("s_waitcnt vmcnt(0)")
    F(f"s_cmp_eq_u32 {sr(sKB)}, 8")
    F(f"s_cbranch_scc1 L_fb_u{ps}")
    F(f"s_cmp_eq_u32 {sr(sKB)}, 0")
    F(f"s_cbranch_scc1 L_fb_l{ps}")
    mf32(F, aS[0], fK, fQ, "0")
    F(f"s_branch L_fb_s{ps}")
    F(f"L_fb_u{ps}:")
    mf32(F, aS[0], fK, fQ, CU)
    F(f"s_branch L_fb_s{ps}")
    F(f"L_fb_l{ps}:")
    mf32(F, aS[0], fK, fQ, CL)
    F(f"L_fb_s{ps}:")
    F.fence()
    s = aS[0]
    if ps == 0:
        for i in range(8):
            F(f"v_max3_f32 v{fM}, v{fM}, v{s + 2 * i}, v{s + 2 * i + 1}")
    else:
        for i in range(16):
            F(f"v_sub_f32 v{s + i}, v{s + i}, v{fM}")
        for i in range(16):
            F(f"v_exp_f32 v{s + i}, v{s + i}")
        for i in range(8):
            F(f"v_cvt_pk_bf16_f32 v{aP + i}, v{s + 2 * i}, v{s + 2 * i + 1}")
        mf32(F, fO, fV, aP)
        mf32(F, fO, fV + 4, aP + 4)
        F.fence()
    F(f"s_sub_u32 {sr(sKB)}, {sr(sKB)}, 1")
    F(f"s_cbranch_scc0 L_fb_k{ps}")
    if ps == 0:
        F(f"v_mov_b32 v{fM + 1}, v{fM}")
        F(f"v_permlane32_swap_b32 v{fM}, v{fM + 1}")
        F(f"v_max_f32 v{fM}, v{fM}, v{fM + 1}")
for i in range(9):
    F(f"v_mov_b32 v{aO[0] + i}, v{aO[1] + i}")
    F(f"v_mov_b32 v{aO[1] + i}, v{fO + i}")
F(f"s_add_u32 {sr(sQB)}, {sr(sQB)}, 1")
F(f"s_cmp_lt_u32 {sr(sQB)}, 2")
F("s_cbranch_scc1 L_fb_q")
F("s_branch L_fb_done")

cWA, cXA, cFA = 4, 8, 12
cAC, cOF, cWO = 24, 40, 80
NOF, NWO = 10, 11
A(f"v_bfe_u32 v{aT + 5}, v0, 2, 3")
A(f"v_lshrrev_b32 v{aT + 6}, 5, v0")
A(f"v_lshl_add_u32 v{aT + 5}, v{aT + 6}, 4, v{aT + 5}")
A(f"v_lshlrev_b32 v{aT + 5}, 7, v{aT + 5}")
A(f"v_bfe_u32 v{aT + 6}, v0, 3, 2")
A(f"v_lshl_add_u32 v{aT + 5}, v{aT + 6}, 5, v{aT + 5}")
A(f"v_and_b32 v{aT + 6}, 3, v0")
A(f"v_lshl_add_u32 v{aT + 5}, v{aT + 6}, 3, v{aT + 5}")
A(f"v_add_u32 v{cWA}, {L_WO}, v{aT + 5}")
for a in range(1, 4):
    A(f"v_xor_b32 v{cWA + a}, {32 * a}, v{cWA}")
A("s_barrier")
stamp(A, "E", "main late")
wo_tok = {}


def wo_read(n):
    r = cWO + 16 * (n % NWO)
    for a in range(4):
        for h in range(2):
            wo_tok[n] = A.ds(f"ds_read_b64_tr_b16 {vr(r + 4 * a + 2 * h, 2)}, v{cWA + a} offset:{n * 4096 + h * 1024}")


for n in range(5):
    wo_read(n)
cZ = 2
A(f"v_mov_b32 v{cZ}, {FLB}")
A(f"v_mov_b32 v{aT + 5}, {sr(sNONCE)}")
sFO = sT5
A(f"s_lshl2_add_u32 {sr(sFO)}, {sr(sJ)}, {sr(sW)}")
A(f"s_lshl2_add_u32 {sr(sFO)}, {sr(sFO)}, {sr(sWSB)}")
A("s_mov_b64 exec, 1")
A.wait_vm0()
pub(A, [f"buffer_store_dword v{aT + 5}, v{cZ}, {srd(SWS)}, {sr(sFO)} offen"])
stamp(A, "flagB", "late")
A("s_mov_b64 exec, -1")
A(f"v_and_b32 v{aT + 5}, 15, v0")
A(f"v_lshrrev_b32 v{aT + 6}, 1, v{aT + 5}")
A(f"v_lshrrev_b32 v{aT + 7}, 5, v0")
A(f"v_xor_b32 v{aT + 6}, v{aT + 6}, v{aT + 7}")
A(f"v_lshlrev_b32 v{aT + 6}, 4, v{aT + 6}")
A(f"v_lshl_add_u32 v{aT + 5}, v{aT + 5}, 7, v{aT + 6}")
A(f"v_bfe_u32 v{aT + 6}, v0, 4, 1")
A(f"v_lshl_add_u32 v{aT + 5}, v{aT + 6}, 3, v{aT + 5}")
A(f"s_lshl_b32 {sr(sT0)}, {sr(sW)}, 11")
A(f"s_add_u32 {sr(sT0)}, {sr(sT0)}, {L_HST}")
A(f"v_add_u32 v{cXA}, {sr(sT0)}, v{aT + 5}")
for a in range(1, 4):
    A(f"v_xor_b32 v{cXA + a}, {32 * a}, v{cXA}")
for a in range(4):
    tx = A.ds(f"ds_read_b64 {vr(cOF + 2 * a, 2)}, v{cXA + a}")
A(f"v_and_b32 v{cFA}, 31, v0")
A(f"s_add_u32 {sr(sT0)}, {sr(sWSB)}, {FLB}")
A(f"v_lshl_add_u32 v{cFA}, v{cFA}, 2, {sr(sT0)}")
A.wait(lg=tx)
for i in range(8):
    A(f"v_lshlrev_b32 v{cAC + 2 * i}, 16, v{cOF + i}")
    A(f"v_and_b32 v{cAC + 2 * i + 1}, 0xffff0000, v{cOF + i}")
for n in range(5, NWO):
    wo_read(n)
sOB, sOK = sT6, sT7
A(f"s_lshl_b32 {sr(sOB)}, {sr(sW)}, 14")
A(f"s_add_u32 {sr(sOB)}, {sr(sOB)}, {sr(sWSB)}")
A(f"s_add_u32 {sr(sOB)}, {sr(sOB)}, {WO_}")
A(f"s_lshl_b32 {sr(sOK)}, {sr(sRO)}, 10")
stamp(A, "prePB", "late")
poll(A, cFA, None, 13, 14)
stamp(A, "pollB", "main late")
of_tok = {}


def of_load(n):
    if n % 4 == 0:
        A(f"s_add_u32 {sr(sT0)}, {sr(sOB)}, {sr(sOK)}")
        A(f"s_add_u32 {sr(sOK)}, {sr(sOK)}, 4096")
        A(f"s_and_b32 {sr(sOK)}, {sr(sOK)}, 0x3fff")
    of_tok[n] = A.vm(f"buffer_load_dwordx4 {vr(cOF + 4 * (n % NOF), 4)}, v{aKS}, {srd(SWS)}, {sr(sT0)} offen offset:{(n % 4) * 1024} sc1")


for n in range(NOF):
    of_load(n)
for n in range(16):
    A.wait(vm=of_tok[n], lg=wo_tok[n])
    for a in range(4):
        mf16(A, cAC + 4 * a, cWO + 16 * (n % NWO) + 4 * a, cOF + 4 * (n % NOF))
    if n + NOF < 16:
        of_load(n + NOF)
        if n + NOF == 15:
            A("s_barrier")
    if n + NWO < 16:
        wo_read(n + NWO)
cHP = 16
stamp(A, "s3mf", "late")
A(f"s_lshl_b32 {sr(sT0)}, {sr(sJ)}, 11")
A(f"s_add_u32 {sr(sT0)}, {sr(sT0)}, {sr(sOB)}")
A(f"s_add_u32 {sr(sT0)}, {sr(sT0)}, {WH - WO_}")
A(f"s_lshl_b32 {sr(sT1)}, {sr(sW)}, 10")
A(f"s_add_u32 {sr(sT1)}, {sr(sT1)}, {sr(sWSB)}")
A(f"s_add_u32 {sr(sT1)}, {sr(sT1)}, {WST}")
A(f"s_lshl_b32 {sr(sT2)}, {sr(sJ)}, 7")
A(f"s_add_u32 {sr(sT2)}, {sr(sT2)}, {sr(sT1)}")
for i in range(8):
    A(f"v_cvt_pk_bf16_f32 v{cHP + i}, v{cAC + 2 * i}, v{cAC + 2 * i + 1}")
pub(A, [f"buffer_store_dwordx4 {vr(cHP + 4 * s, 4)}, v{aKS}, {srd(SWS)}, {sr(sT0)} offen offset:{1024 * s}" for s in range(2)], OPT["lh"])
cS, cQ = 40, 42
A(f"v_pk_add_f32 {vr(cS, 2)}, {vr(cAC, 2)}, {vr(cAC + 2, 2)}")
A(f"v_pk_mul_f32 {vr(cQ, 2)}, {vr(cAC, 2)}, {vr(cAC, 2)}")
for i in range(1, 8):
    if i > 1:
        A(f"v_pk_add_f32 {vr(cS, 2)}, {vr(cS, 2)}, {vr(cAC + 2 * i, 2)}")
    A(f"v_pk_fma_f32 {vr(cQ, 2)}, {vr(cAC + 2 * i, 2)}, {vr(cAC + 2 * i, 2)}, {vr(cQ, 2)}")
A(f"v_add_f32 v{cS}, v{cS}, v{cS + 1}")
A(f"v_add_f32 v{cQ}, v{cQ}, v{cQ + 1}")
A(f"v_lshlrev_b32 v{13}, 2, v0")
A(f"v_permlane16_swap_b32 v{cS}, v{cQ}")
A(f"v_add_f32 v{cS}, v{cS}, v{cQ}")
A(f"v_mov_b32 v{cQ}, v{cS}")
A(f"v_permlane32_swap_b32 v{cS}, v{cQ}")
A(f"v_add_f32 v{cS}, v{cS}, v{cQ}")
A("s_mov_b32 exec_hi, 0")
pub(A, [f"buffer_store_dword v{cS}, v13, {srd(SWS)}, {sr(sT2)} offen"], OPT["lh"])
A("s_mov_b32 exec_hi, -1")
stamp(A, "s3end", "main late")
for a in range(4):
    A.ds(f"ds_write_b64 v{cXA + a}, {vr(cHP + 2 * a, 2)}")
A(f"v_mov_b32 v14, {sr(sNONCE)}")
A(f"v_add_u32 v{cFA}, {FLC - FLB}, v{cFA}")
A("s_mov_b64 exec, 1")
A.wait_vm0()
pub(A, [f"buffer_store_dword v14, v{cZ}, {srd(SWS)}, {sr(sFO)} offen offset:{FLC - FLB}"])
stamp(A, "flagC", "late")
A("s_mov_b64 exec, -1")
dP, dG, dR = 4, 5, 6
A(f"v_lshrrev_b32 v{8}, 5, v0")
A(f"v_bfe_u32 v{9}, v0, 3, 2")
A(f"v_and_b32 v{10}, 7, v0")
A(f"v_bfe_u32 v{11}, v0, 4, 1")
A(f"v_lshlrev_b32 v{11}, 2, v{11}")
A(f"v_xor_b32 v{10}, v{10}, v{11}")
A(f"v_lshlrev_b32 v{10}, 4, v{10}")
A(f"v_lshl_add_u32 v{10}, v{9}, 10, v{10}")
A(f"s_mul_i32 {sr(sT0)}, {sr(sW)}, {352 * 1024}")
A(f"s_lshl_b32 {sr(sT2)}, {sr(sJ)}, 7")
A(f"s_add_u32 {sr(sT0)}, {sr(sT0)}, {sr(sT2)}")
A(f"v_add_u32 v{10}, {sr(sT0)}, v{10}")
A(f"v_lshl_add_u32 v{dP}, v{8}, 14, v{10}")
A(f"v_lshl_add_u32 v{dG}, v{8}, 12, v{10}")
A(f"s_mul_i32 {sr(sLB)}, {sr(sW)}, {W2W}")
A(f"v_bfe_u32 v{9}, v0, 2, 2")
A(f"v_lshl_add_u32 v{8}, v{8}, 3, v{9}")
A(f"v_lshlrev_b32 v{8}, 7, v{8}")
A(f"v_bfe_u32 v{9}, v0, 3, 1")
A(f"v_lshl_add_u32 v{8}, v{9}, 6, v{8}")
A(f"v_bfe_u32 v{9}, v0, 4, 1")
A(f"v_lshl_add_u32 v{8}, v{9}, 5, v{8}")
A(f"v_and_b32 v{9}, 3, v0")
A(f"v_lshl_add_u32 v{8}, v{9}, 3, v{8}")
A(f"v_add_u32 v{dR}, {sr(sLB)}, v{8}")
A(f"v_xor_b32 v{dR + 1}, 64, v{dR}")
A(f"s_lshl2_add_u32 {sr(sT0)}, {sr(sW)}, {sr(sRO)}")
A(f"s_and_b32 {sr(sT0)}, {sr(sT0)}, 15")
A(f"s_lshl_b32 {sr(sT0)}, {sr(sT0)}, 10")
A(f"s_add_u32 {sr(sT0)}, {sr(sT0)}, {sr(sWSB)}")
A(f"s_add_u32 {sr(sT6)}, {sr(sT0)}, {WH}")
A(f"s_lshl_b32 {sr(sT7)}, {sr(sW)}, 12")
A.wait_lg0()
poll(A, cFA, None, 14, 15)
A("s_barrier")
stamp(A, "C1", "main late")
A("s_setprio 0")
ht = []
for t in range(4):
    A(f"s_add_u32 m0, {sr(sT7)}, {L_WO + t * 16384}")
    if t:
        A(f"s_add_u32 {sr(sT6)}, {sr(sT6)}, 16384")
    for i in range(4):
        tk = dma(A, aKS, SWS, sr(sT6), i * 1024, "sc1")
    ht.append(tk)
    if t == 0:
        for i in range(4):
            tst = A.vm(f"buffer_load_dword v{16 + i}, v13, {srd(SWS)}, {sr(sT1)} offen offset:{256 * i} sc1")
    if t == 1:
        A.wait(vm=ht[0])
        A("s_barrier")
A.wait(vm=tst)
A("v_add_f32 v16, v16, v17")
A("v_add_f32 v18, v18, v19")
A("v_add_f32 v16, v16, v18")
A("v_mov_b32 v17, v16")
A("v_permlane32_swap_b32 v16, v17")
A("v_add_f32 v16, v16, v17")
A("v_mov_b32 v17, v16")
A("v_permlane16_swap_b32 v16, v17")
C0 = -2.0 * 0.7978845608028654 * 1.4426950408889634
C1 = C0 * 0.044715
A(f"v_mul_f32 v16, {hx(f2u(-1.0 / 512))}, v16")
A(f"v_mul_f32 v17, {hx(f2u(1.0 / 512))}, v17")
A("v_fma_f32 v17, -v16, v16, v17")
A("v_max_f32 v17, 0, v17")
A(f"v_add_f32 v18, {hx(f2u(1e-5))}, v17")
A("v_rsq_f32 v18, v18")
A("v_cmp_gt_u32 s[60:61], 16, v0")
A("v_mul_f32 v17, v17, v18")
A(f"v_fmaak_f32 v17, v17, v18, {hx(f2u(1e-5))}")
A("v_rsq_f32 v17, v17")
A("v_and_b32 v24, 15, v0")
A("v_mul_f32 v17, v17, v18")
A("v_rcp_f32 v22, v17")
A(f"v_mul_f32 v20, {hx(f2u(C0))}, v17")
A("v_mul_f32 v21, v17, v17")
A("v_mul_f32 v21, v21, v17")
A(f"v_mul_f32 v21, {hx(f2u(C1))}, v21")
A("v_mov_b32 v23, 0")
A("v_cndmask_b32 v16, v16, v22, s[60:61]")
A("v_cvt_pk_bf16_f32 v17, v16, 0")
A("v_lshlrev_b32 v17, 16, v17")
A("v_sub_f32 v17, v16, v17")
A("v_cndmask_b32 v18, v16, v17, s[60:61]")
A("v_cvt_pk_bf16_f32 v18, v16, v18")
A("v_cvt_pk_bf16_f32 v19, v17, 0")
A(f"s_lshl_b32 {sr(sT0)}, {sr(sW)}, 8")
A(f"s_add_u32 {sr(sT0)}, {sr(sT0)}, {L_C4}")
A(f"v_lshl_add_u32 v24, v24, 4, {sr(sT0)}")
A(f"s_lshl_b32 {sr(sT0)}, {sr(sW)}, 9")
A(f"s_add_u32 {sr(sT0)}, {sr(sT0)}, {L_IB}")
A(f"v_lshl_add_u32 v25, v0, 3, {sr(sT0)}")
A.ds("ds_write_b64 v25, v[18:19]")
A("s_mov_b64 exec, 0xffff")
A.ds("ds_write_b128 v24, v[20:23]")
A("s_mov_b64 exec, -1")

dW2 = 80
w2_tok = {}


def w2_issue(e):
    jj, ee = divmod(e, 11)
    ww, kind = divmod(ee, 3)
    f0 = 176 * jj + 48 * ww
    for hf in range(2):
        row = f0 + (4 * (2 * kind + hf) if kind < 2 else 32 + 8 * hf)
        A(f"s_add_u32 m0, {sr(sLB)}, {(e % 10) * 2048 + hf * 1024}")
        A(f"s_mov_b32 {sr(sT0)}, {row * 1024}")
        w2_tok[e] = bg(A, dP if kind < 2 else dG, SW2, sr(sT0))


w2_rd = {}


def w2_drain(e):
    A.wait(vm=w2_tok[e])
    for ch in range(2):
        for h in range(2):
            w2_rd[e] = A.ds(f"ds_read_b64_tr_b16 {vr(dW2 + 8 * e + 4 * ch + 2 * h, 2)}, v{dR + ch} offset:{(e % 10) * 2048 + h * 512}")


for e in range(3):
    w2_issue(e)
A.wait(vm=ht[3], lg=A.lg_n)
A("s_barrier")
if OPT["l1"]:
    A(f"v_lshlrev_b32 v8, 7, v0")
    A(f"s_and_b32 {sr(sT0)}, {sr(sW)}, 1")
    A(f"s_mul_i32 {sr(sT0)}, {sr(sT0)}, {44 * 128}")
    A(f"s_lshr_b32 {sr(sT1)}, {sr(sW)}, 1")
    A(f"s_mul_i32 {sr(sT1)}, {sr(sT1)}, {H1H}")
    A(f"s_add_u32 {sr(sT0)}, {sr(sT0)}, {sr(sT1)}")
    A(f"s_mul_i32 {sr(sT1)}, {sr(sJ)}, {11 * 1024}")
    A(f"s_add_u32 {sr(sT0)}, {sr(sT0)}, {sr(sT1)}")
    A(f"s_add_u32 {sr(sT0)}, {sr(sT0)}, {sr(sWSB)}")
    A(f"s_add_u32 {sr(sT0)}, {sr(sT0)}, {WH1}")
    A("s_mov_b32 exec_hi, 0xfff")
    A.vm(f"buffer_load_dword v9, v8, {srd(SWS)}, {sr(sT0)} offen sc1")
    A("s_mov_b32 exec_hi, -1")
DIST = 6
for e in range(3, DIST):
    w2_issue(e)
for e in range(22):
    if e + DIST < 22:
        if e + DIST - 10 >= 0:
            A.wait(lg=w2_rd[e + DIST - 10])
        w2_issue(e + DIST)
    w2_drain(e)
stamp(A, "w2end", "main late")
dAC, dHF, dPW = 8, 40, 4
NHF = 10
A(f"v_and_b32 v1, 7, v0")
A(f"s_lshl_b32 {sr(sT0)}, {sr(sW)}, 5")
A(f"s_add_u32 {sr(sT0)}, {sr(sT0)}, {sr(sWSB)}")
A(f"s_add_u32 {sr(sT0)}, {sr(sT0)}, {FLD}")
A(f"v_lshl_add_u32 v2, v1, 2, {sr(sT0)}")
A.wait_lg0()
A(f"v_lshrrev_b32 v8, 5, v0")
A(f"v_xor_b32 v8, v8, v1")
A(f"v_lshlrev_b32 v8, 4, v8")
A(f"v_and_b32 v9, 31, v0")
A(f"v_lshl_add_u32 v8, v9, 8, v8")
A(f"v_add_u32 v{dPW}, {sr(sLB)}, v8")
for a in range(1, 4):
    A(f"v_xor_b32 v{dPW + a}, {32 * a}, v{dPW}")
A(f"s_mul_i32 {sr(sT6)}, {sr(sW)}, {22 * 1024}")
A(f"s_add_u32 {sr(sT6)}, {sr(sT6)}, {sr(sWSB)}")
A(f"s_add_u32 {sr(sT6)}, {sr(sT6)}, {WH1}")
poll(A, 2, None, 1, 8)
A("s_setprio 1")
stamp(A, "pollD", "main late")
h1_tok = {}


def h1_load(q):
    half, e = divmod(q, 22)
    if e % 4 == 0:
        A(f"s_add_u32 {sr(sT0)}, {sr(sT6)}, {half * H1H + e * 1024}")
    h1_tok[q] = A.vm(f"buffer_load_dwordx4 {vr(dHF + 4 * (q % NHF), 4)}, v{aKS}, {srd(SWS)}, {sr(sT0)} offen offset:{(e % 4) * 1024} sc1")


for q in range(NHF):
    h1_load(q)
for q in range(44):
    half, e = divmod(q, 22)
    A.wait(vm=h1_tok[q])
    for ch in range(2):
        mf32(A, dAC + 16 * ch, dW2 + 8 * e + 4 * ch, dHF + 4 * (q % NHF), "0" if e == 0 else None)
    if q + NHF < 44:
        h1_load(q + NHF)
    if e == 21:
        stamp(A, f"s5h{half}", "late")
        for ch in range(2):
            for a in range(4):
                A.ds(f"ds_write_b128 v{dPW + a}, {vr(dAC + 16 * ch + 4 * a, 4)} offset:{half * 8192 + ch * 128}")
        A.wait_lg0()
        A("s_barrier")
dump_stamps(A, 1)
A("L_exit:")
A("s_endpgm")

rep = []
body = pad_hazards(P.L + B.L, rep) + pad_hazards(A.L, rep) + pad_hazards(F.L) + tail
nb = lambda L: sum(1 for x in L if x.strip().startswith("s_barrier"))
assert nb(A.L) == nb(B.L), (nb(A.L), nb(B.L))
hdr = open("sequential_preLN__sliding_block__mixer_channel_mlp__prompt.s.ref").read().split("; Override launch")[0]
out = hdr + f"""; One persistent launch: 256 workgroups x 8 waves; generated by gen/gen.py ({' '.join(f'{k}={v}' for k, v in OPT.items())})
; stampsB {' '.join(STN.get(id(B), []))}
; stampsA {' '.join(STN.get(id(A), []))}
; @launch grid=(256,1,1) block=(512,1,1) lds={LDS_BYTES}
.amdgcn_target "amdgcn-amd-amdhsa--gfx950"
.text
.globl {NAME}
.p2align 8
.type {NAME},@function
{NAME}:
""" + "\n".join(body) + f"""
L_end:
    s_endpgm
.section .rodata,"a"
.p2align 6
.amdhsa_kernel {NAME}
  .amdhsa_next_free_vgpr 256
  .amdhsa_next_free_sgpr 102
  .amdhsa_accum_offset 256
  .amdhsa_group_segment_fixed_size 0
  .amdhsa_kernarg_size 88
  .amdhsa_user_sgpr_count 2
  .amdhsa_user_sgpr_kernarg_segment_ptr 1
  .amdhsa_system_sgpr_workgroup_id_x 1
.end_amdhsa_kernel
"""
open(sys.argv[1], "w").write(out)
tot = sum(r[0] for r in rep)
print(f"wrote {sys.argv[1]}: {len(body)} lines, barriers {nb(A.L)}, padded states {tot}", file=sys.stderr)
if "-v" in sys.argv[1]:
    pass
for r in rep:
    if r[0] >= 3:
        print("  pad", r, file=sys.stderr)
```

```python
import sys, struct
from asmlib import Stream, pad_hazards, vr, sr

NAME = "sequential_preLN__sliding_block__mixer_channel_mlp__prompt_kernel"

OPT = dict(stamps=0, warm=2, local=1, lo=0, lh=0, l1=0, ga=7, gb=3, g2a=3, tlb=1, c3=0, skipw=0, rotw=1, force_fb=0, codepf=1, xnt=0, diag=0, da='', db='', dk=1, dteam=0, set='main', infl=8, rot1=1, fa=0, wb=0, outsc=0)
for a in sys.argv[2:]:
    k, v = a.split("=")
    assert k in OPT, k
    OPT[k] = v if isinstance(OPT[k], str) else int(v)


def f2u(x):
    return struct.unpack("<I", struct.pack("<f", x))[0]


def hx(x):
    return hex(x & 0xffffffff)


SX, SWQ, SWO, SW1, SW2, SWS, SOUT, SB1, SB2, SDBG = 4, 8, 12, 16, 20, 24, 28, 32, 36, 40
sRB, sJ, sW, sROT, sWSB, sNONCE, sXCC, sRO = 44, 45, 46, 47, 48, 49, 50, 51
sT0, sT1, sT2, sT3, sT4, sT5, sT6, sT7 = 52, 53, 54, 55, 56, 57, 58, 59
sM0, sM1, sM2, sM3 = 60, 62, 64, 66
sCNT = 68
sLB = 69
sSTAMP = 70
srd = lambda b: sr(b, 4)

RBS = 0x80000
WKV, WO_, WH, WH1, WST, WFL = 0, 0x20000, 0x30000, 0x40000, 0x6C000, 0x70000
FLA, FLX, FLB, FLC, FLD = WFL, WFL + 0x1000, WFL + 0x1080, WFL + 0x1100, WFL + 0x1180
WSTAMP = 0x78000
WEPOCH = 0x7F000
H1H = 88 * 1024
WS_BYTES = 32 * RBS
OOB = 0x4000000

LDS_BYTES = 163840
SLOT = 32768
L_G0 = 98304
L_MISC = 159744
L_RS, L_NM, L_NONCE, L_C4, L_IB = L_MISC, L_MISC + 256, L_MISC + 512, L_MISC + 1024, L_MISC + 2048
HBLK, HHEAD, HGRP = 2080, 4160, 16640
halo_off = lambda b: (3 - (b >> 1)) * HGRP + (b & 1) * HBLK
L_WO = 94208
L_HST = 86016
W1S = 12288
W2W = 21504

TIMEOUT = 200000
tail = []
_lab = [0]


def lab(p):
    _lab[0] += 1
    return f"L_{p}{_lab[0]}"


STN = {}


def stamp(S, name, sets="main"):
    nm = STN.setdefault(id(S), ["t0"])
    if OPT["stamps"] and (OPT["set"] in sets.split() or name in (OPT["da"], OPT["db"])):
        assert len(nm) < 15
        S(f"s_memtime {sr(sSTAMP + 2 * len(nm), 2)}")
        nm.append(name)


def dma(S, vaddr, base, soff, off=0, fl=""):
    if OPT["skipw"] and base in (SW1, SWO, SW2):
        return S.vm_n
    o = f" offset:{off}" if off else ""
    fl = f" {fl}" if fl else ""
    return S.vm(f"buffer_load_dwordx4 {vr(vaddr)}, {srd(base)}, {soff} offen{o}{fl} lds")


def bg(S, *a, **k):
    S.wait(vm=S.vm_n - OPT["infl"] + 1)
    return dma(S, *a, **k)


def pub(S, stores, plain=True):
    if not plain:
        for st in stores:
            t = S.vm(st + " sc1")
        return t
    slow, join = lab("slow"), lab("join")
    S(f"s_cbranch_vccz {slow}")
    t = None
    for st in stores:
        t = S.vm(st)
    S(f"{join}:")
    tail.append(f"{slow}:")
    for st in stores:
        tail.append("    " + st + " sc1")
    tail.append(f"    s_branch {join}")
    return t


def poll(S, vaddr, vmask, vt, vu):
    lp, dn = lab("poll"), lab("pdone")
    S(f"s_mov_b32 {sr(sCNT)}, 0")
    S(f"{lp}:")
    S.vm(f"buffer_load_dword {vr(vt)}, {vr(vaddr)}, {srd(SWS)}, 0 offen sc1")
    S(f"s_add_u32 {sr(sCNT)}, {sr(sCNT)}, 1")
    S(f"s_cmp_gt_u32 {sr(sCNT)}, {TIMEOUT}")
    S.wait_vm0()
    S(f"s_cbranch_scc1 {dn}")
    if vmask is None:
        S(f"v_cmp_ne_u32 {sr(sM0, 2)}, {sr(sNONCE)}, {vr(vt)}")
    else:
        S(f"v_xor_b32 {vr(vu)}, {sr(sNONCE)}, {vr(vt)}")
        S(f"v_and_b32 {vr(vu)}, {vr(vu)}, {vr(vmask)}")
        S(f"v_cmp_ne_u32 {sr(sM0, 2)}, 0, {vr(vu)}")
    S(f"s_cmp_lg_u64 {sr(sM0, 2)}, 0")
    S(f"s_cbranch_scc1 {lp}")
    S(f"{dn}:")


def mf16(S, d, a, b, c=None):
    S(f"v_mfma_f32_16x16x32_bf16 {vr(d, 4)}, {vr(a, 4)}, {vr(b, 4)}, {vr(d, 4) if c is None else c}")


def mf32(S, d, a, b, c=None):
    S(f"v_mfma_f32_32x32x16_bf16 {vr(d, 16)}, {vr(a, 4)}, {vr(b, 4)}, {vr(d, 16) if c is None else c}")


def diag_spin(S, team):
    if OPT["diag"] == 1 and team == 0:
        if OPT["wb"] == 9:
            S("s_waitcnt vmcnt(0)")
            S.raw("buffer_wbl2 sc1")
        S("s_mov_b32 s52, 0")
        S("L_diag:")
        for _ in range(64):
            S("s_nop 15")
        S("s_add_u32 s52, s52, 1")
        S(f"s_cmp_lt_u32 s52, {OPT['dk']}")
        S("s_cbranch_scc1 L_diag")
    if OPT["diag"] == 2 and team == OPT["dteam"]:
        S("s_memtime s[52:53]")
        S("s_waitcnt lgkmcnt(0)")
        S(f"s_sub_u32 s54, {sr(sSTAMP + 2 * STN[id(S)].index(OPT['db']))}, {sr(sSTAMP + 2 * STN[id(S)].index(OPT['da']))}")
        S(f"s_mul_i32 s54, s54, {OPT['dk']}")
        S("L_diag:")
        S("s_memtime s[56:57]")
        S("s_waitcnt lgkmcnt(0)")
        S("s_sub_u32 s56, s56, s52")
        S("s_cmp_lt_u32 s56, s54")
        S("s_cbranch_scc1 L_diag")


def dump_stamps(S, team):
    if OPT["diag"] == 3 and team == 0:
        S("s_memrealtime s[52:53]")
        S("s_waitcnt lgkmcnt(0)")
        S(f"s_sub_u32 s54, s52, {sr(sSTAMP + 30)}")
        S("L_diag:")
        S("s_memrealtime s[56:57]")
        S("s_waitcnt lgkmcnt(0)")
        S("s_sub_u32 s56, s56, s52")
        S("s_cmp_lt_u32 s56, s54")
        S("s_cbranch_scc1 L_diag")
    diag_spin(S, team)
    if OPT["stamps"] != 1:
        return
    S("s_waitcnt lgkmcnt(0)")
    S(f"s_lshl_b32 {sr(sT0)}, {sr(sJ)}, 10")
    S(f"s_lshl_b32 {sr(sT1)}, {sr(sW)}, 7")
    S(f"s_add_u32 {sr(sT0)}, {sr(sT0)}, {sr(sT1)}")
    S(f"s_add_u32 {sr(sT0)}, {sr(sT0)}, {WSTAMP + team * 512}")
    S(f"s_add_u32 {sr(sT0)}, {sr(sT0)}, {sr(sWSB)}")
    S("v_mov_b32 v1, 0")
    for i in range(16):
        S(f"v_mov_b32 v2, {sr(sSTAMP + 2 * i)}")
        S.vm(f"buffer_store_dword v2, v1, {srd(SWS)}, {sr(sT0)} offen offset:{4 * i}")
    S.wait_vm0()


P = Stream()
SRDS = {SX: (0, 2097152), SWQ: (8, 1572864), SWS: (80, WS_BYTES), SW1: (32, 1409024), SWO: (16, 524288), SW2: (48, 1409024),
        SB1: (40, 2752), SB2: (56, 1024), SOUT: (64, 2097152), SDBG: (72, 256)}


def srd_load(S, bases):
    for b in bases:
        S(f"s_load_dwordx2 {sr(b, 2)}, s[0:1], {SRDS[b][0]}")


def srd_fill(S, bases):
    for b in bases:
        S(f"s_mov_b32 {sr(b + 2)}, {SRDS[b][1]}")
        S(f"s_mov_b32 {sr(b + 3)}, 0x20000")


srd_load(P, (SX, SWQ))
P("s_cmp_ge_u32 s2, 256")
P("s_cbranch_scc1 L_exit")
if OPT["stamps"]:
    P(f"s_memtime {sr(sSTAMP, 2)}")
    P(f"s_memrealtime {sr(sSTAMP + 30, 2)}")
P(f"s_bfe_u32 {sr(sJ)}, s2, 0x30003")
if OPT["codepf"]:
    P(f"s_getpc_b64 {sr(sM0, 2)}")
    P("L_pc:")
    P(f"s_mov_b32 {sr(sM0 + 2)}, L_end-L_pc")
    P(f"s_mov_b32 {sr(sM0 + 3)}, 0x20000")
    P(f"s_lshl_b32 {sr(sT0)}, {sr(sJ)}, 7")
    P("v_lshrrev_b32 v1, 4, v0")
    P("v_lshlrev_b32 v1, 10, v1")
    P("s_mov_b32 exec_lo, 0x10001")
    P("s_mov_b32 exec_hi, 0x10001")
    P.raw(f"buffer_load_dword v255, v1, {srd(sM0)}, {sr(sT0)} offen")
    P("s_mov_b64 exec, -1")
P(f"v_readfirstlane_b32 {sr(sT0)}, v0")
P("v_and_b32 v0, 63, v0")
P(f"s_lshr_b32 {sr(sT1)}, s2, 6")
P(f"s_and_b32 {sr(sT2)}, s2, 7")
P(f"s_lshl2_add_u32 {sr(sRB)}, {sr(sT2)}, {sr(sT1)}")
P(f"s_bfe_u32 {sr(sW)}, {sr(sT0)}, 0x20006")
P(f"s_cmp_ge_u32 {sr(sT0)}, 256")
P("s_cbranch_scc1 L_teamA")


def late_ids(S):
    S(f"s_lshl_b32 {sr(sWSB)}, {sr(sRB)}, 19")
    if OPT["rotw"] == 1:
        S(f"s_lshl_b32 {sr(sRO)}, s2, 2")
        S(f"s_and_b32 {sr(sRO)}, {sr(sRO)}, 12")
    elif OPT["rotw"] == 2:
        S(f"s_lshr_b32 {sr(sRO)}, s2, 6")
        S(f"s_lshl_b32 {sr(sRO)}, {sr(sRO)}, 2")
    else:
        S(f"s_mov_b32 {sr(sRO)}, 0")


B = Stream()
bX0, bX1, bWA = 1, 2, 3
bW1A = 4
bW1R = 7
bSA = 10
bONE = 16
bSUM, bSQ = 20, 24
bXF = 28
bT = 36
bCS = 48
bB1 = 60
bW1 = 64

B("s_setprio 2")
stamp(B, "entry", "st2")
srd_fill(B, (SX, SWQ))
if OPT["rot1"] == 1:
    B(f"s_add_u32 {sr(sROT)}, {sr(sT2)}, {sr(sJ)}")
elif OPT["rot1"] == 2:
    B(f"s_lshl1_add_u32 {sr(sROT)}, {sr(sT1)}, {sr(sJ)}")
    B(f"s_and_b32 {sr(sT2)}, {sr(sT2)}, 1")
    B(f"s_add_u32 {sr(sROT)}, {sr(sROT)}, {sr(sT2)}")
elif OPT["rot1"] == 3:
    B(f"s_and_b32 {sr(sT1)}, {sr(sT1)}, 1")
    B(f"s_lshl2_add_u32 {sr(sROT)}, {sr(sT1)}, {sr(sJ)}")
    B(f"s_add_u32 {sr(sROT)}, {sr(sROT)}, {sr(sT2)}")
elif OPT["rot1"] in (4, 5):
    B(f"s_add_u32 {sr(sROT)}, {sr(sT2)}, {sr(sJ)}")
    B(f"s_lshl_b32 {sr(sROT)}, {sr(sROT)}, {OPT['rot1'] - 3}")
elif OPT["rot1"] == 6:
    B(f"s_mov_b32 {sr(sROT)}, {sr(sT2)}")
elif OPT["rot1"] == 7:
    B(f"s_lshl_b32 {sr(sROT)}, {sr(sT2)}, 1")
elif OPT["rot1"] == 8:
    B(f"s_and_b32 {sr(sROT)}, {sr(sJ)}, 1")
    B(f"s_lshl2_add_u32 {sr(sROT)}, {sr(sROT)}, {sr(sT2)}")
else:
    B(f"s_mov_b32 {sr(sROT)}, {sr(sJ)}")
B(f"v_lshrrev_b32 v{bT}, 3, v0")
B(f"v_lshrrev_b32 v{bT + 1}, 4, v0")
B(f"v_and_b32 v{bT + 2}, 7, v0")
B(f"s_lshl_b32 {sr(sT0)}, {sr(sRB)}, 16")
B(f"s_lshl_b32 {sr(sT1)}, {sr(sW)}, 14")
B(f"s_add_u32 {sr(sT0)}, {sr(sT0)}, {sr(sT1)}")
B(f"v_xor_b32 v{bT + 3}, v{bT + 2}, v{bT + 1}")
B(f"v_lshlrev_b32 v{bT + 3}, 4, v{bT + 3}")
B(f"v_lshl_add_u32 v{bT + 3}, v{bT}, 10, v{bT + 3}")
B(f"v_add_u32 v{bX0}, {sr(sT0)}, v{bT + 3}")
B(f"v_xor_b32 v{bX1}, 64, v{bX0}")
B(f"v_add_u32 v{bX1}, 7168, v{bX1}")
B(f"s_and_b32 {sr(sT0)}, {sr(sW)}, 1")
B(f"s_lshl_b32 {sr(sT0)}, {sr(sT0)}, 2")
B(f"v_and_b32 v{bT + 3}, 1, v{bT + 1}")
B(f"v_lshl_or_b32 v{bT + 3}, v{bT + 3}, 1, {sr(sT0)}")
B(f"v_xor_b32 v{bT + 3}, v{bT + 3}, v{bT + 2}")
B(f"v_lshlrev_b32 v{bT + 3}, 4, v{bT + 3}")
B(f"s_mul_i32 {sr(sT0)}, {sr(sW)}, {8 * 3072}")
B(f"s_lshl_b32 {sr(sT1)}, {sr(sJ)}, 7")
B(f"s_add_u32 {sr(sT0)}, {sr(sT0)}, {sr(sT1)}")
B(f"v_mul_u32_u24 v{bT + 4}, 3072, v{bT}")
B(f"v_add3_u32 v{bWA}, v{bT + 3}, v{bT + 4}, {sr(sT0)}")
sXM, sWM, sSL = sT4, sT5, sT6
B(f"s_lshl_b32 {sr(sXM)}, {sr(sW)}, 11")
B(f"s_mul_i32 {sr(sWM)}, {sr(sW)}, 3072")
B(f"s_and_b32 {sr(sSL)}, {sr(sROT)}, 7")
stamp(B, "prek", "start")
B("s_waitcnt lgkmcnt(0)")
stamp(B, "karg", "start st2")

tok_s1 = {}


def s1_issue(s, part):
    slot = (s % 3) * SLOT
    if part == 0:
        B(f"s_add_u32 m0, {sr(sXM)}, {slot}")
        B(f"s_lshl_b32 {sr(sT0)}, {sr(sSL)}, 7")
        fl = "nt" if OPT["xnt"] else ""
        dma(B, bX0, SX, sr(sT0), 0, fl)
        if s == 0: stamp(B, "i1", "st2")
        dma(B, bX1, SX, sr(sT0), 1024, fl)
        if s == 0: stamp(B, "i2", "st2")
        B(f"s_add_u32 m0, {sr(sWM)}, {slot + 8192}")
        B(f"s_mul_i32 {sr(sT1)}, {sr(sSL)}, 196608")
        dma(B, bWA, SWQ, sr(sT1), 1024)
        if s == 0: stamp(B, "i3", "st2")
        dma(B, bWA, SWQ, sr(sT1), 2048)
        if s == 0: stamp(B, "i4", "st2")
    else:
        tok_s1[(s, 0)] = dma(B, bWA, SWQ, sr(sT1), 0)
        if s == 0: stamp(B, "i5", "st2")
        B(f"s_add_u32 m0, {sr(sWM)}, {slot + 8192 + 12288}")
        B(f"s_add_u32 {sr(sT1)}, {sr(sT1)}, 98304")
        for m in (1, 2, 0):
            tok_s1[(s, 1)] = dma(B, bWA, SWQ, sr(sT1), m * 1024)
            if s == 0: stamp(B, f"j{m}", "st2")
        B(f"s_add_u32 {sr(sSL)}, {sr(sSL)}, 1")
        B(f"s_and_b32 {sr(sSL)}, {sr(sSL)}, 7")


s1_issue(0, 0)
s1_issue(0, 1)
stamp(B, "iss8", "start")
if OPT["set"] == "st2":
    B("s_waitcnt vmcnt(8)")
    stamp(B, "pf", "st2")
    B("s_waitcnt vmcnt(7)")
    stamp(B, "x0", "st2")
    B("s_waitcnt vmcnt(5)")
    stamp(B, "w0", "st2")
    B("s_waitcnt vmcnt(0)")
    stamp(B, "all", "st2")
REST = (SWS, SW1, SWO, SW2, SB1, SB2, SOUT, SDBG)
srd_load(B, REST)
srd_fill(B, REST)
late_ids(B)
B(f"s_mul_i32 {sr(sT0)}, {sr(sW)}, {8 * 2752}")
B(f"s_mul_i32 {sr(sT2)}, {sr(sJ)}, 352")
B(f"s_add_u32 {sr(sT0)}, {sr(sT0)}, {sr(sT2)}")
B(f"s_mul_i32 {sr(sT2)}, {sr(sJ)}, 22")
B(f"s_sub_u32 {sr(sT2)}, 172, {sr(sT2)}")
B(f"s_min_u32 {sr(sT2)}, {sr(sT2)}, 22")
B(f"s_mov_b32 {sr(sT3)}, 2752")
for i in range(3):
    B(f"v_add_u32 v{bT + 3}, {64 * i}, v0")
    B(f"v_mul_u32_u24 v{bT + 4}, 171, v{bT + 3}")
    B(f"v_lshrrev_b32 v{bT + 4}, 12, v{bT + 4}")
    B(f"v_mul_u32_u24 v{bT + 5}, 24, v{bT + 4}")
    B(f"v_sub_u32 v{bT + 5}, v{bT + 3}, v{bT + 5}")
    B(f"v_and_b32 v{bT + 6}, 6, v{bT + 4}")
    B(f"v_xor_b32 v{bT + 5}, v{bT + 5}, v{bT + 6}")
    B(f"v_cmp_gt_u32 {sr(sM0, 2)}, {sr(sT2)}, v{bT + 5}")
    B(f"v_lshlrev_b32 v{bT + 5}, 4, v{bT + 5}")
    B(f"v_mad_u32_u24 v{bT + 5}, v{bT + 4}, {sr(sT3)}, v{bT + 5}")
    B(f"v_add_u32 v{bT + 5}, {sr(sT0)}, v{bT + 5}")
    if i:
        B(f"v_subrev_u32 v{bT + 5}, {1024 * i}, v{bT + 5}")
    B(f"v_mov_b32 v{bT + 6}, {hx(OOB)}")
    B(f"v_cndmask_b32 v{bW1A + i}, v{bT + 6}, v{bT + 5}, {sr(sM0, 2)}")
B(f"v_lshrrev_b32 v{bT + 3}, 2, v0")
B(f"v_bfe_u32 v{bT + 4}, v0, 3, 2")
B(f"v_and_b32 v{bT + 5}, 3, v0")
B(f"v_lshlrev_b32 v{bT + 5}, 3, v{bT + 5}")
B(f"v_mul_u32_u24 v{bT + 3}, 384, v{bT + 3}")
B(f"v_add_u32 v{bT + 3}, v{bT + 3}, v{bT + 5}")
B(f"v_add_u32 v{bT + 3}, {L_G0}, v{bT + 3}")
B(f"s_mul_i32 {sr(sT0)}, {sr(sW)}, 3")
for n in range(3):
    B(f"v_xor_b32 v{bT + 5}, {sr(sT0)}, v{bT + 4}")
    B(f"v_lshl_add_u32 v{bW1R + n}, v{bT + 5}, 5, v{bT + 3}")
    B(f"s_add_u32 {sr(sT0)}, {sr(sT0)}, 1")
B(f"v_and_b32 v{bT + 3}, 15, v0")
B(f"v_lshrrev_b32 v{bT + 4}, 1, v{bT + 3}")
B(f"v_xor_b32 v{bT + 4}, v{bT + 4}, v{bT + 1}")
B(f"v_lshlrev_b32 v{bT + 4}, 4, v{bT + 4}")
B(f"v_lshl_add_u32 v{bT + 4}, v{bT + 3}, 7, v{bT + 4}")
B(f"v_add_u32 v{bSA}, {sr(sXM)}, v{bT + 4}")
B(f"v_xor_b32 v{bSA + 1}, 64, v{bSA}")
B(f"v_add_u32 v{bSA + 2}, 0x10000, v{bSA}")
B(f"v_add_u32 v{bSA + 3}, 0x10000, v{bSA + 1}")
for i in range(4):
    B(f"v_mov_b32 v{bONE + i}, 0x3f803f80")
sW1K = sT7
B(f"s_mov_b32 {sr(sW1K)}, {sr(sRO)}")
B("s_waitcnt lgkmcnt(0)")
s1_issue(1, 0)
stamp(B, "iss12", "start")

w1_tok = {}
w1_at = {}
w1_next = [0]
w1_dr = [0]


def w1_issue(lds, thr=True):
    i = w1_next[0]
    w1_next[0] += 1
    B(f"s_add_u32 m0, {sr(sWM)}, {lds}")
    B(f"s_mul_i32 {sr(sT0)}, {sr(sW1K)}, 88064")
    for n in range(3):
        t = (bg if thr else dma)(B, bW1A + n, SW1, sr(sT0), n * 1024)
    B(f"s_add_u32 {sr(sW1K)}, {sr(sW1K)}, 1")
    B(f"s_and_b32 {sr(sW1K)}, {sr(sW1K)}, 15")
    w1_tok[i] = t
    w1_at[i] = lds
    return t


w1_base = [L_G0]


def w1_drain(upto):
    todo = sorted(range(w1_dr[0], upto), key=lambda i: w1_at[i])
    w1_dr[0] = upto
    for i in todo:
        lds = w1_at[i]
        if not 0 <= lds - w1_base[0] <= 65535 - 6144:
            for n in range(3):
                B(f"v_add_u32 v{bW1R + n}, {hx(lds - w1_base[0])}, v{bW1R + n}")
            w1_base[0] = lds
        for n in range(3):
            for h in range(2):
                B.ds(f"ds_read_b64_tr_b16 {vr(bW1 + 12 * i + 4 * n + 2 * h, 2)}, v{bW1R + n} offset:{lds - w1_base[0] + h * 6144}")


def warm_touch(S, va, vd, which):
    S(f"s_lshl2_add_u32 {sr(sT0)}, s2, {sr(sW)}")
    S(f"s_mul_i32 {sr(sT2)}, {sr(sT0)}, {11 * 128}")
    S(f"s_lshl_b32 {sr(sT0)}, {sr(sT0)}, 9")
    S(f"v_lshlrev_b32 v{va}, 7, v0")
    S("s_mov_b64 exec, 0x7ff")
    if "1" in which:
        S.vm(f"buffer_load_dword v{vd}, v{va}, {srd(SW1)}, {sr(sT2)} offen")
    if "2" in which:
        S.vm(f"buffer_load_dword v{vd + 1}, v{va}, {srd(SW2)}, {sr(sT2)} offen")
    S("s_mov_b64 exec, 0xf")
    if "o" in which:
        S.vm(f"buffer_load_dword v{vd + 2}, v{va}, {srd(SWO)}, {sr(sT0)} offen")
    S("s_mov_b64 exec, -1")


def w1_colsum(first, count):
    for i in range(first, first + count):
        for n in range(3):
            mf16(B, bCS + 4 * n, bONE, bW1 + 12 * i + 4 * n, "0" if i == 0 else None)


def st_mf(n):
    mf16(B, bSUM, bONE, bXF + 4 * (n & 1), "0" if n == 0 else None)
    mf16(B, bSQ, bXF + 4 * (n & 1), bXF + 4 * (n & 1), "0" if n == 0 else None)


for n in range(16):
    s, t = n >> 1, n & 1
    B.wait(vm=tok_s1[(s, t)], lg=B.lg_n)
    if n == 0:
        stamp(B, "land0", "start")
    B("s_barrier")
    if n == 0:
        stamp(B, "bar0", "main start")
    elif n in (2, 4, 6, 8, 10, 12, 14):
        stamp(B, f"bar{n}", "start")
    sl = s % 3
    tk = B.ds(f"ds_read_b128 {vr(bXF + 4 * t, 4)}, v{bSA + t + (2 if sl == 2 else 0)} offset:{(sl & 1) * SLOT}")
    if n:
        st_mf(n - 1)
    q = n + 3
    if q < 16:
        s1_issue(q >> 1, q & 1)
    elif n < 15:
        if n == 13 and OPT["warm"] in (2, 3):
            warm_touch(B, bT + 8, bT + 9, "12o" if OPT["warm"] == 2 else "2o")
        if w1_next[0] < OPT["ga"]:
            w1_issue(L_G0 + w1_next[0] * W1S, False)
B.wait(lg=tk)
st_mf(15)
stamp(B, "s1end", "main")
B(f"v_and_b32 v{bT}, 3, v0")
B(f"v_cmp_eq_u32 {sr(sM0, 2)}, 1, v{bT}")
B(f"v_cmp_eq_u32 {sr(sM1, 2)}, 2, v{bT}")
B(f"v_cmp_eq_u32 {sr(sM2, 2)}, 3, v{bT}")
B(f"v_and_b32 v{bT + 2}, 15, v0")
B(f"s_lshl_b32 {sr(sT0)}, {sr(sW)}, 6")
B(f"s_add_u32 {sr(sT0)}, {sr(sT0)}, {L_RS}")
B(f"v_lshl_add_u32 v{bT + 2}, v{bT + 2}, 2, {sr(sT0)}")
B(f"v_mul_f32 v{bT + 3}, {hx(f2u(-1.0 / 512))}, v{bSUM}")
B(f"v_cndmask_b32 v{bT + 1}, v{bSQ}, v{bSQ + 1}, {sr(sM0, 2)}")
B(f"v_cndmask_b32 v{bT + 1}, v{bT + 1}, v{bSQ + 2}, {sr(sM1, 2)}")
B(f"v_cndmask_b32 v{bT + 1}, v{bT + 1}, v{bSQ + 3}, {sr(sM2, 2)}")
B(f"v_mul_f32 v{bT + 1}, {hx(f2u(1.0 / 512))}, v{bT + 1}")
B(f"v_fma_f32 v{bT + 1}, -v{bT + 3}, v{bT + 3}, v{bT + 1}")
B(f"v_max_f32 v{bT + 1}, 0, v{bT + 1}")
B(f"v_add_f32 v{bT + 1}, {hx(f2u(1e-5))}, v{bT + 1}")
B(f"v_rsq_f32 v{bT + 1}, v{bT + 1}")
B("s_mov_b32 exec_lo, 0x00f0000f")
B("s_mov_b32 exec_hi, 0xf0000f00")
B(f"v_mul_f32 v{bT + 3}, v{bT + 3}, v{bT + 1}")
B.ds(f"ds_write2st64_b32 v{bT + 2}, v{bT + 1}, v{bT + 3} offset0:0 offset1:1")
B("s_mov_b64 exec, -1")
B.wait_lg0()
B("s_barrier")
B("s_setprio 0")
stamp(B, "S1e", "main start")
B(f"v_mov_b32 v{bT}, {L_NONCE}")
tk = B.ds(f"ds_read_b32 v{bT + 1}, v{bT}")
GA, GB, G2A = OPT["ga"], OPT["gb"], OPT["g2a"]
G2B = 16 - GA - GB - G2A
slots_b = [73728, 0, 12288]
slots_2a = [24576, 36864, 49152, 61440] + slots_b[GB:]
slots_2b = slots_b[:GB] + slots_2a[G2A:]
assert GA <= 7 and GB <= 3 and 0 <= G2A <= len(slots_2a) and 0 <= G2B <= len(slots_2b)
B.wait(lg=tk)
B(f"v_readfirstlane_b32 {sr(sNONCE)}, v{bT + 1}")
bPA, bPM, bWO, bHL, bPX = 28, 29, 30, 31, 32
B(f"s_getreg_b32 {sr(sXCC)}, hwreg(HW_REG_XCC_ID, 0, 4)")
B(f"s_lshl2_add_u32 {sr(sT0)}, {sr(sJ)}, {sr(sW)}")
B(f"s_lshl_b32 {sr(sT0)}, {sr(sT0)}, 7")
B(f"s_add_u32 {sr(sT0)}, {sr(sT0)}, {sr(sWSB)}")
B(f"s_add_u32 {sr(sT0)}, {sr(sT0)}, {hx(FLA - RBS)}")
B(f"v_lshlrev_b32 v{bT}, 19, v0")
B(f"v_sub_u32 v{bT}, {sr(sT0)}, v{bT}")
B(f"s_min_u32 {sr(sT2)}, {sr(sRB)}, 4")
B(f"v_cmp_gt_u32 {sr(sM0, 2)}, {sr(sT2)}, v0")
B(f"v_mov_b32 v{bT + 2}, {hx(OOB)}")
B(f"v_cndmask_b32 v{bPA}, v{bT + 2}, v{bT}, {sr(sM0, 2)}")
B(f"v_cndmask_b32 v{bPM}, 0, -1, {sr(sM0, 2)}")
B(f"v_and_b32 v{bT + 1}, 7, v0")
B(f"s_add_u32 {sr(sT1)}, {sr(sWSB)}, {FLX}")
B(f"v_lshl_add_u32 v{bPX}, v{bT + 1}, 2, {sr(sT1)}")
while w1_next[0] < GA:
    w1_issue(L_G0 + w1_next[0] * W1S if w1_next[0] < 5 else 73728 + (w1_next[0] - 5) * W1S)
B(f"v_lshrrev_b32 v{bT}, 3, v0")
B(f"v_and_b32 v{bT + 1}, 6, v{bT}")
B(f"v_and_b32 v{bT + 2}, 7, v0")
B(f"v_xor_b32 v{bT + 1}, v{bT + 1}, v{bT + 2}")
B(f"v_lshlrev_b32 v{bT + 1}, 4, v{bT + 1}")
B(f"v_lshl_add_u32 v{bT + 1}, v{bT}, 10, v{bT + 1}")
B(f"s_lshl_b32 {sr(sT0)}, {sr(sW)}, 13")
B(f"s_lshl_b32 {sr(sT1)}, {sr(sJ)}, 7")
B(f"s_add_u32 {sr(sT0)}, {sr(sT0)}, {sr(sT1)}")
B(f"v_add_u32 v{bWO}, {sr(sT0)}, v{bT + 1}")
B(f"s_lshl2_add_u32 {sr(sT0)}, {sr(sJ)}, {sr(sW)}")
B(f"s_lshl_b32 {sr(sT0)}, {sr(sT0)}, 12")
B(f"v_lshl_add_u32 v{bHL}, v0, 4, {sr(sT0)}")
B(f"v_lshrrev_b32 v{bT}, 1, v0")
B(f"v_cmp_gt_u32 {sr(sM0, 2)}, {sr(sRB)}, v{bT}")
B(f"s_mul_i32 {sr(sLB)}, {sr(sW)}, {HHEAD}")
B(f"v_mul_u32_u24 v{bT}, {HGRP - 2 * HBLK}, v{bT}")
B(f"v_mul_u32_u24 v{bT + 1}, {HBLK}, v0")
B(f"v_add3_u32 v{bT + 1}, v{bT + 1}, v{bT}, {sr(sLB)}")
for i in range(4):
    B(f"v_cndmask_b32 v{bT + 4 + i}, 0, v{bONE}, {sr(sM0, 2)}")
stamp(B, "preD")
B("s_barrier")
B("s_mov_b64 exec, 0xff")
B.ds(f"ds_write_b128 v{bT + 1}, {vr(bT + 4, 4)} offset:2048")
B("s_mov_b64 exec, -1")
B("s_setprio 2")
poll(B, bPA, bPM, bT + 2, bT + 3)
stamp(B, "pollA")
h_tok = []
for i in range(1, 5):
    B(f"s_sub_u32 {sr(sT0)}, {sr(sWSB)}, {i * RBS}")
    B(f"s_cselect_b32 {sr(sT0)}, {hx(OOB)}, {sr(sT0)}")
    for blk in (1, 0):
        B(f"s_add_u32 m0, {sr(sLB)}, {halo_off(8 - 2 * i + blk)}")
        B(f"s_add_u32 {sr(sT1)}, {sr(sT0)}, {blk * 2048}")
        dma(B, bHL, SWS, sr(sT1), 0, "sc1")
        t = dma(B, bHL, SWS, sr(sT1), 1024, "sc1")
    h_tok.append(t)
    if i == 2:
        B.wait(vm=h_tok[0], lg=B.lg_n)
        B("s_barrier")
        stamp(B, "H0")
B("s_setprio 0")
w1_drain(GA)
sWOK = sT6
B(f"s_mov_b32 {sr(sWOK)}, {sr(sRO)}")
B(f"s_lshl_b32 {sr(sT3)}, {sr(sW)}, 10")
wo_next = [0]


def wo_issue(cnt):
    for _ in range(cnt):
        n = wo_next[0]
        wo_next[0] += 1
        B(f"s_add_u32 m0, {sr(sT3)}, {L_WO + n * 4096}")
        B(f"s_lshl_b32 {sr(sT0)}, {sr(sWOK)}, 15")
        bg(B, bWO, SWO, sr(sT0))
        B(f"s_add_u32 {sr(sWOK)}, {sr(sWOK)}, 1")
        B(f"s_and_b32 {sr(sWOK)}, {sr(sWOK)}, 15")


B.wait(vm=h_tok[1], lg=B.lg_n)
B("s_barrier")
tx = B.vm(f"buffer_load_dword v{bT + 2}, v{bPX}, {srd(SWS)}, 0 offen sc1")
wo_issue(7)
lp, dn = lab("xp"), lab("xpd")
B(f"s_mov_b32 {sr(sCNT)}, 0")
B.wait(vm=tx)
B(f"{lp}:")
B(f"v_xor_b32 v{bT + 3}, {sr(sNONCE)}, v{bT + 2}")
B(f"v_cmp_le_u32 {sr(sM0, 2)}, 16, v{bT + 3}")
B(f"s_cmp_lg_u64 {sr(sM0, 2)}, 0")
B(f"s_cbranch_scc1 {lp}x")
B(f"{dn}:")
tail += [f"{lp}x:", f"    s_add_u32 {sr(sCNT)}, {sr(sCNT)}, 1", f"    s_cmp_gt_u32 {sr(sCNT)}, {TIMEOUT}", f"    s_cbranch_scc1 {dn}",
         f"    buffer_load_dword v{bT + 2}, v{bPX}, {srd(SWS)}, 0 offen sc1", "    s_waitcnt vmcnt(0)", f"    s_branch {lp}"]
B(f"v_and_b32 v{bT + 2}, 15, v{bT + 2}")
B(f"v_cmp_ne_u32 {sr(sM0, 2)}, {sr(sXCC)}, v{bT + 2}")
B(f"s_cmp_eq_u64 {sr(sM0, 2)}, 0")
B(f"s_cselect_b64 vcc, {-1 if OPT['local'] else 0}, 0")
B(f"v_mov_b32 v{bT}, {L_NONCE + 4}")
B(f"v_mov_b32 v{bT + 1}, vcc_lo")
B.ds(f"ds_write_b32 v{bT}, v{bT + 1}")
B.wait(vm=h_tok[3], lg=B.lg_n)
B("s_barrier")
wo_issue(9)
B(f"s_add_u32 m0, {sr(sXM)}, {L_HST}")
B(f"s_lshl_b32 {sr(sT0)}, {sr(sJ)}, 7")
bg(B, bX0, SX, sr(sT0), 0)
bg(B, bX1, SX, sr(sT0), 1024)
B(f"s_mul_i32 {sr(sT0)}, {sr(sJ)}, 352")
B(f"s_mul_i32 {sr(sT1)}, {sr(sW)}, 96")
B(f"s_add_u32 {sr(sT0)}, {sr(sT0)}, {sr(sT1)}")
B(f"v_and_b32 v{bT}, 15, v0")
B(f"v_lshlrev_b32 v{bT}, 1, v{bT}")
for n in range(3):
    t = B.vm(f"buffer_load_ushort v{bB1 + n}, v{bT}, {srd(SB1)}, {sr(sT0)} offen offset:{32 * n}")
if OPT["lo"] or OPT["lh"]:
    B(f"v_and_b32 v{bT + 1}, 15, v0")
    B(f"v_lshlrev_b32 v{bT + 1}, 7, v{bT + 1}")
    B(f"v_bfe_u32 v{bT + 2}, v0, 4, 1")
    B(f"v_lshl_add_u32 v{bT + 1}, v{bT + 2}, 16, v{bT + 1}")
    B(f"s_lshl_b32 {sr(sT0)}, {sr(sW)}, 14")
    B(f"s_lshl_b32 {sr(sT1)}, {sr(sJ)}, 11")
    B(f"s_add_u32 {sr(sT0)}, {sr(sT0)}, {sr(sT1)}")
    B(f"s_add_u32 {sr(sT0)}, {sr(sT0)}, {WO_}")
    B(f"v_add_u32 v{bT + 1}, {sr(sT0)}, v{bT + 1}")
    B(f"s_lshl_b32 {sr(sT0)}, {sr(sW)}, 10")
    B(f"s_lshl_b32 {sr(sT1)}, {sr(sJ)}, 7")
    B(f"s_add_u32 {sr(sT0)}, {sr(sT0)}, {sr(sT1)}")
    B(f"s_add_u32 {sr(sT0)}, {sr(sT0)}, {WST}")
    B(f"v_writelane_b32 v{bT + 1}, {sr(sT0)}, 32")
    B(f"s_mov_b32 exec_lo, {hx((0xffff if OPT['lo'] else 0) | (0xffff0000 if OPT['lh'] else 0))}")
    B(f"s_mov_b32 exec_hi, {OPT['lh']}")
    B.vm(f"buffer_load_dword v{bT + 2}, v{bT + 1}, {srd(SWS)}, {sr(sWSB)} offen sc1")
    B("s_mov_b64 exec, -1")
for i in range(GB):
    t = w1_issue(slots_b[i])
stamp(B, "preE")
B.wait(vm=t)
B("s_barrier")
stamp(B, "E")
w1_drain(GA + GB)
for i in range(G2A):
    w1_issue(slots_2a[i])
B.wait_lg0()
w1_colsum(0, GA + GB)
B.wait_vm0()
B("s_barrier")
for i in range(G2B):
    w1_issue(slots_2b[i])
w1_drain(GA + GB + G2A)
bHA, bCA, bIA, bSP, bSG = 1, 2, 3, 10, 11
B(f"v_lshlrev_b32 v{bHA}, 4, v0")
B(f"v_add_u32 v{bHA}, {L_WO}, v{bHA}")
B(f"v_and_b32 v{bT}, 15, v0")
B(f"v_lshlrev_b32 v{bT}, 4, v{bT}")
B(f"v_add_u32 v{bCA}, {L_C4}, v{bT}")
B(f"v_lshlrev_b32 v{bIA}, 3, v0")
B(f"v_add_u32 v{bIA}, {L_IB}, v{bIA}")
B(f"s_mul_i32 {sr(sT0)}, {sr(sJ)}, 11")
B(f"s_mul_i32 {sr(sT1)}, {sr(sW)}, 3")
B(f"s_add_u32 {sr(sT0)}, {sr(sT0)}, {sr(sT1)}")
B(f"s_lshl_b32 {sr(sT0)}, {sr(sT0)}, 10")
B(f"s_add_u32 {sr(sT0)}, {sr(sT0)}, {WH1}")
B(f"v_lshrrev_b32 v{bT + 1}, 4, v0")
B(f"v_lshl_add_u32 v{bT + 2}, v{bT + 1}, 9, v{bT}")
B(f"v_add_u32 v{bSP}, {sr(sT0)}, v{bT + 2}")
B(f"v_lshrrev_b32 v{bT + 2}, 5, v0")
B(f"v_lshl_add_u32 v{bT + 2}, v{bT + 2}, 9, v{bT}")
B(f"v_and_b32 v{bT + 1}, 1, v{bT + 1}")
B(f"v_lshl_add_u32 v{bT + 2}, v{bT + 1}, 3, v{bT + 2}")
B(f"s_add_u32 {sr(sT0)}, {sr(sT0)}, 2048")
B(f"s_cmp_eq_u32 {sr(sW)}, 3")
B(f"s_cselect_b32 {sr(sT0)}, {hx(OOB)}, {sr(sT0)}")
B(f"v_add_u32 v{bSG}, {sr(sT0)}, v{bT + 2}")
B.wait_lg0()
w1_colsum(GA + GB, G2A)
B.wait_vm0()
B("s_barrier")
stamp(B, "C1", "main late")
w1_drain(16)
B(f"v_lshrrev_b32 v{bT}, 4, v0")
B(f"v_cmp_eq_u32 {sr(sM0, 2)}, 0, v{bT}")
B(f"v_cmp_eq_u32 {sr(sM1, 2)}, 1, v{bT}")
B.wait_lg0()
w1_colsum(GA + GB + G2A, G2B)
bIN = 4
for n in range(3):
    cs = bCS + 4 * n
    B(f"v_cvt_pk_bf16_f32 v{bT}, v{cs}, 0")
    B(f"v_lshlrev_b32 v{bT + 1}, 16, v{bT}")
    B(f"v_sub_f32 v{bT + 1}, v{cs}, v{bT + 1}")
    B(f"v_cvt_pk_bf16_f32 v{bT + 1}, v{cs}, v{bT + 1}")
    B(f"v_lshl_or_b32 v{bT + 2}, v{bB1 + n}, 16, v{bB1 + n}")
    B(f"v_cndmask_b32 v{bT + 1}, 0, v{bT + 1}, {sr(sM1, 2)}")
    B(f"v_cndmask_b32 v{bIN + 2 * n}, v{bT + 1}, v{bT + 2}, {sr(sM0, 2)}")
    B(f"v_cndmask_b32 v{bIN + 2 * n + 1}, 0, v{bT}, {sr(sM1, 2)}")
B("s_setprio 2")
B("s_barrier")
stamp(B, "T0", "main late")
bHF = 12
bAC = 24
bC4 = 48
bIB = 52
bG = 54
sH1 = sT3


def gelu_ops(t):
    ac = bAC + 12 * (t & 1)
    ops = []
    for p in range(6):
        a0, a1 = ac + 2 * p, ac + 2 * p + 1
        g0, g1 = bG + 2 * (p & 1), bG + 2 * (p & 1) + 1
        ops += [f"v_mul_f32 v{g0}, v{a0}, v{a0}", f"v_mul_f32 v{g1}, v{a1}, v{a1}",
                f"v_fma_f32 v{g0}, v{g0}, v{bC4 + 1}, v{bC4}", f"v_fma_f32 v{g1}, v{g1}, v{bC4 + 1}, v{bC4}",
                f"v_mul_f32 v{g0}, v{g0}, v{a0}", f"v_mul_f32 v{g1}, v{g1}, v{a1}",
                f"v_exp_f32 v{g0}, v{g0}", f"v_exp_f32 v{g1}, v{g1}",
                f"v_fma_f32 v{g0}, v{g0}, v{bC4 + 2}, v{bC4 + 2}", f"v_fma_f32 v{g1}, v{g1}, v{bC4 + 2}, v{bC4 + 2}",
                f"v_rcp_f32 v{g0}, v{g0}", f"v_rcp_f32 v{g1}, v{g1}",
                f"v_mul_f32 v{g0}, v{g0}, v{a0}", f"v_mul_f32 v{g1}, v{g1}, v{a1}",
                f"v_cvt_pk_bf16_f32 v{ac + p if p < 4 else ac + 4 + p}, v{g0}, v{g1}"]
        if p == 3:
            ops.append(("st", f"buffer_store_dwordx4 {vr(ac, 4)}, v{bSP}, {srd(SWS)}, {sr(sH1)} offen offset:{(t & 1) * 256}"))
        if p == 5:
            ops.append(("st", f"buffer_store_dwordx2 {vr(ac + 8, 2)}, v{bSG}, {srd(SWS)}, {sr(sH1)} offen offset:{(t & 1) * 256}"))
    return ops


def emit_g(op):
    if isinstance(op, tuple):
        pub(B, [op[1]], OPT['l1'])
    else:
        B(op)


def cost(op):
    if isinstance(op, tuple):
        return 8
    return 8 if op.startswith(("v_exp", "v_rcp")) else 4


B(f"s_mov_b32 {sr(sH1)}, {sr(sWSB)}")
hf_tok = {}
NF = 64


def hf_read(q):
    if q < NF:
        hf_tok[q] = B.ds(f"ds_read_b128 {vr(bHF + 4 * (q % 3), 4)}, v{bHA} offset:{q * 1024}")


hf_read(0)
hf_read(1)
for t in range(4):
    ac = bAC + 12 * (t & 1)
    g = gelu_ops(t - 1) if t else []
    tot = sum(cost(o) for o in g)
    done = 0
    gi = 0
    if t:
        c4t = B.ds(f"ds_read_b128 {vr(bC4, 4)}, v{bCA} offset:{(t - 1) * 256}")
    if t == 3:
        B(f"s_add_u32 {sr(sH1)}, {sr(sWSB)}, {H1H}")
    nm = 0
    for i in range(16):
        q = 16 * t + i
        if q == 13:
            B.wait_lg0()
            stamp(B, "preT1", "late")
            B("s_barrier")
            stamp(B, "T1", "late")
        B.wait(lg=hf_tok[q])
        for n in range(3):
            mf16(B, ac + 4 * n, bW1 + 12 * i + 4 * n, bHF + 4 * (q % 3), "0" if i == 0 else None)
            nm += 1
            if n == 0:
                hf_read(q + 2)
                if i == 14:
                    ibt = B.ds(f"ds_read_b64 {vr(bIB, 2)}, v{bIA} offset:{t * 512}")
            if nm >= 5 and g:
                if gi == 0:
                    B.wait(lg=c4t)
                while gi < len(g) and done < tot * (nm - 4) / 42.0:
                    emit_g(g[gi])
                    done += cost(g[gi])
                    gi += 1
    while gi < len(g):
        emit_g(g[gi])
        gi += 1
    B.wait(lg=ibt)
    stamp(B, f"rt{t}", "late")
    for n in range(3):
        B(f"v_mfma_f32_16x16x16_bf16 {vr(ac + 4 * n, 4)}, {vr(bIN + 2 * n, 2)}, {vr(bIB, 2)}, {vr(ac + 4 * n, 4)}")
c4t = B.ds(f"ds_read_b128 {vr(bC4, 4)}, v{bCA} offset:{3 * 256}")
B.wait(lg=c4t)
for o in gelu_ops(3):
    emit_g(o)
stamp(B, "s4end", "main late")
B(f"s_lshl2_add_u32 {sr(sT0)}, {sr(sJ)}, {sr(sW)}")
B(f"s_lshl2_add_u32 {sr(sT0)}, {sr(sT0)}, {sr(sWSB)}")
B(f"v_mov_b32 v{bG}, {FLD}")
B(f"v_mov_b32 v{bG + 1}, {sr(sNONCE)}")
B("s_mov_b64 exec, 1")
B.wait_vm0()
pub(B, [f"buffer_store_dword v{bG + 1}, v{bG}, {srd(SWS)}, {sr(sT0)} offen"])
B("s_mov_b64 exec, -1")
B("s_setprio 0")
stamp(B, "flagD", "main late")
fOA, fPA, fHA, fB2, fH, fP = 1, 2, 4, 8, 16, 32
B(f"v_and_b32 v{bT}, 7, v0")
B(f"v_lshrrev_b32 v{bT + 1}, 3, v0")
B(f"v_lshlrev_b32 v{bT + 2}, 4, v{bT}")
B(f"s_lshl_b32 {sr(sT0)}, {sr(sJ)}, 7")
tb2 = B.vm(f"buffer_load_dwordx4 {vr(fH, 4)}, v{bT + 2}, {srd(SB2)}, {sr(sT0)} offen")
B(f"s_lshl_b32 {sr(sT1)}, {sr(sRB)}, 16")
B(f"s_add_u32 {sr(sT0)}, {sr(sT0)}, {sr(sT1)}")
B(f"s_lshl_b32 {sr(sT1)}, {sr(sW)}, 13")
B(f"s_add_u32 {sr(sT0)}, {sr(sT0)}, {sr(sT1)}")
B(f"v_lshl_add_u32 v{fOA}, v{bT + 1}, 10, v{bT + 2}")
B(f"v_add_u32 v{fOA}, {sr(sT0)}, v{fOA}")
B(f"v_lshlrev_b32 v{bT + 3}, 1, v{bT}")
B(f"v_xor_b32 v{bT + 3}, v{bT + 3}, v{bT + 1}")
B(f"v_lshlrev_b32 v{bT + 3}, 4, v{bT + 3}")
B(f"v_lshl_add_u32 v{bT + 3}, v{bT + 1}, 8, v{bT + 3}")
B(f"s_lshl_b32 {sr(sT1)}, {sr(sW)}, 11")
B(f"v_add_u32 v{fPA}, {sr(sT1)}, v{bT + 3}")
B(f"v_xor_b32 v{fPA + 1}, 16, v{fPA}")
B(f"s_lshl_b32 {sr(sT1)}, {sr(sW)}, 3")
B(f"v_add_u32 v{bT + 3}, {sr(sT1)}, v{bT + 1}")
B(f"v_bfe_u32 v{bT + 4}, v{bT + 3}, 1, 3")
B(f"v_xor_b32 v{bT + 4}, v{bT + 4}, v{bT}")
B(f"v_lshlrev_b32 v{bT + 4}, 4, v{bT + 4}")
B(f"v_lshl_add_u32 v{bT + 4}, v{bT + 3}, 7, v{bT + 4}")
B(f"v_add_u32 v{fHA}, {L_HST}, v{bT + 4}")
B.wait(vm=tb2)
for i in range(4):
    B(f"v_lshlrev_b32 v{fB2 + 2 * i}, 16, v{fH + i}")
    B(f"v_and_b32 v{fB2 + 2 * i + 1}, 0xffff0000, v{fH + i}")
for half in range(2):
    th = B.ds(f"ds_read_b128 {vr(fH + 8, 4)}, v{fHA} offset:{half * 4096}")
    B.wait(lg=th)
    for i in range(4):
        B(f"v_lshlrev_b32 v{fH + 2 * i}, 16, v{fH + 8 + i}")
        B(f"v_and_b32 v{fH + 2 * i + 1}, 0xffff0000, v{fH + 8 + i}")
    for i in range(4):
        B(f"v_pk_add_f32 {vr(fH + 2 * i, 2)}, {vr(fH + 2 * i, 2)}, {vr(fB2 + 2 * i, 2)}")
    B("s_barrier")
    stamp(B, f"R{half}", "late")
    tks = []
    for p in range(4):
        for e in range(2):
            base = p * W2W + half * 8192
            if base >= 65536:
                if e == 0:
                    B(f"v_add_u32 v{fPA + 4}, {base}, v{fPA}")
                    B(f"v_add_u32 v{fPA + 5}, {base}, v{fPA + 1}")
                tks.append(B.ds(f"ds_read_b128 {vr(fP + 8 * p + 4 * e, 4)}, v{fPA + 4 + e}"))
            else:
                tks.append(B.ds(f"ds_read_b128 {vr(fP + 8 * p + 4 * e, 4)}, v{fPA + e} offset:{base}"))
    for p in range(4):
        B.wait(lg=tks[2 * p + 1])
        for i in range(8):
            B(f"v_add_f32 v{fH + i}, v{fH + i}, v{fP + 8 * p + i}")
    for i in range(4):
        B(f"v_cvt_pk_bf16_f32 v{fH + 12 + i}, v{fH + 2 * i}, v{fH + 2 * i + 1}")
    if half:
        B(f"s_mov_b32 {sr(sT0)}, 32768")
    B.vm(f"buffer_store_dwordx4 {vr(fH + 12, 4)}, v{fOA}, {srd(SOUT)}, {sr(sT0) if half else 0} offen{('', ' sc1', ' nt', ' sc0 sc1')[OPT['outsc']]}")
stamp(B, "end", "main late")
dump_stamps(B, 0)
B("s_endpgm")

A = Stream()
A("L_teamA:")
A("s_setprio 1")
stamp(A, "entry", "start")
aXA, aWA = 1, 5
aT = 8
aQ, aK, aV, aCQ, aCK, aCV, aONE = 16, 32, 48, 64, 68, 72, 76
aXF = (80, 108)
aWF = (96, 124)
aCL, aCU = 136, 152
srd_load(A, REST)
srd_fill(A, REST + (SX, SWQ))
late_ids(A)
A(f"v_and_b32 v{aT}, 15, v0")
A(f"v_lshrrev_b32 v{aT + 2}, 4, v0")
A(f"v_lshrrev_b32 v{aT + 3}, 1, v{aT}")
A(f"v_xor_b32 v{aT + 3}, v{aT + 3}, v{aT + 2}")
A(f"v_lshlrev_b32 v{aT + 3}, 4, v{aT + 3}")
A(f"v_lshl_add_u32 v{aXA}, v{aT}, 7, v{aT + 3}")
A(f"v_xor_b32 v{aXA + 1}, 64, v{aXA}")
A(f"v_add_u32 v{aXA + 2}, 0x10000, v{aXA}")
A(f"v_add_u32 v{aXA + 3}, 0x10000, v{aXA + 1}")
A(f"v_bfe_u32 v{aT + 3}, v0, 3, 2")
A(f"v_xor_b32 v{aT + 3}, {sr(sW)}, v{aT + 3}")
A(f"v_lshlrev_b32 v{aT + 3}, 5, v{aT + 3}")
A(f"v_and_b32 v{aT + 4}, 3, v0")
A(f"v_lshl_add_u32 v{aT + 3}, v{aT + 4}, 3, v{aT + 3}")
A(f"v_bfe_u32 v{aT + 4}, v0, 2, 2")
A(f"v_lshl_add_u32 v{aT + 3}, v{aT + 4}, 7, v{aT + 3}")
A(f"v_mul_u32_u24 v{aT + 4}, 3072, v{aT + 2}")
A(f"v_add_u32 v{aWA}, v{aT + 3}, v{aT + 4}")
A(f"v_add_u32 v{aWA + 1}, 0x10000, v{aWA}")
for i in range(4):
    A(f"v_mov_b32 v{aONE + i}, 0x3f803f80")
stamp(A, "prek", "start")
A("s_waitcnt lgkmcnt(0)")
stamp(A, "karg", "start")
if OPT["tlb"]:
    A(f"s_lshl2_add_u32 {sr(sT0)}, {sr(sJ)}, {sr(sW)}")
    A(f"s_lshl_b32 {sr(sT0)}, {sr(sT0)}, 7")
    A(f"s_add_u32 {sr(sT0)}, {sr(sT0)}, {sr(sWSB)}")
    A(f"s_add_u32 {sr(sT0)}, {sr(sT0)}, {FLA}")
    A(f"v_lshlrev_b32 v{aT + 4}, 21, v0")
    A(f"v_sub_u32 v{aT + 4}, {sr(sT0)}, v{aT + 4}")
    A(f"s_lshl_b32 {sr(sT0)}, {sr(sW)}, 7")
    A(f"s_add_u32 {sr(sT0)}, {sr(sT0)}, {sr(sWSB)}")
    A(f"s_add_u32 {sr(sT0)}, {sr(sT0)}, {FLX}")
    A(f"v_writelane_b32 v{aT + 4}, {sr(sT0)}, 2")
    A("s_mov_b64 exec, 7")
    A.vm(f"buffer_load_dword v254, v{aT + 4}, {srd(SWS)}, 0 offen sc1")
    A("s_mov_b64 exec, -1")
if OPT["c3"]:
    A(f"s_lshr_b32 {sr(sT0)}, s2, 3")
    A(f"s_lshl2_add_u32 {sr(sT0)}, {sr(sT0)}, {sr(sW)}")
    A(f"s_mul_i32 {sr(sT0)}, {sr(sT0)}, {12 * 1024}")
    A(f"v_lshlrev_b32 v{aT + 4}, 10, v0")
    A("s_mov_b64 exec, 0xfff")
    A.vm(f"buffer_load_dword v253, v{aT + 4}, {srd(SWQ)}, {sr(sT0)} offen offset:384")
    A("s_mov_b64 exec, -1")
if OPT["warm"] == 1:
    warm_touch(A, aT + 4, aT + 5, "12o")
stamp(A, "warm", "start")
nl = lab("nolead")
A(f"s_or_b32 {sr(sT0)}, s2, {sr(sW)}")
A(f"s_cbranch_scc1 {nl}")
A(f"v_mov_b32 v{aQ}, {WEPOCH}")
A("s_mov_b64 exec, 1")
A.raw(f"buffer_load_dword v{aQ + 2}, v{aQ}, {srd(SWS)}, 0 offen sc1")
A(f"s_mov_b32 {sr(sT0)}, 1664525")
A(f"v_mov_b32 v{aQ + 1}, 0")
A(f"v_mov_b32 v{aQ + 3}, 1")
A("s_waitcnt vmcnt(0)")
A(f"v_mul_lo_u32 v{aQ + 2}, v{aQ + 2}, {sr(sT0)}")
A(f"v_add_u32 v{aQ + 2}, 1013904223, v{aQ + 2}")
A.raw(f"buffer_store_dwordx2 {vr(aQ + 2, 2)}, v{aQ + 1}, {srd(SDBG)}, 0 offen sc1")
A.raw(f"buffer_store_dword v{aQ + 2}, v{aQ}, {srd(SWS)}, 0 offen sc1")
A("s_mov_b64 exec, -1")
A(f"{nl}:")
A(f"v_lshrrev_b32 v{aT + 3}, 5, v0")
A(f"v_lshlrev_b32 v{aT + 3}, 2, v{aT + 3}")
A(f"v_and_b32 v{aT + 4}, 31, v0")
A(f"v_sub_u32 v{aT + 3}, v{aT + 4}, v{aT + 3}")
A(f"v_mov_b32 v{aT + 4}, {hx(f2u(-1e30))}")
for i in range(16):
    m = 8 * (i >> 2) + (i & 3)
    pr = (sM0, sM1)[i & 1]
    A(f"v_cmp_le_i32 {sr(pr, 2)}, {m}, v{aT + 3}")
    A(f"v_cndmask_b32 v{aCL + i}, v{aT + 4}, 0, {sr(pr, 2)}")
    A(f"v_cndmask_b32 v{aCU + i}, 0, v{aT + 4}, {sr(pr, 2)}")
stamp(A, "pro", "main start")

rd = {}


def s1_reads(n):
    s, t = n >> 1, n & 1
    sl = s % 3
    hi = 1 if sl == 2 else 0
    base = (sl & 1) * SLOT
    xf, wf = aXF[n & 1], aWF[n & 1]
    X = lambda q: (("x", q), f"ds_read_b128 {vr(xf + 4 * q, 4)}, v{aXA + t + 2 * hi} offset:{base + q * 2048}")
    W = lambda m, h: (("w", m), f"ds_read_b64_tr_b16 {vr(wf + 4 * m + 2 * h, 2)}, v{aWA + hi} offset:{base + 8192 + t * 12288 + m * 1024 + h * 512}")
    return [W(1, 0), W(1, 1), X(0), W(2, 0), W(2, 1), X(1), W(0, 0), W(0, 1), X(2), X(3)]


def s1_rd(n, item):
    rd[(n,) + item[0]] = A.ds(item[1])


A("s_barrier")
stamp(A, "bar0", "main start")
for it in s1_reads(0):
    s1_rd(0, it)
order = [("c", 1), (1, 0), ("c", 2), (2, 0), (1, 1), (2, 1), ("c", 0), (0, 0), (0, 1), (1, 2), (2, 2), (0, 2), (1, 3), (2, 3), (0, 3)]
aNP = 7
for n in range(16):
    xf, wf = aXF[n & 1], aWF[n & 1]
    z = "0" if n == 0 else None
    nxt = s1_reads(n + 1) if n < 15 else []
    for k, (m, q) in enumerate(order):
        if k == 6 and n < 15:
            A.wait_lg0()
            A("s_barrier")
            if n == 10:
                A(f"v_mov_b32 v{aNP}, 0")
                tnp = A.vm(f"buffer_load_dwordx2 {vr(aT, 2)}, v{aNP}, {srd(SDBG)}, 0 offen sc1")
        if m == "c":
            A.wait(lg=rd[(n, "w", q)])
            if q == 2:
                mf16(A, aCV, aONE, wf + 8, z)
            else:
                mf16(A, (aCQ, aCK)[q], wf + 4 * q, aONE, z)
        else:
            A.wait(lg=max(rd[(n, "w", m)], rd[(n, "x", q)]))
            if m == 2:
                mf16(A, aV + 4 * q, xf + 4 * q, wf + 8, z)
            else:
                mf16(A, (aQ, aK)[m] + 4 * q, wf + 4 * m, xf + 4 * q, z)
        if k >= 6 and nxt:
            for _ in range(2 if k == 6 else 1):
                if nxt:
                    s1_rd(n + 1, nxt.pop(0))
stamp(A, "s1end")
lp, dn = lab("np"), lab("npd")
A(f"s_mov_b32 {sr(sCNT)}, 0")
A(f"{lp}:")
A.wait_vm0()
A(f"v_readfirstlane_b32 {sr(sT0)}, v{aT + 1}")
A(f"v_readfirstlane_b32 {sr(sNONCE)}, v{aT}")
A(f"s_cmp_lg_u32 {sr(sT0)}, 0")
A(f"s_cbranch_scc0 {lp}x")
A(f"{dn}:")
tail += [f"{lp}x:", f"    s_add_u32 {sr(sCNT)}, {sr(sCNT)}, 1", f"    s_cmp_gt_u32 {sr(sCNT)}, {TIMEOUT}", f"    s_cbranch_scc1 {dn}",
         f"    buffer_load_dwordx2 {vr(aT, 2)}, v{aNP}, {srd(SDBG)}, 0 offen sc1", f"    s_branch {lp}"]
A(f"v_mov_b32 v{aT + 2}, {L_NONCE}")
A.ds(f"ds_write_b32 v{aT + 2}, v{aT}")
aSA, aSB, aKS, aZ = 1, 2, 3, 7
A(f"v_and_b32 v{aSA}, 15, v0")
A(f"v_lshlrev_b32 v{aSA}, 2, v{aSA}")
A(f"v_add_u32 v{aSA}, {L_RS}, v{aSA}")
A(f"v_and_b32 v{aSB}, 48, v0")
A(f"v_add_u32 v{aSB}, {L_RS}, v{aSB}")
A(f"v_lshlrev_b32 v{aKS}, 4, v0")
sKV, sFA = sT4, sT5
A(f"s_lshl2_add_u32 {sr(sT0)}, {sr(sJ)}, {sr(sW)}")
A(f"s_lshl_b32 {sr(sKV)}, {sr(sT0)}, 12")
A(f"s_add_u32 {sr(sKV)}, {sr(sKV)}, {sr(sWSB)}")
A(f"s_lshl_b32 {sr(sFA)}, {sr(sT0)}, 7")
A(f"s_add_u32 {sr(sFA)}, {sr(sFA)}, {sr(sWSB)}")
A(f"s_add_u32 {sr(sFA)}, {sr(sFA)}, {FLA}")
A.wait_lg0()
A("s_barrier")
stamp(A, "S1e")
eL, eRS, eNM = 80, 88, 104
aQF, aKF, aVC = 176, 184, 192
tl = []
for t in range(4):
    tl.append(A.ds(f"ds_read2_b32 {vr(eL + 2 * t, 2)}, v{aSA} offset0:{16 * t} offset1:{64 + 16 * t}"))
tv = []
for t in range(4):
    A.ds(f"ds_read_b128 {vr(eRS + 4 * t, 4)}, v{aSB} offset:{64 * t}")
    tv.append(A.ds(f"ds_read_b128 {vr(eNM + 4 * t, 4)}, v{aSB} offset:{256 + 64 * t}"))


def qk_epi(acc, cs, dst):
    for t in range(4):
        for p in range(2):
            A(f"v_pk_mul_f32 {vr(aT + 4, 2)}, {vr(cs + 2 * p, 2)}, {vr(eL + 2 * t, 2)} op_sel:[0,1] op_sel_hi:[1,1]")
            A(f"v_pk_fma_f32 {vr(acc + 4 * t + 2 * p, 2)}, {vr(acc + 4 * t + 2 * p, 2)}, {vr(eL + 2 * t, 2)}, {vr(aT + 4, 2)} op_sel:[0,0,0] op_sel_hi:[1,0,1]")
    for t in range(4):
        for p in range(2):
            A(f"v_cvt_pk_bf16_f32 v{dst + 2 * t + p}, v{acc + 4 * t + 2 * p}, v{acc + 4 * t + 2 * p + 1}")
    for b in range(2):
        for p in range(2):
            A(f"v_permlane16_swap_b32 v{dst + 4 * b + p}, v{dst + 4 * b + 2 + p}")


A.wait(lg=tl[3])
qk_epi(aK, aCK, aKF)
for b in range(2):
    A.vm(f"buffer_store_dwordx4 {vr(aKF + 4 * b, 4)}, v{aKS}, {srd(SWS)}, {sr(sKV)} offen offset:{2048 * b} sc1")
A.wait(lg=tv[3])
for t in range(4):
    for p in range(2):
        A(f"v_pk_mul_f32 {vr(aT + 4, 2)}, {vr(eNM + 4 * t + 2 * p, 2)}, {vr(aCV, 2)}")
        A(f"v_pk_fma_f32 {vr(aV + 4 * t + 2 * p, 2)}, {vr(aV + 4 * t + 2 * p, 2)}, {vr(eRS + 4 * t + 2 * p, 2)}, {vr(aT + 4, 2)}")
for t in range(4):
    for p in range(2):
        A(f"v_cvt_pk_bf16_f32 v{aVC + 2 * t + p}, v{aV + 4 * t + 2 * p}, v{aV + 4 * t + 2 * p + 1}")
for b in range(2):
    for p in range(2):
        A(f"v_permlane32_swap_b32 v{aVC + 4 * b + p}, v{aVC + 4 * b + 2 + p}")
for b in range(2):
    A.vm(f"buffer_store_dwordx4 {vr(aVC + 4 * b, 4)}, v{aKS}, {srd(SWS)}, {sr(sKV)} offen offset:{2048 * b + 1024} sc1")
stamp(A, "kvst")
aKA, aVA = 1, 4
A(f"s_mul_i32 {sr(sT1)}, {sr(sW)}, {HHEAD}")
A(f"v_add_u32 v{aKA}, {sr(sT1)}, v{aKS}")
A(f"v_mov_b32 v{aT + 2}, {sr(sT1)}")
for b in range(2):
    A.ds(f"ds_write_b128 v{aKA}, {vr(aVC + 4 * b, 4)} offset:{halo_off(b) + 1024}")
for b in range(2):
    A.ds(f"ds_write_b128 v{aT + 2}, {vr(aONE, 4)} offset:{halo_off(b) + 2048}")
A(f"v_and_b32 v{aT + 3}, 15, v0")
A(f"v_lshrrev_b32 v{aT + 4}, 5, v0")
A(f"v_lshl_add_u32 v{aT + 3}, v{aT + 4}, 4, v{aT + 3}")
A(f"v_lshlrev_b32 v{aT + 3}, 4, v{aT + 3}")
A(f"v_add_u32 v{aT + 4}, 512, v{aT + 3}")
A(f"s_mov_b32 {sr(sM0)}, 0xffff")
A(f"s_mov_b32 {sr(sM0 + 1)}, 0xffff")
A(f"v_mov_b32 v{aT + 5}, 1024")
A(f"v_cndmask_b32 v{aT + 3}, v{aT + 5}, v{aT + 3}, {sr(sM0, 2)}")
A(f"v_cndmask_b32 v{aT + 4}, v{aT + 5}, v{aT + 4}, {sr(sM0, 2)}")
A(f"s_add_u32 {sr(sT1)}, {sr(sT1)}, 1024")
A(f"v_add_u32 v{aVA}, {sr(sT1)}, v{aT + 3}")
A(f"v_add_u32 v{aVA + 1}, {sr(sT1)}, v{aT + 4}")
aKB = (200, 204, 208)
aVB = (212, 220, 228)
vt = {}
for b in range(2):
    for p in range(2):
        vt[b] = A.ds(f"ds_read_b128 {vr(aVB[b] + 4 * p, 4)}, v{aVA + p} offset:{halo_off(b)}")
QS = 0.25 * 1.4426950408889634
for t in range(4):
    A(f"v_mul_f32 v{eL + 2 * t}, {hx(f2u(QS))}, v{eL + 2 * t}")
    A(f"v_mul_f32 v{eL + 2 * t + 1}, {hx(f2u(QS))}, v{eL + 2 * t + 1}")
qk_epi(aQ, aCQ, aQF)

aS = (16, 32)
aO = (48, 64)
aP = 80


def run_tiles(tiles, hooks, first_o):
    def s_mfma(i):
        qb, kreg, vreg, c, kt, vtk = tiles[i]
        if kt:
            A.wait(lg=kt())
        mf32(A, aS[i & 1], kreg, aQF + 4 * qb, c)

    def pv(i, p):
        qb, kreg, vreg, c, kt, vtk = tiles[i]
        if vtk:
            A.wait(lg=vtk())
        z = None
        if p == 0 and qb in first_o:
            first_o.discard(qb)
            z = "0"
        mf32(A, aO[qb], vreg + 4 * p, aP + 4 * p, z)

    s_mfma(0)
    for i in range(len(tiles)):
        s = aS[i & 1]
        e = lambda k: A(f"v_exp_f32 v{s + k}, v{s + k}")
        c = lambda k: A(f"v_cvt_pk_bf16_f32 v{aP + k}, v{s + 2 * k}, v{s + 2 * k + 1}")
        if i + 1 < len(tiles):
            s_mfma(i + 1)
        e(0); e(1); e(2); c(0); e(3); e(4); c(1)
        if i:
            pv(i - 1, 1)
        if i in hooks:
            hooks[i]()
        e(5); e(6); c(2); e(7); e(8); c(3); e(9); e(10)
        pv(i, 0)
        c(4); e(11); e(12); c(5); e(13); e(14); e(15); c(6); c(7)
    pv(len(tiles) - 1, 1)


first_o = {0, 1}
CL, CU = vr(aCL, 16), vr(aCU, 16)


def flag_a():
    A(f"s_getreg_b32 {sr(sXCC)}, hwreg(HW_REG_XCC_ID, 0, 4)")
    A(f"s_and_b32 {sr(sT0)}, {sr(sNONCE)}, -16")
    A(f"s_or_b32 {sr(sT0)}, {sr(sT0)}, {sr(sXCC)}")
    A(f"v_mov_b32 v{aT + 3}, {sr(sT0)}")
    A(f"s_lshl2_add_u32 {sr(sT1)}, {sr(sJ)}, {sr(sWSB)}")
    A(f"s_add_u32 {sr(sT1)}, {sr(sT1)}, {FLX}")
    A(f"s_cmp_eq_u32 {sr(sW)}, 0")
    A(f"s_cselect_b32 {sr(sT1)}, {sr(sT1)}, {hx(OOB)}")
    A(f"v_mov_b32 v{aT + 2}, {sr(sNONCE)}")
    A("s_mov_b64 exec, 1")
    A.wait(vm=A.vm_n, lg=A.lg_n)
    A.vm(f"buffer_store_dword v{aT + 2}, v{aZ}, {srd(SWS)}, {sr(sFA)} offen sc1")
    A("s_mov_b64 exec, -1")
    stamp(A, "flagA")
    A("s_barrier")


if OPT["fa"] == 0:
    flag_a()
run_tiles([(0, aKF, aVB[0], CL, None, lambda: vt[0]), (1, aKF, aVB[0], "0", None, None), (1, aKF + 4, aVB[1], CL, None, lambda: vt[1])],
          {OPT["fa"] - 1: flag_a}, first_o)
if OPT["fa"] == 4:
    flag_a()
A("s_mov_b64 exec, 1")
A.vm(f"buffer_store_dword v{aT + 3}, v{aZ}, {srd(SWS)}, {sr(sT1)} offen sc1")
A("s_mov_b64 exec, -1")
A(f"v_mov_b32 v{aT + 2}, {L_NONCE + 4}")
A("s_barrier")
stamp(A, "H0")
kt, vt2 = {}, {}


def kv_read(b):
    i = (7 - b) % 3
    kt[b] = A.ds(f"ds_read_b128 {vr(aKB[i], 4)}, v{aKA} offset:{halo_off(b)}")
    for p in range(2):
        vt2[b] = A.ds(f"ds_read_b128 {vr(aVB[i] + 4 * p, 4)}, v{aVA + p} offset:{halo_off(b)}")


kv_read(7)
tiles, hooks = [], {}
for b in range(7, -1, -1):
    i = (7 - b) % 3
    for qb in range(2):
        if b == 0 and qb == 1:
            continue
        c = CU if b == qb else "0"
        tiles.append((qb, aKB[i], aVB[i], c, (lambda b=b: kt[b]), (lambda b=b: vt2[b])))
    if b - 1 >= 0:
        def hk(b=b):
            if b - 1 in (5, 3):
                A.wait_lg0()
                A("s_barrier")
            kv_read(b - 1)
            if b - 1 == 3:
                A.ds(f"ds_read_b32 v{aT + 3}, v{aT + 2}")
        hooks[len(tiles) - 2] = hk
run_tiles(tiles, hooks, first_o)
stamp(A, "attend", "main late")
aOS = 1
A(f"v_cmp_ne_u32 vcc, 0, v{aT + 3}")
A(f"v_and_b32 v{aT + 4}, 15, v0")
A(f"v_lshlrev_b32 v{aT + 4}, 4, v{aT + 4}")
A(f"v_bfe_u32 v{aT + 5}, v0, 4, 1")
A(f"v_lshl_add_u32 v{aT + 4}, v{aT + 5}, 14, v{aT + 4}")
A(f"v_lshrrev_b32 v{aT + 5}, 5, v0")
A(f"v_lshl_add_u32 v{aOS}, v{aT + 5}, 8, v{aT + 4}")
A(f"s_lshl2_add_u32 {sr(sT0)}, {sr(sJ)}, {sr(sW)}")
A(f"s_lshl_b32 {sr(sT0)}, {sr(sT0)}, 9")
A(f"s_add_u32 {sr(sT0)}, {sr(sT0)}, {sr(sWSB)}")
A(f"s_add_u32 {sr(sT6)}, {sr(sT0)}, {WO_}")
A(f"s_add_u32 {sr(sT7)}, {sr(sT6)}, 32768")
A(f"v_subrev_u32 v{aT + 4}, {hx(f2u(2.0 ** -40))}, v{aO[0] + 8}")
A(f"v_subrev_u32 v{aT + 5}, {hx(f2u(2.0 ** -40))}, v{aO[1] + 8}")
A(f"v_max_u32 v{aT + 4}, v{aT + 4}, v{aT + 5}")
A(f"s_mov_b32 {sr(sT0)}, {0 if OPT['force_fb'] else hx(f2u(2.0 ** 40) - f2u(2.0 ** -40))}")
A(f"v_cmp_le_u32 {sr(sM0, 2)}, {sr(sT0)}, v{aT + 4}")
A(f"s_cmp_lg_u64 {sr(sM0, 2)}, 0")
A("s_cbranch_scc1 L_fallback")
A("L_fb_done:")
aOP = 16
for qb in range(2):
    o = aO[qb]
    A(f"v_rcp_f32 v{o + 8}, v{o + 8}")
for qb in range(2):
    o = aO[qb]
    for p in range(4):
        A(f"v_pk_mul_f32 {vr(o + 2 * p, 2)}, {vr(o + 2 * p, 2)}, {vr(o + 8, 2)} op_sel:[0,0] op_sel_hi:[1,0]")
    for p in range(4):
        A(f"v_cvt_pk_bf16_f32 v{aOP + 4 * qb + p}, v{o + 2 * p}, v{o + 2 * p + 1}")
pub(A, [f"buffer_store_dwordx4 {vr(aOP + 4 * qb, 4)}, v{aOS}, {srd(SWS)}, {sr((sT6, sT7)[qb])} offen" for qb in range(2)], OPT["lo"])

F = Stream()
fK, fV, fM, fQ, fO, fA0, fA1 = 200, 212, 88, 92, 96, 90, 91
sQB, sKB, sKO = sT0, sT1, sT2
F("L_fallback:")
F.fence()
F(f"v_and_b32 v{fA0}, 15, v0")
F(f"v_lshrrev_b32 v{fA1}, 5, v0")
F(f"v_lshl_add_u32 v{fA0}, v{fA1}, 4, v{fA0}")
F(f"v_lshlrev_b32 v{fA0}, 4, v{fA0}")
F(f"s_mov_b32 {sr(sQB)}, 0")
F("L_fb_q:")
for i in range(4):
    F(f"v_mov_b32 v{fQ + i}, v{aQF + i}")
    F(f"v_mov_b32 v{aQF + i}, v{aQF + 4 + i}")
F(f"v_mov_b32 v{fM}, {hx(f2u(-3e38))}")
for i in range(16):
    F(f"v_mov_b32 v{fO + i}, 0")
for i in range(8):
    F(f"v_mov_b32 v{fV + i}, 0x3f803f80")
for ps in range(2):
    F(f"s_lshl1_add_u32 {sr(sT3)}, {sr(sRB)}, {sr(sQB)}")
    F(f"s_min_u32 {sr(sKB)}, {sr(sT3)}, 8")
    F(f"L_fb_k{ps}:")
    F(f"s_sub_u32 {sr(sKO)}, {sr(sT3)}, {sr(sKB)}")
    F(f"s_and_b32 {sr(sCNT)}, {sr(sKO)}, 1")
    F(f"s_lshl_b32 {sr(sCNT)}, {sr(sCNT)}, 11")
    F(f"s_lshr_b32 {sr(sKO)}, {sr(sKO)}, 1")
    F(f"s_sub_u32 {sr(sKO)}, {sr(sRB)}, {sr(sKO)}")
    F(f"s_lshl_b32 {sr(sKO)}, {sr(sKO)}, 19")
    F(f"s_sub_u32 {sr(sKO)}, {sr(sKV)}, {sr(sKO)}")
    F(f"s_add_u32 {sr(sKO)}, {sr(sKO)}, {sr(sCNT)}")
    F.raw(f"buffer_load_dwordx4 {vr(fK, 4)}, v{aKS}, {srd(SWS)}, {sr(sKO)} offen sc1")
    if ps:
        F("s_mov_b32 exec_lo, 0xffff")
        F("s_mov_b32 exec_hi, 0xffff")
        F.raw(f"buffer_load_dwordx4 {vr(fV, 4)}, v{fA0}, {srd(SWS)}, {sr(sKO)} offen offset:1024 sc1")
        F.raw(f"buffer_load_dwordx4 {vr(fV + 4, 4)}, v{fA0}, {srd(SWS)}, {sr(sKO)} offen offset:1536 sc1")
        F("s_mov_b64 exec, -1")
    F("s_waitcnt vmcnt(0)")
    F(f"s_cmp_eq_u32 {sr(sKB)}, 8")
    F(f"s_cbranch_scc1 L_fb_u{ps}")
    F(f"s_cmp_eq_u32 {sr(sKB)}, 0")
    F(f"s_cbranch_scc1 L_fb_l{ps}")
    mf32(F, aS[0], fK, fQ, "0")
    F(f"s_branch L_fb_s{ps}")
    F(f"L_fb_u{ps}:")
    mf32(F, aS[0], fK, fQ, CU)
    F(f"s_branch L_fb_s{ps}")
    F(f"L_fb_l{ps}:")
    mf32(F, aS[0], fK, fQ, CL)
    F(f"L_fb_s{ps}:")
    F.fence()
    s = aS[0]
    if ps == 0:
        for i in range(8):
            F(f"v_max3_f32 v{fM}, v{fM}, v{s + 2 * i}, v{s + 2 * i + 1}")
    else:
        for i in range(16):
            F(f"v_sub_f32 v{s + i}, v{s + i}, v{fM}")
        for i in range(16):
            F(f"v_exp_f32 v{s + i}, v{s + i}")
        for i in range(8):
            F(f"v_cvt_pk_bf16_f32 v{aP + i}, v{s + 2 * i}, v{s + 2 * i + 1}")
        mf32(F, fO, fV, aP)
        mf32(F, fO, fV + 4, aP + 4)
        F.fence()
    F(f"s_sub_u32 {sr(sKB)}, {sr(sKB)}, 1")
    F(f"s_cbranch_scc0 L_fb_k{ps}")
    if ps == 0:
        F(f"v_mov_b32 v{fM + 1}, v{fM}")
        F(f"v_permlane32_swap_b32 v{fM}, v{fM + 1}")
        F(f"v_max_f32 v{fM}, v{fM}, v{fM + 1}")
for i in range(9):
    F(f"v_mov_b32 v{aO[0] + i}, v{aO[1] + i}")
    F(f"v_mov_b32 v{aO[1] + i}, v{fO + i}")
F(f"s_add_u32 {sr(sQB)}, {sr(sQB)}, 1")
F(f"s_cmp_lt_u32 {sr(sQB)}, 2")
F("s_cbranch_scc1 L_fb_q")
F("s_branch L_fb_done")

cWA, cXA, cFA = 4, 8, 12
cAC, cOF, cWO = 24, 40, 80
NOF, NWO = 10, 11
A(f"v_bfe_u32 v{aT + 5}, v0, 2, 3")
A(f"v_lshrrev_b32 v{aT + 6}, 5, v0")
A(f"v_lshl_add_u32 v{aT + 5}, v{aT + 6}, 4, v{aT + 5}")
A(f"v_lshlrev_b32 v{aT + 5}, 7, v{aT + 5}")
A(f"v_bfe_u32 v{aT + 6}, v0, 3, 2")
A(f"v_lshl_add_u32 v{aT + 5}, v{aT + 6}, 5, v{aT + 5}")
A(f"v_and_b32 v{aT + 6}, 3, v0")
A(f"v_lshl_add_u32 v{aT + 5}, v{aT + 6}, 3, v{aT + 5}")
A(f"v_add_u32 v{cWA}, {L_WO}, v{aT + 5}")
for a in range(1, 4):
    A(f"v_xor_b32 v{cWA + a}, {32 * a}, v{cWA}")
A("s_barrier")
stamp(A, "E", "main late")
wo_tok = {}


def wo_read(n):
    r = cWO + 16 * (n % NWO)
    for a in range(4):
        for h in range(2):
            wo_tok[n] = A.ds(f"ds_read_b64_tr_b16 {vr(r + 4 * a + 2 * h, 2)}, v{cWA + a} offset:{n * 4096 + h * 1024}")


for n in range(5):
    wo_read(n)
cZ = 2
A(f"v_mov_b32 v{cZ}, {FLB}")
A(f"v_mov_b32 v{aT + 5}, {sr(sNONCE)}")
sFO = sT5
A(f"s_lshl2_add_u32 {sr(sFO)}, {sr(sJ)}, {sr(sW)}")
A(f"s_lshl2_add_u32 {sr(sFO)}, {sr(sFO)}, {sr(sWSB)}")
A("s_mov_b64 exec, 1")
A.wait_vm0()
pub(A, [f"buffer_store_dword v{aT + 5}, v{cZ}, {srd(SWS)}, {sr(sFO)} offen"])
stamp(A, "flagB", "late")
A("s_mov_b64 exec, -1")
A(f"v_and_b32 v{aT + 5}, 15, v0")
A(f"v_lshrrev_b32 v{aT + 6}, 1, v{aT + 5}")
A(f"v_lshrrev_b32 v{aT + 7}, 5, v0")
A(f"v_xor_b32 v{aT + 6}, v{aT + 6}, v{aT + 7}")
A(f"v_lshlrev_b32 v{aT + 6}, 4, v{aT + 6}")
A(f"v_lshl_add_u32 v{aT + 5}, v{aT + 5}, 7, v{aT + 6}")
A(f"v_bfe_u32 v{aT + 6}, v0, 4, 1")
A(f"v_lshl_add_u32 v{aT + 5}, v{aT + 6}, 3, v{aT + 5}")
A(f"s_lshl_b32 {sr(sT0)}, {sr(sW)}, 11")
A(f"s_add_u32 {sr(sT0)}, {sr(sT0)}, {L_HST}")
A(f"v_add_u32 v{cXA}, {sr(sT0)}, v{aT + 5}")
for a in range(1, 4):
    A(f"v_xor_b32 v{cXA + a}, {32 * a}, v{cXA}")
for a in range(4):
    tx = A.ds(f"ds_read_b64 {vr(cOF + 2 * a, 2)}, v{cXA + a}")
A(f"v_and_b32 v{cFA}, 31, v0")
A(f"s_add_u32 {sr(sT0)}, {sr(sWSB)}, {FLB}")
A(f"v_lshl_add_u32 v{cFA}, v{cFA}, 2, {sr(sT0)}")
A.wait(lg=tx)
for i in range(8):
    A(f"v_lshlrev_b32 v{cAC + 2 * i}, 16, v{cOF + i}")
    A(f"v_and_b32 v{cAC + 2 * i + 1}, 0xffff0000, v{cOF + i}")
for n in range(5, NWO):
    wo_read(n)
sOB, sOK = sT6, sT7
A(f"s_lshl_b32 {sr(sOB)}, {sr(sW)}, 14")
A(f"s_add_u32 {sr(sOB)}, {sr(sOB)}, {sr(sWSB)}")
A(f"s_add_u32 {sr(sOB)}, {sr(sOB)}, {WO_}")
A(f"s_lshl_b32 {sr(sOK)}, {sr(sRO)}, 10")
stamp(A, "prePB", "late")
poll(A, cFA, None, 13, 14)
stamp(A, "pollB", "main late")
of_tok = {}


def of_load(n):
    if n % 4 == 0:
        A(f"s_add_u32 {sr(sT0)}, {sr(sOB)}, {sr(sOK)}")
        A(f"s_add_u32 {sr(sOK)}, {sr(sOK)}, 4096")
        A(f"s_and_b32 {sr(sOK)}, {sr(sOK)}, 0x3fff")
    of_tok[n] = A.vm(f"buffer_load_dwordx4 {vr(cOF + 4 * (n % NOF), 4)}, v{aKS}, {srd(SWS)}, {sr(sT0)} offen offset:{(n % 4) * 1024} sc1")


for n in range(NOF):
    of_load(n)
for n in range(16):
    A.wait(vm=of_tok[n], lg=wo_tok[n])
    for a in range(4):
        mf16(A, cAC + 4 * a, cWO + 16 * (n % NWO) + 4 * a, cOF + 4 * (n % NOF))
    if n + NOF < 16:
        of_load(n + NOF)
        if n + NOF == 15:
            A("s_barrier")
    if n + NWO < 16:
        wo_read(n + NWO)
cHP = 16
stamp(A, "s3mf", "late")
A(f"s_lshl_b32 {sr(sT0)}, {sr(sJ)}, 11")
A(f"s_add_u32 {sr(sT0)}, {sr(sT0)}, {sr(sOB)}")
A(f"s_add_u32 {sr(sT0)}, {sr(sT0)}, {WH - WO_}")
A(f"s_lshl_b32 {sr(sT1)}, {sr(sW)}, 10")
A(f"s_add_u32 {sr(sT1)}, {sr(sT1)}, {sr(sWSB)}")
A(f"s_add_u32 {sr(sT1)}, {sr(sT1)}, {WST}")
A(f"s_lshl_b32 {sr(sT2)}, {sr(sJ)}, 7")
A(f"s_add_u32 {sr(sT2)}, {sr(sT2)}, {sr(sT1)}")
for i in range(8):
    A(f"v_cvt_pk_bf16_f32 v{cHP + i}, v{cAC + 2 * i}, v{cAC + 2 * i + 1}")
pub(A, [f"buffer_store_dwordx4 {vr(cHP + 4 * s, 4)}, v{aKS}, {srd(SWS)}, {sr(sT0)} offen offset:{1024 * s}" for s in range(2)], OPT["lh"])
cS, cQ = 40, 42
A(f"v_pk_add_f32 {vr(cS, 2)}, {vr(cAC, 2)}, {vr(cAC + 2, 2)}")
A(f"v_pk_mul_f32 {vr(cQ, 2)}, {vr(cAC, 2)}, {vr(cAC, 2)}")
for i in range(1, 8):
    if i > 1:
        A(f"v_pk_add_f32 {vr(cS, 2)}, {vr(cS, 2)}, {vr(cAC + 2 * i, 2)}")
    A(f"v_pk_fma_f32 {vr(cQ, 2)}, {vr(cAC + 2 * i, 2)}, {vr(cAC + 2 * i, 2)}, {vr(cQ, 2)}")
A(f"v_add_f32 v{cS}, v{cS}, v{cS + 1}")
A(f"v_add_f32 v{cQ}, v{cQ}, v{cQ + 1}")
A(f"v_lshlrev_b32 v{13}, 2, v0")
A(f"v_permlane16_swap_b32 v{cS}, v{cQ}")
A(f"v_add_f32 v{cS}, v{cS}, v{cQ}")
A(f"v_mov_b32 v{cQ}, v{cS}")
A(f"v_permlane32_swap_b32 v{cS}, v{cQ}")
A(f"v_add_f32 v{cS}, v{cS}, v{cQ}")
A("s_mov_b32 exec_hi, 0")
pub(A, [f"buffer_store_dword v{cS}, v13, {srd(SWS)}, {sr(sT2)} offen"], OPT["lh"])
A("s_mov_b32 exec_hi, -1")
stamp(A, "s3end", "main late")
for a in range(4):
    A.ds(f"ds_write_b64 v{cXA + a}, {vr(cHP + 2 * a, 2)}")
A(f"v_mov_b32 v14, {sr(sNONCE)}")
A(f"v_add_u32 v{cFA}, {FLC - FLB}, v{cFA}")
A("s_mov_b64 exec, 1")
A.wait_vm0()
pub(A, [f"buffer_store_dword v14, v{cZ}, {srd(SWS)}, {sr(sFO)} offen offset:{FLC - FLB}"])
stamp(A, "flagC", "late")
A("s_mov_b64 exec, -1")
dP, dG, dR = 4, 5, 6
A(f"v_lshrrev_b32 v{8}, 5, v0")
A(f"v_bfe_u32 v{9}, v0, 3, 2")
A(f"v_and_b32 v{10}, 7, v0")
A(f"v_bfe_u32 v{11}, v0, 4, 1")
A(f"v_lshlrev_b32 v{11}, 2, v{11}")
A(f"v_xor_b32 v{10}, v{10}, v{11}")
A(f"v_lshlrev_b32 v{10}, 4, v{10}")
A(f"v_lshl_add_u32 v{10}, v{9}, 10, v{10}")
A(f"s_mul_i32 {sr(sT0)}, {sr(sW)}, {352 * 1024}")
A(f"s_lshl_b32 {sr(sT2)}, {sr(sJ)}, 7")
A(f"s_add_u32 {sr(sT0)}, {sr(sT0)}, {sr(sT2)}")
A(f"v_add_u32 v{10}, {sr(sT0)}, v{10}")
A(f"v_lshl_add_u32 v{dP}, v{8}, 14, v{10}")
A(f"v_lshl_add_u32 v{dG}, v{8}, 12, v{10}")
A(f"s_mul_i32 {sr(sLB)}, {sr(sW)}, {W2W}")
A(f"v_bfe_u32 v{9}, v0, 2, 2")
A(f"v_lshl_add_u32 v{8}, v{8}, 3, v{9}")
A(f"v_lshlrev_b32 v{8}, 7, v{8}")
A(f"v_bfe_u32 v{9}, v0, 3, 1")
A(f"v_lshl_add_u32 v{8}, v{9}, 6, v{8}")
A(f"v_bfe_u32 v{9}, v0, 4, 1")
A(f"v_lshl_add_u32 v{8}, v{9}, 5, v{8}")
A(f"v_and_b32 v{9}, 3, v0")
A(f"v_lshl_add_u32 v{8}, v{9}, 3, v{8}")
A(f"v_add_u32 v{dR}, {sr(sLB)}, v{8}")
A(f"v_xor_b32 v{dR + 1}, 64, v{dR}")
A(f"s_lshl2_add_u32 {sr(sT0)}, {sr(sW)}, {sr(sRO)}")
A(f"s_and_b32 {sr(sT0)}, {sr(sT0)}, 15")
A(f"s_lshl_b32 {sr(sT0)}, {sr(sT0)}, 10")
A(f"s_add_u32 {sr(sT0)}, {sr(sT0)}, {sr(sWSB)}")
A(f"s_add_u32 {sr(sT6)}, {sr(sT0)}, {WH}")
A(f"s_lshl_b32 {sr(sT7)}, {sr(sW)}, 12")
A.wait_lg0()
poll(A, cFA, None, 14, 15)
A("s_barrier")
stamp(A, "C1", "main late")
A("s_setprio 0")
ht = []
for t in range(4):
    A(f"s_add_u32 m0, {sr(sT7)}, {L_WO + t * 16384}")
    if t:
        A(f"s_add_u32 {sr(sT6)}, {sr(sT6)}, 16384")
    for i in range(4):
        tk = dma(A, aKS, SWS, sr(sT6), i * 1024, "sc1")
    ht.append(tk)
    if t == 0:
        for i in range(4):
            tst = A.vm(f"buffer_load_dword v{16 + i}, v13, {srd(SWS)}, {sr(sT1)} offen offset:{256 * i} sc1")
    if t == 1:
        A.wait(vm=ht[0])
        A("s_barrier")
A.wait(vm=tst)
A("v_add_f32 v16, v16, v17")
A("v_add_f32 v18, v18, v19")
A("v_add_f32 v16, v16, v18")
A("v_mov_b32 v17, v16")
A("v_permlane32_swap_b32 v16, v17")
A("v_add_f32 v16, v16, v17")
A("v_mov_b32 v17, v16")
A("v_permlane16_swap_b32 v16, v17")
C0 = -2.0 * 0.7978845608028654 * 1.4426950408889634
C1 = C0 * 0.044715
A(f"v_mul_f32 v16, {hx(f2u(-1.0 / 512))}, v16")
A(f"v_mul_f32 v17, {hx(f2u(1.0 / 512))}, v17")
A("v_fma_f32 v17, -v16, v16, v17")
A("v_max_f32 v17, 0, v17")
A(f"v_add_f32 v18, {hx(f2u(1e-5))}, v17")
A("v_rsq_f32 v18, v18")
A("v_cmp_gt_u32 s[60:61], 16, v0")
A("v_mul_f32 v17, v17, v18")
A(f"v_fmaak_f32 v17, v17, v18, {hx(f2u(1e-5))}")
A("v_rsq_f32 v17, v17")
A("v_and_b32 v24, 15, v0")
A("v_mul_f32 v17, v17, v18")
A("v_rcp_f32 v22, v17")
A(f"v_mul_f32 v20, {hx(f2u(C0))}, v17")
A("v_mul_f32 v21, v17, v17")
A("v_mul_f32 v21, v21, v17")
A(f"v_mul_f32 v21, {hx(f2u(C1))}, v21")
A("v_mov_b32 v23, 0")
A("v_cndmask_b32 v16, v16, v22, s[60:61]")
A("v_cvt_pk_bf16_f32 v17, v16, 0")
A("v_lshlrev_b32 v17, 16, v17")
A("v_sub_f32 v17, v16, v17")
A("v_cndmask_b32 v18, v16, v17, s[60:61]")
A("v_cvt_pk_bf16_f32 v18, v16, v18")
A("v_cvt_pk_bf16_f32 v19, v17, 0")
A(f"s_lshl_b32 {sr(sT0)}, {sr(sW)}, 8")
A(f"s_add_u32 {sr(sT0)}, {sr(sT0)}, {L_C4}")
A(f"v_lshl_add_u32 v24, v24, 4, {sr(sT0)}")
A(f"s_lshl_b32 {sr(sT0)}, {sr(sW)}, 9")
A(f"s_add_u32 {sr(sT0)}, {sr(sT0)}, {L_IB}")
A(f"v_lshl_add_u32 v25, v0, 3, {sr(sT0)}")
A.ds("ds_write_b64 v25, v[18:19]")
A("s_mov_b64 exec, 0xffff")
A.ds("ds_write_b128 v24, v[20:23]")
A("s_mov_b64 exec, -1")

dW2 = 80
w2_tok = {}


def w2_issue(e):
    jj, ee = divmod(e, 11)
    ww, kind = divmod(ee, 3)
    f0 = 176 * jj + 48 * ww
    for hf in range(2):
        row = f0 + (4 * (2 * kind + hf) if kind < 2 else 32 + 8 * hf)
        A(f"s_add_u32 m0, {sr(sLB)}, {(e % 10) * 2048 + hf * 1024}")
        A(f"s_mov_b32 {sr(sT0)}, {row * 1024}")
        w2_tok[e] = bg(A, dP if kind < 2 else dG, SW2, sr(sT0))


w2_rd = {}


def w2_drain(e):
    A.wait(vm=w2_tok[e])
    for ch in range(2):
        for h in range(2):
            w2_rd[e] = A.ds(f"ds_read_b64_tr_b16 {vr(dW2 + 8 * e + 4 * ch + 2 * h, 2)}, v{dR + ch} offset:{(e % 10) * 2048 + h * 512}")


for e in range(3):
    w2_issue(e)
A.wait(vm=ht[3], lg=A.lg_n)
A("s_barrier")
if OPT["l1"]:
    A(f"v_lshlrev_b32 v8, 7, v0")
    A(f"s_and_b32 {sr(sT0)}, {sr(sW)}, 1")
    A(f"s_mul_i32 {sr(sT0)}, {sr(sT0)}, {44 * 128}")
    A(f"s_lshr_b32 {sr(sT1)}, {sr(sW)}, 1")
    A(f"s_mul_i32 {sr(sT1)}, {sr(sT1)}, {H1H}")
    A(f"s_add_u32 {sr(sT0)}, {sr(sT0)}, {sr(sT1)}")
    A(f"s_mul_i32 {sr(sT1)}, {sr(sJ)}, {11 * 1024}")
    A(f"s_add_u32 {sr(sT0)}, {sr(sT0)}, {sr(sT1)}")
    A(f"s_add_u32 {sr(sT0)}, {sr(sT0)}, {sr(sWSB)}")
    A(f"s_add_u32 {sr(sT0)}, {sr(sT0)}, {WH1}")
    A("s_mov_b32 exec_hi, 0xfff")
    A.vm(f"buffer_load_dword v9, v8, {srd(SWS)}, {sr(sT0)} offen sc1")
    A("s_mov_b32 exec_hi, -1")
DIST = 6
for e in range(3, DIST):
    w2_issue(e)
for e in range(22):
    if e + DIST < 22:
        if e + DIST - 10 >= 0:
            A.wait(lg=w2_rd[e + DIST - 10])
        w2_issue(e + DIST)
    w2_drain(e)
stamp(A, "w2end", "main late")
dAC, dHF, dPW = 8, 40, 4
NHF = 10
A(f"v_and_b32 v1, 7, v0")
A(f"s_lshl_b32 {sr(sT0)}, {sr(sW)}, 5")
A(f"s_add_u32 {sr(sT0)}, {sr(sT0)}, {sr(sWSB)}")
A(f"s_add_u32 {sr(sT0)}, {sr(sT0)}, {FLD}")
A(f"v_lshl_add_u32 v2, v1, 2, {sr(sT0)}")
A.wait_lg0()
A(f"v_lshrrev_b32 v8, 5, v0")
A(f"v_xor_b32 v8, v8, v1")
A(f"v_lshlrev_b32 v8, 4, v8")
A(f"v_and_b32 v9, 31, v0")
A(f"v_lshl_add_u32 v8, v9, 8, v8")
A(f"v_add_u32 v{dPW}, {sr(sLB)}, v8")
for a in range(1, 4):
    A(f"v_xor_b32 v{dPW + a}, {32 * a}, v{dPW}")
A(f"s_mul_i32 {sr(sT6)}, {sr(sW)}, {22 * 1024}")
A(f"s_add_u32 {sr(sT6)}, {sr(sT6)}, {sr(sWSB)}")
A(f"s_add_u32 {sr(sT6)}, {sr(sT6)}, {WH1}")
poll(A, 2, None, 1, 8)
A("s_setprio 1")
stamp(A, "pollD", "main late")
h1_tok = {}


def h1_load(q):
    half, e = divmod(q, 22)
    if e % 4 == 0:
        A(f"s_add_u32 {sr(sT0)}, {sr(sT6)}, {half * H1H + e * 1024}")
    h1_tok[q] = A.vm(f"buffer_load_dwordx4 {vr(dHF + 4 * (q % NHF), 4)}, v{aKS}, {srd(SWS)}, {sr(sT0)} offen offset:{(e % 4) * 1024} sc1")


for q in range(NHF):
    h1_load(q)
for q in range(44):
    half, e = divmod(q, 22)
    A.wait(vm=h1_tok[q])
    for ch in range(2):
        mf32(A, dAC + 16 * ch, dW2 + 8 * e + 4 * ch, dHF + 4 * (q % NHF), "0" if e == 0 else None)
    if q + NHF < 44:
        h1_load(q + NHF)
    if e == 21:
        stamp(A, f"s5h{half}", "late")
        for ch in range(2):
            for a in range(4):
                A.ds(f"ds_write_b128 v{dPW + a}, {vr(dAC + 16 * ch + 4 * a, 4)} offset:{half * 8192 + ch * 128}")
        A.wait_lg0()
        A("s_barrier")
dump_stamps(A, 1)
A("L_exit:")
A("s_endpgm")

rep = []
body = pad_hazards(P.L + B.L, rep) + pad_hazards(A.L, rep) + pad_hazards(F.L) + tail
nb = lambda L: sum(1 for x in L if x.strip().startswith("s_barrier"))
assert nb(A.L) == nb(B.L), (nb(A.L), nb(B.L))
hdr = open("sequential_preLN__sliding_block__mixer_channel_mlp__prompt.s.ref").read().split("; Override launch")[0]
out = hdr + f"""; One persistent launch: 256 workgroups x 8 waves; generated by gen/gen.py ({' '.join(f'{k}={v}' for k, v in OPT.items())})
; stampsB {' '.join(STN.get(id(B), []))}
; stampsA {' '.join(STN.get(id(A), []))}
; @launch grid=(256,1,1) block=(512,1,1) lds={LDS_BYTES}
.amdgcn_target "amdgcn-amd-amdhsa--gfx950"
.text
.globl {NAME}
.p2align 8
.type {NAME},@function
{NAME}:
""" + "\n".join(body) + f"""
L_end:
    s_endpgm
.section .rodata,"a"
.p2align 6
.amdhsa_kernel {NAME}
  .amdhsa_next_free_vgpr 256
  .amdhsa_next_free_sgpr 102
  .amdhsa_accum_offset 256
  .amdhsa_group_segment_fixed_size 0
  .amdhsa_kernarg_size 88
  .amdhsa_user_sgpr_count 2
  .amdhsa_user_sgpr_kernarg_segment_ptr 1
  .amdhsa_system_sgpr_workgroup_id_x 1
.end_amdhsa_kernel
"""
open(sys.argv[1], "w").write(out)
tot = sum(r[0] for r in rep)
print(f"wrote {sys.argv[1]}: {len(body)} lines, barriers {nb(A.L)}, padded states {tot}", file=sys.stderr)
if "-v" in sys.argv[1]:
    pass
for r in rep:
    if r[0] >= 3:
        print("  pad", r, file=sys.stderr)
```
